```python
import torch

def _softmax(x, axis=-1):
    return torch.softmax(x, dim=axis)
def _gelu(x):
    return torch.nn.functional.gelu(x, approximate="tanh")
def _silu(x):
    return torch.nn.functional.silu(x)
def _sigmoid(x):
    return torch.sigmoid(x)
def _layernorm(x, axis=-1, eps=1e-5):
    m = x.mean(dim=axis, keepdim=True)
    v = x.var(dim=axis, keepdim=True, unbiased=False)
    return (x - m) / torch.sqrt(v + eps)
def _scatter_add(tgt, idx, src, axis=0):
    return tgt.clone().index_add_(axis, idx, src)
def _segment_sum(src, seg, n):
    out = torch.zeros((n,) + src.shape[1:], dtype=src.dtype)
    return out.index_add_(0, seg, src)
def _pad(x, pw):
    flat = tuple(v for pair in reversed(pw) for v in pair)
    return torch.nn.functional.pad(x, flat)

kernel_name = 'sequential_preLN__linear_kernel_hedgehog__glu_gated_glu__prompt'

def setup_inputs():

    _w = (lambda a: (lambda t: t.to(torch.bfloat16) if t.is_floating_point() else t)(torch.as_tensor(a)))
    def _A_setup():
        B, S, D, H = 1, 2048, 1024, 32
        Dh = D // H
        return {
            "x": _w((lambda *s: torch.randn(*s, dtype=torch.bfloat16) * 0.05)(B, S, D)),
            "wqkv": _w((lambda *s: torch.randn(*s, dtype=torch.bfloat16) * 0.2)(D, 3 * D)),
            "w_phi": _w((lambda *s: torch.randn(*s, dtype=torch.bfloat16) * 0.2)(H, Dh, Dh) * (Dh ** -0.5)),
            "wo": _w((lambda *s: torch.randn(*s, dtype=torch.bfloat16) * 0.05)(D, D)),
        }
    _A_in = _A_setup()

    def _B_setup():
        B, S, D, F = 1, 2048, 1024, 3584
        return {
            "x": _w((lambda *s: torch.randn(*s, dtype=torch.bfloat16) * 0.05)(B, S, D)),
            "w_gate": _w((lambda *s: torch.randn(*s, dtype=torch.bfloat16) * 0.05)(D, F)),
            "w_up": _w((lambda *s: torch.randn(*s, dtype=torch.bfloat16) * 0.05)(D, F)),
            "w_down": _w((lambda *s: torch.randn(*s, dtype=torch.bfloat16) * 0.05)(F, D)),
        }
    _B_in = _B_setup()

    return {
        "A_x": _A_in["x"],
        "A_wqkv": _A_in["wqkv"],
        "A_w_phi": _A_in["w_phi"],
        "A_wo": _A_in["wo"],
        "B_x": _B_in["x"],
        "B_w_gate": _B_in["w_gate"],
        "B_w_up": _B_in["w_up"],
        "B_w_down": _B_in["w_down"],
    }

def reference(A_x, A_wqkv, A_w_phi, A_wo, B_x, B_w_gate, B_w_up, B_w_down):
    def _A_ref(x, wqkv, w_phi, wo):
        B, S, D = x.shape
        H = 32; Dh = D // H
        qkv = (lambda x, *d: x.permute(*d))((x @ wqkv).reshape(B, S, 3, H, Dh), 2, 0, 3, 1, 4)
        q, k, v = qkv[0], qkv[1], qkv[2]
        pq = torch.einsum("bhsd,hdf->bhsf", q, w_phi)
        pk = torch.einsum("bhsd,hdf->bhsf", k, w_phi)
        phi_q = torch.concatenate([_softmax(pq, axis=-1), _softmax(-pq, axis=-1)], axis=-1)
        phi_k = torch.concatenate([_softmax(pk, axis=-1), _softmax(-pk, axis=-1)], axis=-1)
        kv = torch.einsum("bhsf,bhsd->bhfd", phi_k, v)
        z  = torch.einsum("bhsf->bhf", phi_k)
        num = torch.einsum("bhqf,bhfd->bhqd", phi_q, kv)
        den = torch.einsum("bhqf,bhf->bhq", phi_q, z)[..., None] + 1e-6
        o = num / den
        return (lambda x, *d: x.permute(*d))(o, 0, 2, 1, 3).reshape(B, S, D) @ wo

    def _B_ref(x, w_gate, w_up, w_down):
        g = torch.einsum("bsd,df->bsf", x, w_gate)
        u = torch.einsum("bsd,df->bsf", x, w_up)
        h = _sigmoid(g) * u
        return torch.einsum("bsf,fd->bsd", h, w_down)

    x = A_x
    h = x + _A_ref(_layernorm(x, axis=-1), A_wqkv, A_w_phi, A_wo)
    h2 = h + _B_ref(_layernorm(h, axis=-1), B_w_gate, B_w_up, B_w_down)
    return h2
```

```python
class Asm:
    def __init__(self):
        self.lines = []
        self.vm = []
        self.lg = []
        self.vm_done = 0
        self.lg_done = 0
    def __call__(self, s):
        for l in s.split("\n"):
            l = l.strip()
            if l: self.lines.append(l)
    def vmem(self, s, tag=None):
        self.lines.append(s); self.vm.append(tag)
    def lds(self, s, tag=None):
        self.lines.append(s); self.lg.append(tag)
    def _need(self, ops, done, tags):
        idx = -1
        for t in tags:
            hits = [i for i, x in enumerate(ops) if x == t]
            assert hits, f"tag {t} never issued"
            idx = max(idx, hits[-1])
        if idx < done: return None
        return idx
    def wait(self, vm=(), lg=(), force=False):
        parts = []
        i = self._need(self.vm, self.vm_done, vm) if vm else None
        if i is not None:
            n = len(self.vm) - 1 - i
            n = min(n, 63)
            parts.append(f"vmcnt({n})"); self.vm_done = len(self.vm) - n
        i = self._need(self.lg, self.lg_done, lg) if lg else None
        if i is not None:
            n = len(self.lg) - 1 - i
            n = min(n, 15)
            parts.append(f"lgkmcnt({n})"); self.lg_done = len(self.lg) - n
        if parts: self.lines.append("s_waitcnt " + " ".join(parts))
    def wait_all(self, vm=True, lg=True):
        p = []
        if vm: p.append("vmcnt(0)"); self.vm_done = len(self.vm)
        if lg: p.append("lgkmcnt(0)"); self.lg_done = len(self.lg)
        self.lines.append("s_waitcnt " + " ".join(p))
    def reset(self):
        self.vm, self.lg, self.vm_done, self.lg_done = [], [], 0, 0
    def mark(self): return len(self.lines)
    def text(self): return "\n".join(self.lines) + "\n"

def roll(a, marks, label, sreg):
    blocks = [a.lines[marks[i]:marks[i+1]] for i in range(len(marks)-1)]
    best = (0, 1); i = 0
    while i < len(blocks):
        j = i
        while j + 1 < len(blocks) and blocks[j+1] == blocks[i]: j += 1
        if j - i + 1 > best[1]: best = (i, j - i + 1)
        i = j + 1
    st, n = best
    if n < 2: return (st, 1)
    out = a.lines[:marks[st]]
    out.append(f"s_mov_b32 {sreg}, {n}")
    out.append(".p2align 3" if False else "")
    out.append(f"{label}:")
    body = list(blocks[st])
    body += [f"s_sub_u32 {sreg}, {sreg}, 1", f"s_cmp_lg_u32 {sreg}, 0", f"s_cbranch_scc1 {label}"]
    out += body
    out += a.lines[marks[st+n]:]
    a.lines = [l for l in out if l]
    return (st, n)

def srd(a, r, lo, hi, nbytes):
    a(f"s_mov_b32 s{r}, {lo}\ns_mov_b32 s{r+1}, {hi}\ns_mov_b32 s{r+2}, {nbytes}\ns_mov_b32 s{r+3}, 0x20000")

def kernel_head(name):
    return f".globl {name}\n.p2align 8\n.type {name},@function\n{name}:\n"
def kernel_desc(name, nvgpr, accum, nsgpr=102):
    return f""".p2align 6
.amdhsa_kernel {name}
  .amdhsa_next_free_vgpr {nvgpr}
  .amdhsa_next_free_sgpr {nsgpr}
  .amdhsa_accum_offset {accum}
  .amdhsa_group_segment_fixed_size 0
  .amdhsa_kernarg_size 88
  .amdhsa_user_sgpr_count 2
  .amdhsa_user_sgpr_kernarg_segment_ptr 1
  .amdhsa_system_sgpr_workgroup_id_x 1
.end_amdhsa_kernel
"""
```

```python
from asmlib import *
WS_XN, WS_O, WS_HC, WS_HH = 0, 4<<20, 8<<20, 12<<20
WS_SS   = 32<<20
WS_M1   = WS_SS + (128<<10)
WS_M2   = WS_M1 + (8<<10)
WS_WBAR = WS_M2 + (8<<10)
WS_FLAG = WS_WBAR + (8<<10)
WS_MD   = WS_FLAG + (8<<10)
WS_KVP  = 34<<20
WS_ZP   = 38<<20
WS_KVT  = WS_ZP + (128<<10)
WS_STAMP = 40<<20
def stamp(a, idx):
    a(f"s_memrealtime s[{64+4*idx}:{65+4*idx}]\ns_memtime s[{66+4*idx}:{67+4*idx}]")
def stamp_out(a, n, kid, wsl, wsh, vt, swave="s20"):
    a("s_waitcnt lgkmcnt(0)")
    a(f"s_add_u32 s56, {wsl}, {WS_STAMP + kid*65536}\ns_addc_u32 s57, {wsh}, 0\ns_mov_b32 s58, 65536\ns_mov_b32 s59, 0x20000")
    a(f"s_lshl_b32 s60, s2, 8\ns_lshl_b32 s61, {swave}, 6\ns_add_u32 s60, s60, s61\nv_mov_b32 v{vt+2}, s60")
    for i in range(n):
        a(f"v_mov_b32 v{vt}, s{64+4*i}\nv_mov_b32 v{vt+1}, s{66+4*i}")
        a(f"buffer_store_dwordx2 v[{vt}:{vt+1}], v{vt+2}, s[56:59], 0 offen offset:{8*i}\ns_waitcnt vmcnt(0)")
def ws_srd(a, r, off, nbytes, lo="s32", hi="s33"):
    a(f"s_add_u32 s{r}, {lo}, {off}\ns_addc_u32 s{r+1}, {hi}, 0\ns_mov_b32 s{r+2}, {nbytes}\ns_mov_b32 s{r+3}, 0x20000")
def assemble(parts, header=""):
    return header + "".join(p[2] for p in parts) + '.amdgcn_target "amdgcn-amd-amdhsa--gfx950"\n.text\n' + "".join(p[0] for p in parts) + '.section .rodata,"a"\n' + "".join(p[1] for p in parts)
def launch_line(name, lds, grid=256, block=256):
    return f"; @launch kernel={name} grid=({grid},1,1) block=({block},1,1) lds={lds}\n"
```

```python
from asmlib import *

class Cfg:
    tok_lds = False
    drain_at_P = False
    CAP = 2
    first_zero = False
    def swap(self, j): return False
    def on_P(self, a, st): pass
    def prologue_mid(self, a): pass
    def extra(self, st): return []

def mainloop(a, c, last_stage=None):
    TB, NB, SPS, NST = c.TB, c.NB, c.SPS, c.NST
    G = 2 * TB
    gps = NB * G
    gpst = SPS * gps
    nsteps = SPS * NST
    nblk = nsteps * NB
    Pg = lambda st: (st + 1) * gpst - c.PBACK if st >= 0 else -10**9
    lq = []
    def mk_w(n, s, rd):
        step, j = divmod(n, NB); st, sis = divmod(step, SPS)
        return lambda: c.wread(a, st, sis, j, s, rd, n % c.WR, ("w", n, s))
    def mk_tl(t, tb, s):
        st, sis = divmod(t, SPS)
        return lambda: c.tokread(a, st, sis, tb, s, t % 2, ("tok", t, tb, s))
    for n in range(nblk):
        step, j = divmod(n, NB); st = step // SPS
        e = max((n - c.LA) * G, Pg(st - 1))
        ws = [(e, mk_w(n, s, rd)) for s in range(2) for rd in range(2)]
        if c.tok_lds and j == 0:
            et = max((step - 1) * gps + c.tok_early, Pg(st - 1))
            tl = [(et, mk_tl(step, tb, (s ^ (tb % 2)))) for tb in range(TB) for s in range(2)]
            lq += ws[:2] + tl[:1] + ws[2:] + tl[1:]
        else: lq += ws
    vq = []
    for st in range(NST):
        ops = []
        if st + 2 < NST:
            for i in range(c.NDMA):
                g = st * gpst + c.dmapos(i)
                assert Pg(st - 1) <= g < Pg(st), (st, i, g)
                for k, fn in enumerate(c.dma(a, st + 2, i)): ops.append((g, len(ops), fn))
        if not c.tok_lds:
            for sis in range(SPS):
                t0 = st * SPS + sis; t = t0 + c.TR - 1
                if t < nsteps:
                    for i in range(G):
                        tb, s = divmod(i, 2)
                        g = t0 * gps + c.tokpos(i)
                        for fn in c.tok(a, t, tb, s): ops.append((g, len(ops), fn))
        for g, fn in c.extra(st): ops.append((st * gpst + g, len(ops), fn))
        ops.sort(key=lambda x: (x[0], x[1]))
        vq += [(g, fn) for g, _, fn in ops]
    def run(fns):
        for k, fn in enumerate(fns):
            fn()
    def dma_all(st):
        for i in range(c.NDMA):
            fns = c.dma(a, st, i)
            for k, fn in enumerate(fns):
                if k == len(fns) - 1 and k > 0 and "m0" in a.lines[-1]: a("s_nop 0")
                fn()
    dma_all(0)
    if not c.tok_lds:
        for t in range(min(SPS, c.TR - 1)):
            for tb in range(TB):
                for s in range(2): run(c.tok(a, t, tb, s))
    dma_all(1)
    if not c.tok_lds:
        for t in range(SPS, c.TR - 1):
            for tb in range(TB):
                for s in range(2): run(c.tok(a, t, tb, s))
    c.prologue_mid(a)
    a.wait(vm=[("dma", 0)])
    a("s_barrier")
    li = 0; vi = 0
    while li < len(lq) and lq[li][0] < 0: lq[li][1](); li += 1
    marks = []
    stats = {"over": 0}
    total = nblk * G
    for g in range(total):
        n, m = divmod(g, G); step, j = divmod(n, NB); st = step // SPS
        if g % (gpst * c.BODY) == 0: marks.append(a.mark())
        if g == Pg(st) and st + 1 < NST:
            assert a.vm.count(("dma", st + 1)) == c.NDMA
            if c.drain_at_P:
                assert lq[li][0] >= g, "reads of the current stage still pending at P"
                a.wait(vm=[("dma", st + 1)], lg=[a.lg[-1]])
            else: a.wait(vm=[("dma", st + 1)])
            a("s_barrier")
            c.on_P(a, st)
        tb = m // 2; s = (m % 2) ^ (tb % 2)
        need_w = [("w", n, 0), ("w", n, 1)] if m == 0 else []
        need_t = [("tok", step, tb, s)] if j == 0 else []
        if not c.tok_lds and need_t: need_t = [("tok", step, x, y) for x in range(TB) for y in range(2)]
        for tag in need_w + (need_t if c.tok_lds else []):
            while tag not in a.lg or (tag[0] == "w" and a.lg.count(tag) < 2):
                assert lq[li][0] <= g, "deadline before earliest"
                lq[li][1](); li += 1; stats["over"] += 1
        if c.tok_lds: a.wait(lg=need_w + need_t)
        else: a.wait(vm=need_t, lg=need_w)
        A_, B_ = c.wreg(n % c.WR, s), c.tokreg(step % (2 if c.tok_lds else c.TR), tb, s)
        if c.swap(j): A_, B_ = B_, A_
        C_ = "0" if (c.first_zero and step == 0 and m % 2 == 0) else c.acc(j, tb)
        a(f"v_mfma_f32_16x16x32_bf16 {c.acc(j, tb)}, {A_}, {B_}, {C_}")
        cap = c.CAP - (1 if (m == G - 1) else 0)
        used = 0
        if li < len(lq) and lq[li][0] <= g and used < cap:
            lq[li][1](); li += 1; used += 1
        if vi < len(vq) and vq[vi][0] <= g and used < cap:
            vq[vi][1](); vi += 1; used += 1
        if c.LDS2 and li < len(lq) and lq[li][0] <= g and used < cap:
            lq[li][1](); li += 1; used += 1
    assert li == len(lq) and vi == len(vq), (li, len(lq), vi, len(vq))
    marks.append(a.mark())
    return marks, stats
```

```python
from common import *
def allreduce64(a, regs, tmp):
    pad = "" if len(regs) >= 3 else f"s_nop {2-len(regs)}\n"
    for mod in ("quad_perm:[1,0,3,2]", "quad_perm:[2,3,0,1]", "row_half_mirror", "row_mirror"):
        a("s_nop 1" if mod.endswith("3,2]") else pad)
        for r in regs: a(f"v_add_f32_dpp v{r}, v{r}, v{r} {mod} row_mask:0xf bank_mask:0xf")
    for op in ("v_permlane16_swap_b32", "v_permlane32_swap_b32"):
        for r, t in zip(regs, tmp): a(f"v_mov_b32 v{t}, v{r}")
        a("s_nop 1")
        for r, t in zip(regs, tmp): a(f"{op} v{r}, v{t}")
        a("s_nop 1")
        for r, t in zip(regs, tmp): a(f"v_add_f32 v{r}, v{r}, v{t}")

def gen_k0(name="k0_kernel", diag=False, o={}):
    a = Asm()
    a(f"s_cmp_ge_u32 s2, 256\ns_cbranch_scc1 L_{name}_done")
    if diag: stamp(a, 0)
    a("s_load_dwordx2 s[28:29], s[0:1], 0\ns_load_dwordx2 s[30:31], s[0:1], 24\ns_load_dwordx2 s[32:33], s[0:1], 80")
    a("v_lshrrev_b32 v1, 6, v0\nv_lshlrev_b32 v3, 4, v0\nv_and_b32 v0, 63, v0\nv_readfirstlane_b32 s20, v1\nv_lshlrev_b32 v2, 4, v0")
    a("s_lshl_b32 s21, s2, 2\ns_add_u32 s21, s21, s20\ns_lshl_b32 s22, s21, 12\ns_lshl_b32 s23, s21, 11")
    a("s_waitcnt lgkmcnt(0)")
    srd(a, 4, "s28", "s29", 4<<20); srd(a, 8, "s30", "s31", 2<<20)
    for i in range(4): a(f"buffer_load_dwordx4 v[{8+4*i}:{11+4*i}], v2, s[4:7], s22 offen offset:{1024*i}")
    for i in range(2): a(f"buffer_load_dwordx4 v[{24+4*i}:{27+4*i}], v2, s[8:11], s23 offen offset:{1024*i}")
    ws_srd(a, 12, WS_XN, 4<<20); ws_srd(a, 16, WS_M1, WS_MD - WS_M1)
    a(f"s_cmp_lg_u32 s2, 0\ns_cbranch_scc1 L_{name}_nz")
    a("v_mov_b32 v4, 0\nv_mov_b32 v5, 0\nv_mov_b32 v6, 0\nv_mov_b32 v7, 0")
    a(f"s_mov_b32 s24, {WS_FLAG - WS_M1}\ns_mov_b32 s25, {WS_FLAG - WS_M1 + 4096}")
    a("buffer_store_dwordx4 v[4:7], v3, s[16:19], s24 offen\nbuffer_store_dwordx4 v[4:7], v3, s[16:19], s25 offen")
    a(f"L_{name}_nz:")
    a("s_waitcnt vmcnt(0)")
    for q in range(3):
        for d in range(8):
            a(f"v_lshlrev_b32 v{32+16*q+2*d}, 16, v{8+8*q+d}\nv_and_b32 v{33+16*q+2*d}, 0xffff0000, v{8+8*q+d}")
    for q in range(3):
        a(f"v_add_f32 v{4+q}, v{32+16*q}, v{33+16*q}")
        for e in range(2, 16): a(f"v_add_f32 v{4+q}, v{4+q}, v{32+16*q+e}")
    allreduce64(a, [4, 5, 6], [8, 9, 10])
    for q in range(3): a(f"v_mul_f32 v{4+q}, 0x3a800000, v{4+q}")
    for q in range(2):
        for e in range(16): a(f"v_sub_f32 v{32+16*q+e}, v{32+16*q+e}, v{4+q}")
        a(f"v_mul_f32 v{12+q}, v{32+16*q}, v{32+16*q}")
        for e in range(1, 16): a(f"v_fmac_f32 v{12+q}, v{32+16*q+e}, v{32+16*q+e}")
    allreduce64(a, [12, 13], [8, 9])
    for q in range(2): a(f"v_mov_b32 v{14+q}, 0x3727c5ac\nv_fmac_f32 v{14+q}, 0x3a800000, v{12+q}\nv_rsq_f32 v{14+q}, v{14+q}")
    a("s_nop 0")
    for q in range(2):
        for e in range(16): a(f"v_mul_f32 v{32+16*q+e}, v{32+16*q+e}, v{14+q}")
        for d in range(8): a(f"v_cvt_pk_bf16_f32 v{16+8*q+d}, v{32+16*q+2*d}, v{33+16*q+2*d}")
        for i in range(2): a(f"buffer_store_dwordx4 v[{16+8*q+4*i}:{19+8*q+4*i}], v2, s[12:15], s22 offen offset:{2048*q+1024*i}")
    a("v_mov_b32 v7, 0\ns_lshl_b32 s24, s21, 3\ns_lshl_b32 s25, s21, 2")
    a(f"s_add_u32 s25, s25, {WS_WBAR - WS_M1}")
    a("s_mov_b64 exec, 1")
    a("buffer_store_dwordx2 v[4:5], v7, s[16:19], s24 offen\nbuffer_store_dword v6, v7, s[16:19], s25 offen")
    a("s_mov_b64 exec, -1")
    if diag:
        a("s_waitcnt vmcnt(0)"); stamp(a, 1); stamp_out(a, 2, 0, "s32", "s33", 8)
    a(f"L_{name}_done:\ns_endpgm")
    return kernel_head(name) + a.text(), kernel_desc(name, 80, 80), launch_line(name, 0), None
```

```python
from common import *
import gemm16
SLOT = 40960
L_WPHI = 3*SLOT
L_PH = SLOT
L_VB = SLOT + 32768
L_ZB = L_VB + 16384
LOG2E = "0x3fb8aa3b"

def rs4(a, r, op):
    a(f"s_nop 1\nv_permlane16_swap_b32 v{r}, v{r+1}\nv_permlane16_swap_b32 v{r+2}, v{r+3}\ns_nop 0")
    a(f"{op} v{r}, v{r}, v{r+1}\n{op} v{r+2}, v{r+2}, v{r+3}\ns_nop 1\nv_permlane32_swap_b32 v{r}, v{r+2}\ns_nop 0\n{op} v{r}, v{r}, v{r+2}")
def bc4(a, r):
    a(f"v_mov_b32 v{r+2}, v{r}\ns_nop 1\nv_permlane32_swap_b32 v{r}, v{r+2}\ns_nop 0\nv_mov_b32 v{r+1}, v{r}\nv_mov_b32 v{r+3}, v{r+2}\ns_nop 1")
    a(f"v_permlane16_swap_b32 v{r}, v{r+1}\nv_permlane16_swap_b32 v{r+2}, v{r+3}")

def gen_k1(name="k1_kernel", diag=False, o={}):
    a = Asm()
    a(f"s_cmp_ge_u32 s2, 256\ns_cbranch_scc1 L_{name}_done")
    if diag: stamp(a, 0)
    a("s_load_dwordx4 s[28:31], s[0:1], 8\ns_load_dwordx2 s[32:33], s[0:1], 80")
    a("v_lshrrev_b32 v1, 6, v0\nv_lshlrev_b32 v31, 2, v0\nv_and_b32 v0, 63, v0\nv_readfirstlane_b32 s20, v1")
    a("s_and_b32 s26, s2, 1\ns_lshl_b32 s26, s26, 3\ns_bfe_u32 s27, s2, 0x30003\ns_add_u32 s26, s26, s27")
    a("s_bfe_u32 s25, s2, 0x20001\ns_lshl_b32 s25, s25, 2\ns_lshr_b32 s27, s2, 6\ns_add_u32 s25, s25, s27")
    a("s_and_b32 s46, s20, 1\ns_lshr_b32 s47, s20, 1")
    a("v_lshrrev_b32 v16, 4, v0\nv_and_b32 v17, 7, v0\nv_xor_b32 v16, v16, v17\nv_lshlrev_b32 v16, 4, v16\nv_lshrrev_b32 v18, 3, v0")
    a("v_lshl_add_u32 v2, v18, 11, v16\nv_xor_b32 v3, 64, v2")
    a(f"v_add_u32 v4, {16*2048 - 2048}, v2\nv_add_u32 v5, {24*2048 - 3072}, v3\nv_add_u32 v3, {8*2048 - 1024}, v3")
    a("v_lshrrev_b32 v16, 4, v0\nv_lshlrev_b32 v16, 1, v16\nv_xor_b32 v16, v16, v17\nv_lshlrev_b32 v16, 4, v16")
    a("v_lshrrev_b32 v18, 5, v0\nv_lshlrev_b32 v18, 3, v18\nv_bfe_u32 v19, v0, 3, 2\nv_add_u32 v18, v18, v19\nv_mul_u32_u24 v18, 6144, v18\nv_add_u32 v6, v18, v16")
    wimm = lambda part, i: (part*2048 + i*1024) % 4096
    for part in range(3):
        for i in range(2):
            if part or i: a(f"v_add_u32 v{6+2*part+i}, {16*i*6144 + part*2048 - wimm(part, i)}, v6")
    a("v_and_b32 v16, 15, v0\nv_bfe_u32 v17, v0, 1, 3\nv_lshrrev_b32 v18, 4, v0\nv_xor_b32 v17, v17, v18\nv_lshlrev_b32 v17, 4, v17\nv_lshl_add_u32 v12, v16, 7, v17")
    a("s_mul_i32 s27, s46, 20480\nv_add_u32 v12, s27, v12\nv_xor_b32 v13, 64, v12")
    a("v_lshrrev_b32 v16, 2, v0\nv_lshlrev_b32 v16, 7, v16\nv_bfe_u32 v17, v0, 3, 2\nv_lshlrev_b32 v17, 5, v17\nv_and_b32 v18, 3, v0\nv_lshlrev_b32 v18, 3, v18\nv_add3_u32 v14, v16, v17, v18")
    a("s_lshl_b32 s27, s47, 6\nv_xor_b32 v14, s27, v14\nv_xor_b32 v15, 32, v14")
    a("v_lshlrev_b32 v30, 4, v0")
    a("s_waitcnt lgkmcnt(0)")
    srd(a, 4, "s28", "s29", 1024*6144)
    ws_srd(a, 8, WS_XN, 4<<20)
    srd(a, 12, "s30", "s31", 65536)
    a("s_lshl_b32 s21, s26, 18\ns_lshl_b32 s27, s20, 16\ns_add_u32 s21, s21, s27")
    a("s_lshl_b32 s27, s47, 5\ns_lshl_b32 s22, s46, 2\ns_add_u32 s22, s22, s27\ns_mul_i32 s22, s22, 6144\ns_lshl_b32 s27, s25, 7\ns_add_u32 s22, s22, s27")
    a("s_mul_i32 s45, s20, 10240\ns_mov_b32 s23, s45\ns_mov_b32 s44, 0")
    a(f"s_lshl_b32 s27, s20, 10\ns_add_u32 m0, s27, {L_WPHI}\ns_lshl_b32 s35, s25, 12\ns_add_u32 s27, s27, s35")
    a.vmem("buffer_load_dwordx4 v30, s[12:15], s27 offen lds", ("wphi",))
    c = gemm16.Cfg()
    c.TB, c.NB, c.SPS, c.NST, c.NDMA = 4, 6, 1, 16, 10
    c.tok_lds = True; c.drain_at_P = True; c.tok_early = 0
    c.BODY = 2; c.LA, c.WR = 2, 3; c.PBACK = 16; c.LDS2 = False
    c.acc = lambda j, tb: f"v[{32+4*(4*j+tb)}:{35+4*(4*j+tb)}]"
    c.tokreg = lambda sl, tb, s: f"a[{24+32*sl+8*tb+4*s}:{24+32*sl+8*tb+4*s+3}]"
    c.wreg = lambda sl, s: f"a[{8*sl+4*s}:{8*sl+4*s+3}]"
    c.swap = lambda j: j >= 4
    def dma(a, st, i):
        f = []
        if i == 0:
            if st in (1, 2): f.append(lambda: a(f"s_add_u32 s23, s23, {SLOT}"))
            if st > 0: f.append(lambda: a("s_add_u32 s21, s21, 128"))
            f.append(lambda: a("s_mov_b32 m0, s23"))
        if i == 4:
            if st > 0: f.append(lambda: a(f"s_add_u32 s22, s22, {64*6144}"))
            f.append(lambda: a("s_add_u32 m0, s23, 4096"))
        if i == 8: f.append(lambda: a("s_add_u32 m0, s23, 8192"))
        if i < 4: f.append(lambda: a.vmem(f"buffer_load_dwordx4 v{2+i}, s[8:11], s21 offen offset:{1024*i} lds", ("dma", st)))
        else: f.append(lambda: a.vmem(f"buffer_load_dwordx4 v{2+i}, s[4:7], s22 offen offset:{wimm((i-4)//2, i%2)} lds", ("dma", st)))
        return f
    c.dma = dma
    def wread(a, st, sis, j, s, rd, sl, tag):
        lo = 8*sl + 4*s + 2*rd
        a.lds(f"ds_read_b64_tr_b16 a[{lo}:{lo+1}], v{14+j%2} offset:{(2*s+rd)*10240 + 4096 + (j//2)*2048}", tag)
    c.wread = wread
    def tokread(a, st, sis, tb, s, sl, tag):
        a.lds(f"ds_read_b128 {c.tokreg(sl, tb, s)}, v{12+s} offset:{(tb//2)*10240 + (tb%2)*2048}", tag)
    c.tokread = tokread
    c.dmapos = lambda i: [0, 3, 5, 7, 8, 12, 14, 16, 17, 21][i]
    def extra(st):
        if st == c.NST - 1: return []
        def chk(s):
            def f():
                assert a.lg.count(("w", st*6+5, 1)) == 2 and ("w", st*6+6, 0) not in a.lg and (st + 2 >= c.NST or a.vm.count(("dma", st+2)) == 10)
                a(s)
            return f
        ex = [(24, lambda: a(f"s_cmp_eq_u32 s44, {2*SLOT}")), (24, lambda: a(f"s_cselect_b32 s43, s42, s41"))]
        ex += [(28, chk(f"v_add_u32 v{12+r}, s43, v{12+r}")) for r in range(4)]
        return ex
    c.extra = extra
    def on_P(a, st):
        a("s_add_u32 s23, s44, s45\ns_add_u32 s44, s44, s43")
    c.on_P = on_P
    def pro_mid(a):
        a(f"s_mov_b32 s41, {SLOT}\ns_mov_b32 s42, {-2*SLOT & 0xffffffff}")
        for r in range(32, 128): a(f"v_mov_b32 v{r}, 0")
        for r in range(136, 140): a(f"v_mov_b32 v{r}, 0x3f803f80")
        ws_srd(a, 16, WS_SS, WS_STAMP - WS_SS)
        ws_srd(a, 36, WS_O, 4<<20)
        a(f"s_lshl_b32 s27, s25, 1\ns_add_u32 s48, s27, s47\ns_lshl_b32 s27, s48, 7\ns_add_u32 s27, s27, {WS_WBAR - WS_SS}\nv_and_b32 v16, 48, v0")
        a.vmem("buffer_load_dwordx4 v[244:247], v16, s[16:19], s27 offen", ("wbar",))
        a.vmem("buffer_load_dwordx4 v[248:251], v16, s[16:19], s27 offen offset:64", ("wbar",))
        if diag: stamp(a, 3); a("s_waitcnt lgkmcnt(0)")
    c.prologue_mid = pro_mid
    marks, stats = gemm16.mainloop(a, c)
    rolled = roll(a, marks, f"L_{name}_loop", "s24")
    if diag: stamp(a, 1)
    WP, ONES, F, P, MX, MN, EF = 128, 136, 140, 156, 188, 192, 196
    S = lambda sg, tb: (140 if sg == 0 else 228) + 4*tb
    mf = lambda d, A_, B_, C_: a(f"v_mfma_f32_16x16x32_bf16 v[{d}:{d+3}], v[{A_}:{A_+3}], v[{B_}:{B_+3}], {C_ if C_ == '0' else f'v[{C_}:{C_+3}]'}")
    a(f"v_lshrrev_b32 v16, 2, v0\nv_lshlrev_b32 v16, 6, v16\nv_and_b32 v17, 3, v0\nv_lshl_add_u32 v16, v17, 3, v16\ns_lshl_b32 s27, s47, 11\ns_add_u32 s27, s27, {L_WPHI}\nv_add_u32 v16, s27, v16")
    for fb in range(2):
        for rd in range(2): a(f"ds_read_b64_tr_b16 v[{WP+4*fb+2*rd}:{WP+4*fb+2*rd+1}], v16 offset:{1024*rd + 32*fb}")
    a(f"s_mov_b32 s40, {LOG2E}")
    def feat1(b):
        for tb in range(4):
            for d in range(4): a(f"v_cvt_pk_bf16_f32 v{F+4*tb+d}, v{b+16*(d//2)+4*tb+2*(d%2)}, v{b+16*(d//2)+4*tb+2*(d%2)+1}")
        a("s_waitcnt lgkmcnt(0)\ns_nop 0")
        for tb in range(4):
            for fb in range(2): mf(P + 8*tb + 4*fb, WP + 4*fb, F + 4*tb, "0")
        a("s_nop 3")
        for tb in range(4):
            p = P + 8*tb
            if tb == 3: a("s_nop 0")
            for dst, op3, op2 in ((MX+tb, "v_max3_f32", "v_max_f32"), (MN+tb, "v_min3_f32", "v_min_f32")):
                a(f"{op3} v{dst}, v{p}, v{p+1}, v{p+2}\n{op3} v{dst}, v{dst}, v{p+3}, v{p+4}\n{op3} v{dst}, v{dst}, v{p+5}, v{p+6}\n{op2} v{dst}, v{dst}, v{p+7}")
        rs4(a, MX, "v_max_f32"); rs4(a, MN, "v_min_f32")
        a(f"v_mul_f32 v{MX}, s40, v{MX}\nv_mul_f32 v{MN}, s40, v{MN}")
        bc4(a, MX); bc4(a, MN)
    def feat2(b):
        for tb in range(4):
            for e in range(8): a(f"v_fma_f32 v{b+8*tb+e}, v{P+8*tb+e}, s40, -v{MX+tb}")
            for e in range(8): a(f"v_fma_f32 v{P+8*tb+e}, -v{P+8*tb+e}, s40, v{MN+tb}")
            for e in range(8): a(f"v_exp_f32 v{b+8*tb+e}, v{b+8*tb+e}")
            for e in range(8): a(f"v_exp_f32 v{P+8*tb+e}, v{P+8*tb+e}")
            for sg, src in ((0, b), (1, P)):
                for d in range(4): a(f"v_cvt_pk_bf16_f32 v{EF+16*sg+4*tb+d}, v{src+8*tb+2*d}, v{src+8*tb+2*d+1}")
        a("s_nop 1")
        for tb in range(4):
            for sg in range(2): mf(S(sg, tb), ONES, EF + 16*sg + 4*tb, "0")
    def scale_pack(b, sc):
        for tb in range(4):
            for sg, src in ((0, b), (1, P)):
                for e in range(8): a(f"v_mul_f32 v{src+8*tb+e}, v{src+8*tb+e}, v{sc(sg, tb)}")
                for d in range(4): a(f"v_cvt_pk_bf16_f32 v{EF+16*sg+4*tb+d}, v{src+8*tb+2*d}, v{src+8*tb+2*d+1}")
    feat1(64); feat2(64)
    a("v_bfe_u32 v16, v0, 1, 2\nv_lshlrev_b32 v16, 2, v16\nv_and_b32 v17, 1, v0\nv_bfe_u32 v18, v0, 3, 1\nv_lshlrev_b32 v18, 1, v18\nv_or3_b32 v16, v16, v17, v18")
    a("v_lshrrev_b32 v17, 4, v0\nv_xor_b32 v16, v16, v17\nv_lshlrev_b32 v16, 3, v16\nv_and_b32 v17, 15, v0\nv_lshl_add_u32 v20, v17, 7, v16")
    a(f"s_lshl_b32 s27, s47, 14\ns_lshl_b32 s35, s46, 13\ns_add_u32 s27, s27, s35\ns_add_u32 s27, s27, {L_PH}\nv_add_u32 v20, s27, v20")
    for q in range(1, 4): a(f"v_xor_b32 v{20+q}, {32*q}, v20")
    for sg in range(2):
        for tb in range(4): a(f"v_rcp_f32 v{S(sg, tb)}, v{S(sg, tb)}")
    a("s_nop 0")
    scale_pack(64, S)
    for tb in range(4):
        for sg in range(2):
            for fb in range(2): a(f"ds_write_b64 v{20+2*sg+fb}, v[{EF+16*sg+4*tb+2*fb}:{EF+16*sg+4*tb+2*fb+1}] offset:{2048*tb}")
    VF, VG, AF, KV, Z = 64, 80, 156, 96, 112
    for db in range(2):
        for ks in range(2):
            for d in range(4):
                r = 96 + 16*db + 4*(2*ks + d//2) + 2*(d % 2)
                a(f"v_cvt_pk_bf16_f32 v{VF+8*db+4*ks+d}, v{r}, v{r+1}")
    a(f"s_lshl_b32 s27, s20, 12\ns_add_u32 s27, s27, {L_VB}\nv_add_u32 v24, s27, v30\nv_xor_b32 v25, 4096, v24")
    for i in range(4): a(f"ds_write_b128 v24, v[{VF+4*i}:{VF+4*i+3}] offset:{1024*i}")
    a("v_bfe_u32 v16, v0, 3, 2\nv_lshlrev_b32 v16, 2, v16\nv_bfe_u32 v17, v0, 2, 1\nv_lshrrev_b32 v18, 5, v0\nv_lshlrev_b32 v18, 1, v18\nv_or3_b32 v16, v16, v17, v18")
    a("v_and_b32 v17, 3, v0\nv_xor_b32 v16, v16, v17\nv_lshlrev_b32 v16, 3, v16\nv_lshrrev_b32 v17, 2, v0\nv_lshl_add_u32 v26, v17, 7, v16")
    a(f"s_lshl_b32 s27, s46, 6\nv_xor_b32 v26, s27, v26\ns_lshl_b32 s27, s47, 14\ns_add_u32 s27, s27, {L_PH}\ns_add_u32 s34, s27, s35\ns_xor_b32 s35, s35, 8192\ns_add_u32 s35, s27, s35")
    a("v_add_u32 v28, s35, v26\nv_add_u32 v26, s34, v26\nv_xor_b32 v27, 32, v26\nv_xor_b32 v29, 32, v28")
    a("s_waitcnt lgkmcnt(0)\ns_barrier")
    for who in range(2):
        for fb in range(2):
            for ks in range(2):
                for rd in range(2):
                    r = AF + 16*who + 8*fb + 4*ks + 2*rd
                    a(f"ds_read_b64_tr_b16 v[{r}:{r+1}], v{26+2*who+fb} offset:{(32*ks + 16*rd)*128}")
        if who == 0:
            for i in range(4): a(f"ds_read_b128 v[{VG+4*i}:{VG+4*i+3}], v25 offset:{1024*i}")
    for who in range(2):
        a(f"s_waitcnt lgkmcnt({12 if who == 0 else 0})")
        for fb in range(2):
            for db in range(3):
                for ks in range(2):
                    d = KV + 8*fb + 4*db if db < 2 else Z + 4*fb
                    B_ = (VF if who == 0 else VG) + 8*db + 4*ks if db < 2 else ONES
                    mf(d, AF + 16*who + 8*fb + 4*ks, B_, "0" if (who == 0 and ks == 0) else d)
    a(f"s_lshl_b32 s27, s25, 4\ns_add_u32 s27, s27, s26\ns_lshl_b32 s34, s27, 14\ns_lshl_b32 s35, s20, 12\ns_add_u32 s34, s34, s35\ns_add_u32 s34, s34, {WS_KVP - WS_SS}")
    a(f"s_lshl_b32 s35, s27, 9\ns_lshl_b32 s27, s20, 7\ns_add_u32 s35, s35, s27\ns_add_u32 s35, s35, {WS_ZP - WS_SS}\nv_and_b32 v16, 48, v0")
    a("s_nop 1")
    for i in range(4): a(f"buffer_store_dwordx4 v[{KV+4*i}:{KV+4*i+3}], v30, s[16:19], s34 offen offset:{1024*i} sc1")
    a("s_mov_b32 exec_lo, 0x00010001\ns_mov_b32 exec_hi, 0x00010001")
    for fb in range(2): a(f"buffer_store_dwordx4 v[{Z+4*fb}:{Z+4*fb+3}], v16, s[16:19], s35 offen offset:{64*fb} sc1")
    a("s_mov_b64 exec, -1")
    if diag: stamp(a, 4)
    a(f"s_lshl_b32 s50, s25, 8\ns_add_u32 s50, s50, {WS_FLAG - WS_SS}\ns_lshl_b32 s27, s26, 4\ns_lshl_b32 s49, s20, 2\ns_add_u32 s49, s49, s27\ns_add_u32 s49, s49, s50")
    a("v_mov_b32 v17, 0\nv_mov_b32 v18, 1\nv_lshlrev_b32 v19, 2, v0")
    def signal():
        a("s_waitcnt vmcnt(0)\ns_mov_b64 exec, 1\nbuffer_store_dword v18, v17, s[16:19], s49 offen sc1\ns_mov_b64 exec, -1\ns_add_u32 s49, s49, 4096")
    def poll(k):
        a(f"s_mov_b32 s27, 0x4000\nL_{name}_poll{k}:\nbuffer_load_dword v20, v19, s[16:19], s50 offen sc1\ns_waitcnt vmcnt(0)")
        a(f"v_cmp_ne_u32 vcc, 1, v20\ns_sub_u32 s27, s27, 1\ns_cbranch_vccz L_{name}_got{k}\ns_cmp_lg_u32 s27, 0\ns_cbranch_scc1 L_{name}_poll{k}\nL_{name}_got{k}:")
        a("s_add_u32 s50, s50, 4096")
    feat1(32)
    signal()
    feat2(32)
    poll(1)
    if diag: stamp(a, 5)
    a(f"s_lshl_b32 s34, s25, 18\ns_lshl_b32 s27, s26, 10\ns_add_u32 s34, s34, s27\ns_add_u32 s34, s34, {WS_KVP - WS_SS}")
    a(f"s_lshl_b32 s35, s25, 13\ns_lshl_b32 s27, s47, 8\ns_add_u32 s35, s35, s27\ns_add_u32 s35, s35, {WS_ZP - WS_SS}")
    for i in range(16):
        a(f"buffer_load_dword v{64+i}, v31, s[16:19], s34 offen sc1")
        if i < 15: a("s_add_u32 s34, s34, 16384")
    for i in range(16):
        a(f"buffer_load_dword v{80+i}, v19, s[16:19], s35 offen offset:{512*(i%8)} sc1")
        if i == 7: a("s_add_u32 s35, s35, 4096")
    a(f"s_lshl_b32 s34, s25, 14\ns_add_u32 s34, s34, {WS_KVT - WS_SS}\ns_lshl_b32 s27, s26, 10\ns_add_u32 s35, s34, s27")
    a("s_waitcnt vmcnt(16)")
    def tree(b):
        for st_ in (8, 4, 2, 1):
            for i in range(st_): a(f"v_add_f32 v{b+i}, v{b+i}, v{b+i+st_}")
    tree(64)
    a("buffer_store_dword v64, v31, s[16:19], s35 offen sc1")
    a("s_waitcnt vmcnt(1)")
    tree(80)
    a(f"s_lshl_b32 s27, s20, 8\ns_add_u32 s27, s27, {L_ZB}\nv_add_u32 v21, s27, v19\nv_add_u32 v22, s27, v16\nds_write_b32 v21, v80")
    signal()
    a("s_waitcnt lgkmcnt(0)")
    for q in range(4): a(f"ds_read_b128 v[{64+4*q}:{67+4*q}], v22 offset:{64*q}")
    a("s_waitcnt lgkmcnt(0)")
    ZF, ZQ = 80, 96
    for d in range(8): a(f"v_cvt_pk_bf16_f32 v{ZF+d}, v{64+2*d}, v{65+2*d}")
    a("s_nop 1")
    for tb in range(4):
        for sg in range(2): mf(ZQ + 16*sg + 4*tb, ZF + 4*sg, EF + 16*sg + 4*tb, "0")
    a("s_nop 7\ns_mov_b32 s27, 0x358637bd")
    for tb in range(4):
        a(f"v_fma_f32 v{ZQ+4*tb}, v{S(0,tb)}, s27, v{ZQ+4*tb}\nv_mul_f32 v{ZQ+4*tb}, v{ZQ+4*tb}, v{S(1,tb)}\nv_fmac_f32 v{ZQ+4*tb}, v{ZQ+16+4*tb}, v{S(0,tb)}")
        a(f"v_rcp_f32 v{ZQ+4*tb}, v{ZQ+4*tb}")
    a("s_nop 0")
    for tb in range(4): a(f"v_mul_f32 v{64+tb}, v{ZQ+4*tb}, v{S(1,tb)}\nv_mul_f32 v{68+tb}, v{ZQ+4*tb}, v{S(0,tb)}")
    scale_pack(32, lambda sg, tb: 64 + 4*sg + tb)
    poll(2)
    if diag: stamp(a, 6)
    a("s_lshl_b32 s27, s47, 13\ns_add_u32 s34, s34, s27\ns_add_u32 s35, s34, 4096")
    for i in range(8): a(f"buffer_load_dwordx4 v[{64+4*i}:{67+4*i}], v30, s[16:19], {'s34' if i < 4 else 's35'} offen offset:{1024*(i%4)} sc1")
    a("s_lshl_b32 s27, s26, 3\ns_lshl_b32 s34, s46, 2\ns_add_u32 s27, s27, s34\ns_lshl_b32 s34, s27, 15\ns_lshl_b32 s35, s48, 10\ns_add_u32 s34, s34, s35")
    a(f"s_lshl_b32 s35, s27, 11\ns_lshl_b32 s27, s48, 6\ns_add_u32 s35, s35, s27\ns_add_u32 s35, s35, {WS_MD - WS_SS}")
    a("v_lshrrev_b32 v21, 4, v0\nv_lshlrev_b32 v21, 11, v21\nv_and_b32 v22, 15, v0\nv_lshl_add_u32 v21, v22, 2, v21")
    KF, O = 96, 32
    for sg in range(2):
        a(f"s_waitcnt vmcnt({4 if sg == 0 else 0})")
        for db in range(2):
            for d in range(4):
                r = 64 + 16*sg + 8*(d//2) + 4*db + 2*(d % 2)
                a(f"v_cvt_pk_bf16_f32 v{KF+8*sg+4*db+d}, v{r}, v{r+1}")
    a("s_nop 1")
    for tb in range(4):
        for db in range(2):
            d = O + 8*tb + 4*db
            mf(d, KF + 4*db, EF + 4*tb, "0"); mf(d, KF + 8 + 4*db, EF + 16 + 4*tb, d)
    for tb in range(4):
        if tb == 3: a("s_nop 0")
        for d in range(4): a(f"v_cvt_pk_bf16_f32 v{64+4*tb+d}, v{O+8*tb+2*d}, v{O+8*tb+2*d+1}")
        a(f"buffer_store_dwordx4 v[{64+4*tb}:{67+4*tb}], v30, s[36:39], s34 offen\ns_add_u32 s34, s34, 32768")
    for tb in range(4):
        a(f"v_mul_f32 v{80+tb}, v{O+8*tb}, v244")
        for e in range(1, 8): a(f"v_fmac_f32 v{80+tb}, v{O+8*tb+e}, v{244+e}")
    rs4(a, 80, "v_add_f32")
    a("buffer_store_dword v80, v21, s[16:19], s35 offen")
    if diag:
        a("s_waitcnt vmcnt(0)"); stamp(a, 2); stamp_out(a, 7, 1, "s32", "s33", 16)
    a(f"L_{name}_done:\ns_endpgm")
    return kernel_head(name) + a.text(), kernel_desc(name, 256 + 88, 256), launch_line(name, 3*SLOT + 4096), (rolled, stats)
if __name__ == "__main__":
    p = gen_k1(diag=True); print(p[3])
    open("k1.s", "w").write(assemble([p]))
```

```python
from common import *
import gemm16

def gen_k24(which, name=None, diag=False, o={}):
    name = name or f"k{which}_kernel"
    K = 1024 if which == 2 else 3584
    natural = which == 4
    a = Asm()
    a(f"s_cmp_ge_u32 s2, 256\ns_cbranch_scc1 L_{name}_done")
    if diag: stamp(a, 0)
    a(f"s_load_dwordx2 s[28:29], s[0:1], {24 if which == 2 else 56}\ns_load_dwordx2 s[30:31], s[0:1], {0 if which == 2 else 64}\ns_load_dwordx2 s[32:33], s[0:1], 80")
    a("v_lshrrev_b32 v1, 6, v0\nv_and_b32 v0, 63, v0\ns_nop 0\nv_readfirstlane_b32 s20, v1")
    a("s_bfe_u32 s26, s2, 0x20001\ns_lshl_b32 s26, s26, 2\ns_bfe_u32 s27, s2, 0x20003\ns_add_u32 s26, s26, s27")
    a("s_and_b32 s25, s2, 1\ns_lshl_b32 s25, s25, 3\ns_lshr_b32 s27, s2, 5\ns_add_u32 s25, s25, s27")
    a("v_bfe_u32 v16, v0, 4, 2\nv_lshlrev_b32 v16, 1, v16\nv_and_b32 v17, 7, v0\nv_xor_b32 v16, v16, v17\nv_lshlrev_b32 v16, 4, v16")
    if natural: a("v_lshrrev_b32 v17, 5, v0\nv_lshlrev_b32 v17, 3, v17\nv_bfe_u32 v18, v0, 3, 2\nv_add_u32 v17, v17, v18")
    else: a("v_lshrrev_b32 v17, 3, v0")
    a("v_lshl_add_u32 v2, v17, 11, v16")
    for i in range(1, 4):
        k0 = (16*(i & 1) + 4*(i >> 1)) if natural else 8*i
        a(f"v_add_u32 v{2+i}, {k0*2048 - 1024*i}, v2")
    a("s_lshl_b32 s34, s26, 3\ns_lshl_b32 s35, s20, 1\ns_add_u32 s34, s34, s35")
    a(f"s_mul_i32 s21, s34, {K*32}")
    a(f"v_lshlrev_b32 v6, 4, v0\nv_add_u32 v7, {K*32}, v6")
    a("v_lshrrev_b32 v16, 2, v0\nv_lshlrev_b32 v16, 7, v16\nv_bfe_u32 v17, v0, 3, 2\nv_lshlrev_b32 v17, 5, v17\nv_and_b32 v18, 3, v0\nv_lshlrev_b32 v18, 3, v18\nv_add3_u32 v8, v16, v17, v18")
    for sg in range(1, 4): a(f"v_xor_b32 v{8+sg}, {32*sg}, v8")
    a("s_waitcnt lgkmcnt(0)")
    srd(a, 4, "s28", "s29", K*2048)
    ws_srd(a, 8, WS_O if which == 2 else WS_HH, 2048*K*2)
    a("s_lshl_b32 s22, s20, 16\ns_lshl_b32 s36, s25, 7\ns_add_u32 s22, s22, s36")
    a("s_lshl_b32 s23, s20, 12")
    c = gemm16.Cfg()
    c.TB, c.NB, c.SPS, c.NST, c.NDMA = 2, 4, 2, K//128, 4
    c.TR = o.get("TR", 4); c.BODY = {4: 2, 8: 4}[c.TR]
    c.LA, c.WR = o.get("LA", 2), 4
    c.PBACK = o.get("PBACK", 8); c.LDS2 = False
    c.acc = lambda j, tb: f"v[{32+4*(2*j+tb)}:{35+4*(2*j+tb)}]"
    c.tokreg = lambda sl, tb, s: f"a[{32+16*sl+8*tb+4*s}:{32+16*sl+8*tb+4*s+3}]"
    c.wreg = lambda sl, s: f"a[{8*sl+4*s}:{8*sl+4*s+3}]"
    wfl = o.get("wflags", "")
    def dma(a, st, i):
        f = []
        if i == 0 and st >= 2 and st % 2 == 0: f.append(lambda: a("s_xor_b32 s23, s23, 0x8000"))
        if i == 0 and st > 0: f.append(lambda: a(f"s_add_u32 s22, s22, {128*2048}"))
        if i == 0: f.append(lambda: a(f"s_add_u32 m0, s23, {(st%2)*16384}"))
        f.append(lambda: a.vmem(f"buffer_load_dwordx4 v{2+i}, s[4:7], s22 offen offset:{1024*i} {wfl} lds", ("dma", st)))
        return f
    c.dma = dma
    def tok(a, t, tb, s):
        f = []
        if t % 2 == 0 and tb == 0 and s == 0 and t > 0: f.append(lambda: a("s_add_u32 s21, s21, 4096"))
        f.append(lambda: a.vmem(f"buffer_load_dwordx4 {c.tokreg(t % c.TR, tb, s)}, v{6+tb}, s[8:11], s21 offen offset:{1024*((2*t+s)%4)}", ("tok", t, tb, s)))
        return f
    c.tok = tok
    def wread(a, st, sis, j, s, rd, sl, tag):
        lo = 8*sl + 4*s + 2*rd
        a.lds(f"ds_read_b64_tr_b16 a[{lo}:{lo+1}], v{8+j} offset:{(st%2)*16384 + (64*sis + 32*s + 16*rd)*128}", tag)
    c.wread = wread
    def on_P(a, st):
        if st % 2 == 1:
            for sg in range(4): a(f"v_xor_b32 v{8+sg}, 0x8000, v{8+sg}")
    c.on_P = on_P
    c.tokpos = lambda i: 4*i
    c.dmapos = lambda i: 1 + 5*i
    def pro_mid(a):
        for r in range(32, 64): a(f"v_mov_b32 v{r}, 0")
        srd(a, 12, "s30", "s31", 4<<20)
        ws_srd(a, 16, WS_HC, 4<<20)
        ws_srd(a, 40, WS_SS, WS_KVP - WS_SS)
        a("v_and_b32 v16, 15, v0\nv_lshlrev_b32 v16, 11, v16\nv_bfe_u32 v17, v0, 4, 1\nv_lshlrev_b32 v17, 5, v17\nv_lshrrev_b32 v18, 5, v0\nv_lshlrev_b32 v18, 4, v18\nv_add3_u32 v12, v16, v17, v18")
        a("v_add_u32 v13, 32768, v12\ns_lshl_b32 s37, s34, 15\ns_lshl_b32 s36, s25, 7\ns_add_u32 s37, s37, s36")
        a("s_lshl_b32 s38, s34, 15\ns_lshl_b32 s36, s25, 11\ns_add_u32 s38, s38, s36\nv_add_u32 v15, 32768, v6")
        a("v_and_b32 v14, 31, v0\nv_lshlrev_b32 v14, 2, v14\ns_lshl_b32 s39, s34, 6")
        if diag: stamp(a, 3); a("s_waitcnt lgkmcnt(0)")
    c.prologue_mid = pro_mid
    side = []
    if which == 2:
        for tb in range(2):
            for u in range(2): side.append(f"buffer_load_dwordx4 v[{64+8*tb+4*u}:{67+8*tb+4*u}], v{12+tb}, s[12:15], s37 offen offset:{64*u}")
        side.append(f"!s_add_u32 s44, s39, {WS_M1 - WS_SS}")
        side.append("buffer_load_dword v96, v14, s[40:43], s44 offen")
        side.append(f"!s_lshl_b32 s44, s34, 11")
        side.append(f"!s_add_u32 s44, s44, {WS_MD - WS_SS}")
        side.append(f"!v_lshlrev_b32 v16, 2, v0")
        for i in range(16): side.append(f"buffer_load_dword v{80+i}, v16, s[40:43], s44 offen offset:{256*i}")
    else:
        for tb in range(2):
            for u in range(2): side.append(f"buffer_load_dwordx4 v[{64+8*tb+4*u}:{67+8*tb+4*u}], v{6 if tb == 0 else 15}, s[16:19], s38 offen offset:{1024*u}")
        side.append(f"!s_add_u32 s44, s39, {WS_M2 - WS_SS}")
        side.append("buffer_load_dword v96, v14, s[40:43], s44 offen")
    def extra(st):
        if st != c.NST - 2: return []
        return [(16 + k, (lambda s=s: a(s[1:]) if s[0] == "!" else a.vmem(s, ("side",)))) for k, s in enumerate(side)]
    c.extra = extra
    marks, stats = gemm16.mainloop(a, c)
    rolled = roll(a, marks, f"L_{name}_loop", "s24")
    if diag: stamp(a, 1)
    a.wait_all()
    acc = lambda nb, tb: 32 + 4*(2*nb + tb)
    if which == 2:
        for tb in range(2):
            for i in range(1, 8): a(f"v_add_f32 v{80+8*tb}, v{80+8*tb}, v{80+8*tb+i}")
        a("s_nop 1\nv_permlane16_swap_b32 v80, v88\ns_nop 1\nv_add_f32 v80, v80, v88\nv_mov_b32 v88, v80\ns_nop 1\nv_permlane32_swap_b32 v80, v88\ns_nop 1")
        a("v_add_f32 v80, v80, v88\nv_add_f32 v96, v96, v80")
        a(f"s_cmp_lg_u32 s25, 0\ns_cbranch_scc1 L_{name}_nom\ns_add_u32 s44, s39, {WS_M2 - WS_SS}\nbuffer_store_dword v96, v14, s[40:43], s44 offen\nL_{name}_nom:")
    a("v_mov_b32 v98, v96\nv_mov_b32 v99, v96\ns_nop 1\nv_permlane16_swap_b32 v98, v99")
    if which == 2:
        for tb in range(2):
            for u in range(2):
                x = 64 + 8*tb + 4*u
                a(f"v_permlane16_swap_b32 v{x}, v{x+2}\nv_permlane16_swap_b32 v{x+1}, v{x+3}")
    for tb in range(2):
        for u in range(2):
            x = 64 + 8*tb + 4*u
            for d in range(4):
                r = acc(2*u + d//2, tb) + 2*(d % 2)
                a(f"v_lshlrev_b32 v100, 16, v{x+d}\nv_and_b32 v101, 0xffff0000, v{x+d}")
                op = "v_sub_f32" if which == 2 else "v_add_f32"
                a(f"{op} v{r}, v{r}, v{98+tb}\n{op} v{r+1}, v{r+1}, v{98+tb}\nv_add_f32 v{r}, v{r}, v100\nv_add_f32 v{r+1}, v{r+1}, v101")
                a(f"v_cvt_pk_bf16_f32 v{x+d}, v{r}, v{r+1}")
            if which == 2:
                a(f"buffer_store_dwordx4 v[{x}:{x+3}], v{6 if tb == 0 else 15}, s[16:19], s38 offen offset:{1024*u}")
            else:
                a(f"s_nop 1\nv_permlane16_swap_b32 v{x}, v{x+2}\nv_permlane16_swap_b32 v{x+1}, v{x+3}")
                a(f"buffer_store_dwordx4 v[{x}:{x+3}], v{12+tb}, s[12:15], s37 offen offset:{64*u}")
    if which == 2:
        for tb in range(2):
            rs = [acc(nb, tb) + r for nb in range(4) for r in range(4)]
            a(f"v_mul_f32 v{102+tb}, v{rs[0]}, v{rs[0]}")
            for r in rs[1:]: a(f"v_fmac_f32 v{102+tb}, v{r}, v{r}")
        a("s_nop 1\nv_permlane16_swap_b32 v102, v103\ns_nop 1\nv_add_f32 v102, v102, v103\nv_mov_b32 v103, v102\ns_nop 1\nv_permlane32_swap_b32 v102, v103\ns_nop 1\nv_add_f32 v102, v102, v103")
        a("s_lshl_b32 s44, s25, 13\ns_add_u32 s44, s44, s39\nbuffer_store_dword v102, v14, s[40:43], s44 offen")
    if diag:
        a("s_waitcnt vmcnt(0)"); stamp(a, 2); stamp_out(a, 4, which, "s32", "s33", 16)
    a(f"L_{name}_done:\ns_endpgm")
    return kernel_head(name) + a.text(), kernel_desc(name, 104 + 32 + 16*c.TR, 104), launch_line(name, 65536), (rolled, stats)
if __name__ == "__main__":
    import kk0
    ps = [kk0.gen_k0(diag=True), gen_k24(2, diag=True), gen_k24(4, diag=True)]
    print([p[3] for p in ps])
    open("k24.s", "w").write(assemble(ps))
```

```python
from common import *
import gemm16

def gen_k3(name="k3_kernel", diag=False, o={}):
    a = Asm()
    a(f"s_cmp_ge_u32 s2, 256\ns_cbranch_scc1 L_{name}_done")
    if diag: stamp(a, 0)
    a("s_load_dwordx4 s[28:31], s[0:1], 40\ns_load_dwordx2 s[32:33], s[0:1], 80")
    a("v_lshrrev_b32 v1, 6, v0\nv_and_b32 v0, 63, v0\ns_nop 0\nv_readfirstlane_b32 s20, v1")
    a("s_and_b32 s25, s2, 7\ns_lshr_b32 s26, s2, 3\ns_lshl_b32 s25, s25, 2\ns_and_b32 s27, s26, 3\ns_add_u32 s25, s25, s27\ns_lshr_b32 s26, s26, 2")
    for i in range(7):
        a(f"v_add_u32 v16, {64*i}, v0\nv_mul_u32_u24 v17, 4682, v16\nv_lshrrev_b32 v17, 16, v17")
        a(f"v_mul_u32_u24 v18, 14, v17\nv_sub_u32 v18, v16, v18\nv_mul_u32_u24 v17, 7168, v17\nv_lshlrev_b32 v18, 4, v18")
        a(f"v_add_u32 v{2+i}, v17, v18")
        if i % 4: a(f"v_subrev_u32 v{2+i}, {1024*(i%4)}, v{2+i}")
    a("s_lshl_b32 s34, s26, 4\ns_lshl_b32 s35, s20, 2\ns_add_u32 s34, s34, s35")
    a("s_lshl_b32 s21, s34, 15")
    a("v_lshlrev_b32 v9, 4, v0\nv_add_u32 v10, 32768, v9\nv_add_u32 v11, 65536, v9\nv_add_u32 v12, 98304, v9")
    a("v_lshrrev_b32 v16, 2, v0\nv_mul_u32_u24 v16, 224, v16\nv_and_b32 v17, 3, v0\nv_lshl_add_u32 v13, v17, 3, v16")
    a("s_waitcnt lgkmcnt(0)")
    a("s_bitcmp1_b32 s20, 0\ns_cselect_b32 s4, s30, s28\ns_cselect_b32 s5, s31, s29\ns_mov_b32 s6, 7340032\ns_mov_b32 s7, 0x20000")
    ws_srd(a, 8, WS_HC, 4<<20); ws_srd(a, 12, WS_HH, 2048*3584*2); ws_srd(a, 16, WS_SS, 16*2048*4)
    a("s_lshr_b32 s35, s20, 1\ns_mul_i32 s22, s35, 229376\ns_mul_i32 s36, s25, 224\ns_add_u32 s22, s22, s36")
    a("s_and_b32 s36, s20, 1\ns_mul_i32 s36, s36, 14336\ns_mul_i32 s23, s35, 7168\ns_add_u32 s23, s23, s36")
    c = gemm16.Cfg()
    c.TB, c.NB, c.SPS, c.NST, c.NDMA = 4, 14, 1, 16, 7
    c.TR = o.get("TR", 4); c.BODY = {2: 2, 3: 6, 4: 4}[c.TR]
    c.LA, c.WR = o.get("LA", 2), 4
    c.PBACK = o.get("PBACK", 16); c.LDS2 = False
    c.acc = lambda j, tb: f"v[{32+4*(4*j+tb)}:{35+4*(4*j+tb)}]"
    c.tokreg = lambda sl, tb, s: f"a[{32+32*sl+8*tb+4*s}:{32+32*sl+8*tb+4*s+3}]"
    c.wreg = lambda sl, s: f"a[{8*sl+4*s}:{8*sl+4*s+3}]"
    wfl = o.get("wflags", "")
    def dma(a, st, i):
        f = []
        if i == 0 and st >= 2 and st % 2 == 0: f.append(lambda: a("s_xor_b32 s23, s23, 0x10000"))
        if i == 0 and st > 0: f.append(lambda: a(f"s_add_u32 s22, s22, {64*7168}"))
        if i % 4 == 0: f.append(lambda: a(f"s_add_u32 m0, s23, {(st%2)*32768 + i*1024}"))
        f.append(lambda: a.vmem(f"buffer_load_dwordx4 v{2+i}, s[4:7], s22 offen offset:{1024*(i%4)} {wfl} lds", ("dma", st)))
        return f
    c.dma = dma
    def tok(a, t, tb, s):
        f = []
        if t % 2 == 0 and tb == 0 and s == 0 and t > 0: f.append(lambda: a("s_add_u32 s21, s21, 4096"))
        f.append(lambda: a.vmem(f"buffer_load_dwordx4 {c.tokreg(t % c.TR, tb, s)}, v{9+tb}, s[8:11], s21 offen offset:{1024*((2*t+s)%4)}", ("tok", t, tb, s)))
        return f
    c.tok = tok
    def wread(a, st, sis, j, s, rd, sl, tag):
        lo = 8*sl + 4*s + 2*rd
        a.lds(f"ds_read_b64_tr_b16 a[{lo}:{lo+1}], v13 offset:{(st%2)*32768 + (j%2)*14336 + (32*s + 16*rd)*224 + (j//2)*32}", tag)
    c.wread = wread
    c.on_P = lambda a, st: a("v_xor_b32 v13, 0x10000, v13") if st % 2 == 1 else None
    if c.TR == 2:
        c.tokpos = lambda i: 4 + 4*i
        c.dmapos = lambda i: 36 + 8*i
    else:
        c.tokpos = lambda i: 4 + 14*i - (14*i) % 8 + (0 if True else 0)
        c.dmapos = lambda i: 6 + 13*i - (13*i) % 8
    def pro_mid(a):
        a("s_lshl_b32 s35, s34, 6\nv_lshlrev_b32 v14, 2, v0")
        for i in range(16):
            a.vmem(f"buffer_load_dword v{16+i}, v14, s[16:19], s35 offen", ("ss",))
            if i < 15: a("s_add_u32 s35, s35, 8192")
        for r in range(32, 256): a(f"v_mov_b32 v{r}, 0")
        if diag: stamp(a, 3); a("s_waitcnt lgkmcnt(0)")
    c.prologue_mid = pro_mid
    marks, stats = gemm16.mainloop(a, c)
    rolled = roll(a, marks, f"L_{name}_loop", "s24")
    if diag: stamp(a, 1)
    a.wait_all()
    for i in range(1, 16): a(f"v_add_f32 v16, v16, v{16+i}")
    a("v_mov_b32 v17, 0x3727c5ac\nv_fmac_f32 v17, 0x3a800000, v16\nv_sqrt_f32 v20, v17\nv_rsq_f32 v16, v17")
    a("s_nop 0\nv_mul_f32 v16, 0xbfb8aa3b, v16")
    for b in (16, 20):
        a(f"v_mov_b32 v{b+2}, v{b}\ns_nop 1\nv_permlane32_swap_b32 v{b}, v{b+2}\ns_nop 1\nv_mov_b32 v{b+1}, v{b}\nv_mov_b32 v{b+3}, v{b+2}\ns_nop 1")
        a(f"v_permlane16_swap_b32 v{b}, v{b+1}\nv_permlane16_swap_b32 v{b+2}, v{b+3}")
    a("v_and_b32 v24, 15, v0\nv_lshlrev_b32 v24, 4, v24\nv_bfe_u32 v25, v0, 4, 1\nv_mul_u32_u24 v25, 114688, v25\nv_lshrrev_b32 v26, 5, v0\nv_lshlrev_b32 v26, 8, v26\nv_add3_u32 v24, v24, v25, v26")
    a("v_add_u32 v25, 229376, v24")
    a("s_mul_i32 s35, s34, 114688\ns_mul_i32 s36, s25, 3584\ns_add_u32 s35, s35, s36")
    for fb in range(7):
        for tp in range(2):
            gs = [32 + 4*(4*(2*fb) + 2*tp + x) for x in range(2)]; us = [32 + 4*(4*(2*fb+1) + 2*tp + x) for x in range(2)]
            R = [(x, r) for x in range(2) for r in range(4)]
            for x, r in R: a(f"v_mul_f32 v{gs[x]+r}, v{16+2*tp+x}, v{gs[x]+r}")
            for x, r in R: a(f"v_exp_f32 v{gs[x]+r}, v{gs[x]+r}")
            for x, r in R: a(f"v_fma_f32 v{gs[x]+r}, v{gs[x]+r}, v{20+2*tp+x}, v{20+2*tp+x}")
            for x, r in R: a(f"v_rcp_f32 v{gs[x]+r}, v{gs[x]+r}")
            for x, r in R: a(f"v_mul_f32 v{gs[x]+r}, v{gs[x]+r}, v{us[x]+r}")
            d = us[0]
            a(f"v_cvt_pk_bf16_f32 v{d}, v{gs[0]}, v{gs[0]+1}\nv_cvt_pk_bf16_f32 v{d+2}, v{gs[1]}, v{gs[1]+1}")
            a(f"v_cvt_pk_bf16_f32 v{d+1}, v{gs[0]+2}, v{gs[0]+3}\nv_cvt_pk_bf16_f32 v{d+3}, v{gs[1]+2}, v{gs[1]+3}")
            a(f"s_nop 0\nv_permlane16_swap_b32 v{d}, v{d+2}\nv_permlane16_swap_b32 v{d+1}, v{d+3}")
            a(f"buffer_store_dwordx4 v[{d}:{d+3}], v{24+tp}, s[12:15], s35 offen offset:{512*fb}")
    if diag:
        a("s_waitcnt vmcnt(0)"); stamp(a, 2); stamp_out(a, 4, 3, "s32", "s33", 14)
    a(f"L_{name}_done:\ns_endpgm")
    return kernel_head(name) + a.text(), kernel_desc(name, 256 + 32 + 32*c.TR, 256), launch_line(name, 131072), (rolled, stats)
if __name__ == "__main__":
    for TR in (2, 4):
        p = gen_k3(diag=True, o={"TR": TR}); print(p[3])
        open("k3.s", "w").write(assemble([p]))
```

```python
import sys
from common import *
import kk0, kk1, kk24, kk3
NAME = "sequential_preLN__linear_kernel_hedgehog__glu_gated_glu__prompt"
def header():
    ref = open(f"cdna_kernels/{NAME}.s.ref").read().split("\n")
    return "\n".join(l for l in ref if l.startswith(";") and "@launch" not in l and "Override" not in l and "grid=ceil" not in l) + "\n"
def build(diag=False, o={}):
    ps = [kk0.gen_k0(diag=diag, o=o.get("k0", {})), kk1.gen_k1(diag=diag, o=o.get("k1", {})), kk24.gen_k24(2, diag=diag, o=o.get("k2", {})),
          kk3.gen_k3(diag=diag, o=o.get("k3", {"TR": 2})), kk24.gen_k24(4, diag=diag, o=o.get("k4", {}))]
    return ps
if __name__ == "__main__":
    out = sys.argv[1] if len(sys.argv) > 1 else f"cdna_kernels/{NAME}.s"
    open(out, "w").write(assemble(build(), header()))
    print("wrote", out)
```

```python
from asmlib import *
import os
WS_O, WS_HC, WS_HH = (0, 26<<20, 0) if os.environ.get('REUSE', '1') == '1' else (0, 4<<20, 8<<20)
WS_SS   = 24<<20
WS_ST1  = WS_SS + (128<<10)
WS_M2   = WS_ST1 + (16<<10)
WS_WB   = WS_M2 + (8<<10)
WS_FLAG = WS_WB + (4<<10)
WS_GF   = WS_FLAG + (4<<10)
WS_CS   = WS_WB + (20<<10)
WS_ZP   = WS_CS + (256<<10)
WS_KVT  = WS_ZP + (128<<10)
WS_KVP  = 26<<20
WS_END  = 30<<20
WS_STAMP = 40<<20
def stamp(a, idx):
    a(f"s_memrealtime s[{64+4*idx}:{65+4*idx}]\ns_memtime s[{66+4*idx}:{67+4*idx}]")
def stamp_out(a, n, kid, wsl, wsh, vt, swave="s20"):
    a(f"s_add_u32 s56, {wsl}, {WS_STAMP + kid*65536}\ns_addc_u32 s57, {wsh}, 0\ns_mov_b32 s58, 65536\ns_mov_b32 s59, 0x20000")
    a(f"s_lshl_b32 s60, s2, 8\ns_lshl_b32 s61, {swave}, 6\ns_add_u32 s60, s60, s61\nv_mov_b32 v{vt}, s60")
    a("s_waitcnt lgkmcnt(0)\ns_mov_b64 exec, 1")
    for i in range(n): a(f"v_mov_b32 v{32+2*i}, s{64+4*i}\nv_mov_b32 v{33+2*i}, s{66+4*i}")
    for i in range(0, n, 2): a(f"buffer_store_dwordx4 v[{32+2*i}:{35+2*i}], v{vt}, s[56:59], 0 offen offset:{8*i}")
def ws_srd(a, r, off, nbytes, lo="s32", hi="s33"):
    a(f"s_add_u32 s{r}, {lo}, {off}\ns_addc_u32 s{r+1}, {hi}, 0\ns_mov_b32 s{r+2}, {nbytes}\ns_mov_b32 s{r+3}, 0x20000")
def assemble(parts, header=""):
    return header + "".join(p[2] for p in parts) + '.amdgcn_target "amdgcn-amd-amdhsa--gfx950"\n.text\n' + "".join(p[0] for p in parts) + '.section .rodata,"a"\n' + "".join(p[1] for p in parts)
def launch_line(name, lds, grid=256, block=256):
    return f"; @launch kernel={name} grid=({grid},1,1) block=({block},1,1) lds={lds}\n"

def touch_gu_setup(a, sr, vr, R=16, R0=0, karg="s[0:1]"):
    a(f"s_and_b32 s{sr+4}, s20, 1\ns_lshl_b32 s{sr+4}, s{sr+4}, 3\ns_add_u32 s{sr+4}, s{sr+4}, 40")
    a(f"s_load_dwordx2 s[{sr}:{sr+1}], {karg}, s{sr+4}")
    a(f"s_lshr_b32 s{sr+4}, s2, 3\ns_lshl_b32 s{sr+4}, s{sr+4}, 1\ns_lshr_b32 s{sr+5}, s20, 1\ns_add_u32 s{sr+4}, s{sr+4}, s{sr+5}\ns_mul_i32 s{sr+4}, s{sr+4}, {R*7168}")
    a(f"s_and_b32 s{sr+5}, s2, 7\ns_mul_i32 s{sr+5}, s{sr+5}, 896\ns_add_u32 s{sr+4}, s{sr+4}, s{sr+5}\ns_add_u32 s{sr+4}, s{sr+4}, {R0*64*7168}\ns_add_u32 s{sr+5}, s{sr+4}, {8*7168}")
    a(f"v_lshrrev_b32 v{vr}, 3, v0\nv_min_u32 v{vr}, {min(R,8)-1}, v{vr}\nv_mul_u32_u24 v{vr}, 7168, v{vr}\nv_and_b32 v{vr+1}, 7, v0\nv_min_u32 v{vr+1}, 6, v{vr+1}\nv_lshl_add_u32 v{vr}, v{vr+1}, 7, v{vr}")
    a(f"s_waitcnt lgkmcnt(0)\ns_mov_b32 s{sr+2}, 7340032\ns_mov_b32 s{sr+3}, 0x20000")
def touch_gu_ops(sr, vr, fl=""):
    return [f"buffer_load_dword v{vr+1}, v{vr}, s[{sr}:{sr+3}], s{sr+4} offen {fl}", f"buffer_load_dword v{vr+2}, v{vr}, s[{sr}:{sr+3}], s{sr+5} offen {fl}"]
def touch_wd_setup(a, sr, vr):
    a(f"s_load_dwordx2 s[{sr}:{sr+1}], s[0:1], 56")
    a(f"s_lshl_b32 s{sr+4}, s2, 2\ns_add_u32 s{sr+4}, s{sr+4}, s20\ns_mul_i32 s{sr+4}, s{sr+4}, 7168")
    a(f"v_min_u32 v{vr}, 55, v0\nv_lshlrev_b32 v{vr}, 7, v{vr}")
    a(f"s_waitcnt lgkmcnt(0)\ns_mov_b32 s{sr+2}, 7340032\ns_mov_b32 s{sr+3}, 0x20000")
def touch_wd_ops(sr, vr, fl=""):
    return [f"buffer_load_dword v{vr+1}, v{vr}, s[{sr}:{sr+3}], s{sr+4} offen {fl}"]

WS_TRACE = 44<<20
def trace(a, vreg, sidx="s29", st="s[90:91]", lo="s90"):
    a(f"s_memtime {st}\ns_waitcnt lgkmcnt(0)\ns_lshl_b64 exec, 1, {sidx}\nv_mov_b32 v{vreg}, {lo}\ns_mov_b64 exec, -1\ns_add_u32 {sidx}, {sidx}, 1")
def trace_out(a, vreg, kid, vt):
    a(f"s_add_u32 s56, s32, {WS_TRACE + kid*(1<<18)}\ns_addc_u32 s57, s33, 0\ns_mov_b32 s58, {1<<18}\ns_mov_b32 s59, 0x20000")
    a(f"s_lshl_b32 s60, s2, 10\ns_lshl_b32 s61, s20, 8\ns_add_u32 s60, s60, s61\nv_lshlrev_b32 v{vt}, 2, v0")
    a(f"buffer_store_dword v{vreg}, v{vt}, s[56:59], s60 offen\ns_waitcnt vmcnt(0)")
```

```python
from asmlib import *

class Cfg:
    tok_lds = False
    drain_at_P = False
    CAP = 2
    first_zero = False
    def swap(self, j): return False
    def on_P(self, a, st): pass
    def prologue_mid(self, a): pass
    def extra(self, st): return []
    def fixed(self, st): return []
    def P_wait(self, st): return []
    def idle(self, st): return []
    def post_block(self, a, st, sis, j, sl): pass
    def prologue_00(self, a): pass
    def first_P(self, a): pass
    def prologue_0(self, a): pass
    own_stage1 = None
    pos_by_stage = False
    lazy1 = None
    NRUN = None
    tail_reads = ()
    tokwait = None

def mainloop(a, c, last_stage=None):
    TB, NB, SPS, NST = c.TB, c.NB, c.SPS, c.NST
    G = 2 * TB
    gps = NB * G
    gpst = SPS * gps
    nsteps = SPS * NST
    NRUN = c.NRUN or NST
    nblk = SPS * NRUN * NB
    Pg = lambda st: (st + 1) * gpst - c.PBACK if st >= 0 else -10**9
    lq = []
    def mk_w(n, s, rd):
        step, j = divmod(n, NB); st, sis = divmod(step, SPS)
        return lambda: c.wread(a, st, sis, j, s, rd, n % c.WR, ("w", n, s))
    def mk_tl(t, tb, s):
        st, sis = divmod(t, SPS)
        return lambda: c.tokread(a, st, sis, tb, s, t % 2, ("tok", t, tb, s))
    for n in range(nblk):
        step, j = divmod(n, NB); st = step // SPS
        e = max((n - c.LA) * G, Pg(st - 1))
        ws = [(e, mk_w(n, s, rd)) for s in range(2) for rd in range(2)]
        if c.tok_lds and j == 0:
            et = max((step - 1) * gps + c.tok_early, Pg(st - 1))
            tl = [(et, mk_tl(step, tb, (s ^ (tb % 2)))) for tb in range(TB) for s in range(2)]
            lq += ws[:2] + tl[:1] + ws[2:] + tl[1:]
        else: lq += ws
    lq += [(Pg(NRUN - 1), fn) for fn in c.tail_reads]
    vq = []
    for st in range(NRUN):
        ops = []
        if st == 0 and c.lazy1:
            for i in range(c.NDMA):
                for fn in c.dma(a, 1, i): ops.append((c.lazy1(i), len(ops), fn))
        if st + 2 < NST:
            for i in range(c.NDMA):
                g = st * gpst + (c.dmapos(i, st) if c.pos_by_stage else c.dmapos(i))
                assert Pg(st - 1) <= g < Pg(st), (st, i, g)
                for k, fn in enumerate(c.dma(a, st + 2, i)): ops.append((g, len(ops), fn))
        if not c.tok_lds:
            for sis in range(SPS):
                t0 = st * SPS + sis; t = t0 + c.TR - 1
                if t < nsteps:
                    for i in range(G):
                        tb, s = divmod(i, 2)
                        g = t0 * gps + (c.tokpos(i, st) if c.pos_by_stage else c.tokpos(i))
                        for fn in c.tok(a, t, tb, s): ops.append((g, len(ops), fn))
        for g, fn in c.extra(st): ops.append((st * gpst + g, len(ops), fn))
        vq += [(g, st, k, fn) for g, k, fn in ops]
    vq.sort(key=lambda x: x[:3])
    vq = [(g, fn) for g, _, _, fn in vq]
    iq = [(st * gpst + g, fn) for st in range(NRUN) for g, fn in c.idle(st)]
    fx = {}
    for st in range(NRUN):
        for g, fn in c.fixed(st): fx.setdefault(st * gpst + g, []).append(fn)
    def run(fns):
        for k, fn in enumerate(fns):
            fn()
    def dma_all(st):
        for i in range(c.NDMA):
            fns = c.dma(a, st, i)
            for k, fn in enumerate(fns):
                if k == len(fns) - 1 and k > 0 and "m0" in a.lines[-1]: a("s_nop 0")
                fn()
    c.prologue_00(a)
    dma_all(0)
    if not c.tok_lds:
        for t in range(min(SPS, c.TR - 1)):
            for tb in range(TB):
                for s in range(2): run(c.tok(a, t, tb, s))
    c.prologue_0(a)
    if c.own_stage1: c.own_stage1(a, [c.dma(a, 1, i) for i in range(c.NDMA)])
    elif not c.lazy1: dma_all(1)
    if not c.tok_lds:
        for t in range(SPS, c.TR - 1):
            for tb in range(TB):
                for s in range(2): run(c.tok(a, t, tb, s))
    c.prologue_mid(a)
    a.wait(vm=[("dma", 0)])
    a("s_barrier")
    c.first_P(a)
    li = 0; vi = 0
    while li < len(lq) and lq[li][0] < 0: lq[li][1](); li += 1
    marks = []
    stats = {"over": 0}
    total = nblk * G
    for g in range(total):
        n, m = divmod(g, G); step, j = divmod(n, NB); st = step // SPS
        if g % (gpst * c.BODY) == 0: marks.append(a.mark())
        if g == Pg(st) and st + 1 < NST:
            assert a.vm.count(("dma", st + 1)) == c.NDMA
            if c.drain_at_P:
                assert lq[li][0] >= g, "reads of the current stage still pending at P"
                a.wait(vm=[("dma", st + 1)] + c.P_wait(st), lg=[a.lg[-1]])
            else: a.wait(vm=[("dma", st + 1)] + c.P_wait(st))
            a("s_barrier")
            c.on_P(a, st)
        tb = m // 2; s = (m % 2) ^ (tb % 2)
        need_w = [("w", n, 0), ("w", n, 1)] if m == 0 else []
        need_t = [("tok", step, tb, s)] if j == 0 else []
        if c.tok_lds and c.tokwait is not None and j == 0:
            need_t = [("tok", step, x, y) for x in c.tokwait.get(m, []) for y in range(2)]
        if not c.tok_lds and need_t: need_t = [("tok", step, x, y) for x in range(TB) for y in range(2)]
        for tag in need_w + (need_t if c.tok_lds else []):
            while tag not in a.lg or (tag[0] == "w" and a.lg.count(tag) < 2):
                assert lq[li][0] <= g, "deadline before earliest"
                lq[li][1](); li += 1; stats["over"] += 1
        if c.tok_lds: a.wait(lg=need_w + need_t)
        else: a.wait(vm=need_t, lg=need_w)
        A_, B_ = c.wreg(n % c.WR, s), c.tokreg(step % (2 if c.tok_lds else c.TR), tb, s)
        if c.swap(j): A_, B_ = B_, A_
        C_ = "0" if (c.first_zero and step == 0 and m % 2 == 0) else c.acc(j, tb)
        a(f"v_mfma_f32_16x16x32_bf16 {c.acc(j, tb)}, {A_}, {B_}, {C_}")
        cap = c.CAP - (1 if (m == G - 1) else 0)
        used = 0
        for fn in fx.get(g, []): fn(); used += 1
        if li < len(lq) and lq[li][0] <= g and used < cap:
            lq[li][1](); li += 1; used += 1
        if vi < len(vq) and vq[vi][0] <= g and used < cap:
            vq[vi][1](); vi += 1; used += 1
        if used == 0 and iq and iq[0][0] <= g: iq.pop(0)[1]()
        if m == G - 1: c.post_block(a, st, step % SPS, j, n % c.WR)
        if c.LDS2 and li < len(lq) and lq[li][0] <= g and used < cap:
            lq[li][1](); li += 1; used += 1
    assert not iq, len(iq)
    assert li == len(lq) and vi == len(vq), (li, len(lq), vi, len(vq))
    marks.append(a.mark())
    return marks, stats
```

```python
from common import *
def allreduce64(a, regs, tmp):
    pad = "" if len(regs) >= 3 else f"s_nop {2-len(regs)}\n"
    for mod in ("quad_perm:[1,0,3,2]", "quad_perm:[2,3,0,1]", "row_half_mirror", "row_mirror"):
        a("s_nop 1" if mod.endswith("3,2]") else pad)
        for r in regs: a(f"v_add_f32_dpp v{r}, v{r}, v{r} {mod} row_mask:0xf bank_mask:0xf")
    for op in ("v_permlane16_swap_b32", "v_permlane32_swap_b32"):
        for r, t in zip(regs, tmp): a(f"v_mov_b32 v{t}, v{r}")
        a("s_nop 1")
        for r, t in zip(regs, tmp): a(f"{op} v{r}, v{t}")
        a("s_nop 1")
        for r, t in zip(regs, tmp): a(f"v_add_f32 v{r}, v{r}, v{t}")

def gen_k0(name="k0_kernel", diag=False, o={}):
    a = Asm()
    a(f"s_cmp_ge_u32 s2, 256\ns_cbranch_scc1 L_{name}_done")
    if diag: stamp(a, 0)
    a("s_load_dwordx2 s[28:29], s[0:1], 0\ns_load_dwordx2 s[30:31], s[0:1], 24\ns_load_dwordx2 s[32:33], s[0:1], 80\ns_load_dwordx2 s[34:35], s[0:1], 8")
    a("v_lshrrev_b32 v1, 6, v0\nv_lshlrev_b32 v3, 4, v0\nv_and_b32 v0, 63, v0\nv_readfirstlane_b32 s20, v1\nv_lshlrev_b32 v2, 4, v0")
    a("s_lshl_b32 s21, s2, 2\ns_add_u32 s21, s21, s20\ns_lshl_b32 s22, s21, 12\ns_lshl_b32 s23, s21, 11")
    a("s_waitcnt lgkmcnt(0)")
    srd(a, 4, "s28", "s29", 4<<20); srd(a, 8, "s30", "s31", 2<<20)
    for i in range(4): a(f"buffer_load_dwordx4 v[{8+4*i}:{11+4*i}], v2, s[4:7], s22 offen offset:{1024*i}")
    for i in range(2): a(f"buffer_load_dwordx4 v[{24+4*i}:{27+4*i}], v2, s[8:11], s23 offen offset:{1024*i}")
    if o.get("pf_qkv"):
        srd(a, 36, "s34", "s35", 1024*6144)
        a("s_lshr_b32 s26, s2, 3\ns_lshl_b32 s26, s26, 2\ns_add_u32 s26, s26, s20\ns_mul_i32 s26, s26, 49152\ns_bfe_u32 s27, s2, 0x20001\ns_lshl_b32 s27, s27, 9\ns_add_u32 s26, s26, s27")
        a("v_lshrrev_b32 v80, 3, v0\nv_mul_u32_u24 v80, 6144, v80\nv_and_b32 v81, 3, v0\nv_lshl_add_u32 v80, v81, 7, v80\nv_bfe_u32 v81, v0, 2, 1\nv_lshl_add_u32 v81, v81, 11, v80")
        a(f"buffer_load_dword v82, v81, s[36:39], s26 offen {o.get('fl','')}")
        a("s_add_u32 s26, s26, 4096")
        a(f"buffer_load_dword v83, v80, s[36:39], s26 offen {o.get('fl','')}")
    ws_srd(a, 12, WS_XN, 4<<20); ws_srd(a, 16, WS_M1, WS_MD - WS_M1)
    a(f"s_cmp_lg_u32 s2, 0\ns_cbranch_scc1 L_{name}_nz")
    a("v_mov_b32 v4, 0\nv_mov_b32 v5, 0\nv_mov_b32 v6, 0\nv_mov_b32 v7, 0")
    a(f"s_mov_b32 s24, {WS_FLAG - WS_M1}\ns_mov_b32 s25, {WS_FLAG - WS_M1 + 4096}")
    a("buffer_store_dwordx4 v[4:7], v3, s[16:19], s24 offen\nbuffer_store_dwordx4 v[4:7], v3, s[16:19], s25 offen")
    a("s_waitcnt vmcnt(0)")
    a(f"L_{name}_nz:")
    a(f"s_waitcnt vmcnt({2 if o.get('pf_qkv') else 0})")
    for q in range(3):
        for d in range(8):
            a(f"v_lshlrev_b32 v{32+16*q+2*d}, 16, v{8+8*q+d}\nv_and_b32 v{33+16*q+2*d}, 0xffff0000, v{8+8*q+d}")
    for q in range(3):
        a(f"v_add_f32 v{4+q}, v{32+16*q}, v{33+16*q}")
        for e in range(2, 16): a(f"v_add_f32 v{4+q}, v{4+q}, v{32+16*q+e}")
    allreduce64(a, [4, 5, 6], [8, 9, 10])
    for q in range(3): a(f"v_mul_f32 v{4+q}, 0x3a800000, v{4+q}")
    for q in range(2):
        for e in range(16): a(f"v_sub_f32 v{32+16*q+e}, v{32+16*q+e}, v{4+q}")
        a(f"v_mul_f32 v{12+q}, v{32+16*q}, v{32+16*q}")
        for e in range(1, 16): a(f"v_fmac_f32 v{12+q}, v{32+16*q+e}, v{32+16*q+e}")
    allreduce64(a, [12, 13], [8, 9])
    for q in range(2): a(f"v_mov_b32 v{14+q}, 0x3727c5ac\nv_fmac_f32 v{14+q}, 0x3a800000, v{12+q}\nv_rsq_f32 v{14+q}, v{14+q}")
    a("s_nop 0")
    for q in range(2):
        for e in range(16): a(f"v_mul_f32 v{32+16*q+e}, v{32+16*q+e}, v{14+q}")
        for d in range(8): a(f"v_cvt_pk_bf16_f32 v{16+8*q+d}, v{32+16*q+2*d}, v{33+16*q+2*d}")
        for i in range(2): a(f"buffer_store_dwordx4 v[{16+8*q+4*i}:{19+8*q+4*i}], v2, s[12:15], s22 offen offset:{2048*q+1024*i}")
    a("v_mov_b32 v7, 0\ns_lshl_b32 s24, s21, 3\ns_lshl_b32 s25, s21, 2")
    a(f"s_add_u32 s25, s25, {WS_WBAR - WS_M1}")
    a("s_mov_b64 exec, 1")
    a("buffer_store_dwordx2 v[4:5], v7, s[16:19], s24 offen\nbuffer_store_dword v6, v7, s[16:19], s25 offen")
    a("s_mov_b64 exec, -1")
    if diag:
        a("s_nop 1" if o.get("nowait") else "s_waitcnt vmcnt(0)"); stamp(a, 1); stamp_out(a, 2, 0, "s32", "s33", 8)
    a(f"L_{name}_done:\ns_endpgm")
    return kernel_head(name) + a.text(), kernel_desc(name, 88, 88), launch_line(name, 0), None
```

```python
from common import *
import gemm16
SLOT = 40960
L_WPHI = 3*SLOT
L_PH = SLOT
L_VB = SLOT + 32768
LOG2E = "0x3fb8aa3b"
SPIN = 0x20000

def rs4(a, r, op):
    a(f"s_nop 1\nv_permlane16_swap_b32 v{r}, v{r+1}\nv_permlane16_swap_b32 v{r+2}, v{r+3}\ns_nop 0")
    a(f"{op} v{r}, v{r}, v{r+1}\n{op} v{r+2}, v{r+2}, v{r+3}\ns_nop 1\nv_permlane32_swap_b32 v{r}, v{r+2}\ns_nop 0\n{op} v{r}, v{r}, v{r+2}")
def bc4(a, r):
    a(f"v_mov_b32 v{r+2}, v{r}\ns_nop 1\nv_permlane32_swap_b32 v{r}, v{r+2}\ns_nop 0\nv_mov_b32 v{r+1}, v{r}\nv_mov_b32 v{r+3}, v{r+2}\ns_nop 1")
    a(f"v_permlane16_swap_b32 v{r}, v{r+1}\nv_permlane16_swap_b32 v{r+2}, v{r+3}")
def rowsum16(a, regs):
    for k, mod in enumerate(("quad_perm:[1,0,3,2]", "quad_perm:[2,3,0,1]", "row_half_mirror", "row_mirror")):
        a("s_nop 1" if k == 0 or len(regs) < 2 else "s_nop 0")
        for r in regs: a(f"v_add_f32_dpp v{r}, v{r}, v{r} {mod} row_mask:0xf bank_mask:0xf")
def allreduce64(a, regs, tmp):
    rowsum16(a, regs)
    for op in ("v_permlane16_swap_b32", "v_permlane32_swap_b32"):
        for r, t in zip(regs, tmp): a(f"v_mov_b32 v{t}, v{r}")
        a("s_nop 1")
        for r, t in zip(regs, tmp): a(f"{op} v{r}, v{t}")
        for r, t in zip(regs, tmp): a(f"v_add_f32 v{r}, v{r}, v{t}")
def umax(a, dst, regs):
    regs = list(regs)
    a(f"v_max3_u32 v{dst}, v{regs[0]}, v{regs[1]}, v{regs[2]}"); regs = regs[3:]
    while len(regs) >= 2: a(f"v_max3_u32 v{dst}, v{dst}, v{regs[0]}, v{regs[1]}"); regs = regs[2:]
    if regs: a(f"v_max_u32 v{dst}, v{dst}, v{regs[0]}")

def gen_k1(name="k1_kernel", diag=False, o={}):
    a = Asm(); tail = Asm()
    NPH = o.get("NPH", 4); xfl, wfl, stfl = o.get("xfl", ""), o.get("wfl", ""), o.get("stfl", "sc1")
    a(f"s_cmp_ge_u32 s2, 256\ns_cbranch_scc1 L_{name}_done")
    TR_ = o.get("trace")
    def tr(a):
        if TR_: trace(a, 255)
    if TR_: a("s_mov_b32 s29, 0\nv_mov_b32 v255, 0"); tr(a)
    if diag: stamp(a, 0)
    a("s_load_dwordx8 s[92:99], s[0:1], 0\ns_load_dwordx2 s[30:31], s[0:1], 72\ns_load_dwordx2 s[32:33], s[0:1], 80")
    a("v_lshrrev_b32 v1, 6, v0\nv_lshlrev_b32 v31, 2, v0\nv_and_b32 v0, 63, v0\nv_readfirstlane_b32 s20, v1")
    if o.get("map", "2x4") == "2x4":
        a("s_and_b32 s26, s2, 1\ns_lshl_b32 s26, s26, 3\ns_bfe_u32 s27, s2, 0x30003\ns_add_u32 s26, s26, s27")
        a("s_bfe_u32 s25, s2, 0x20001\ns_lshl_b32 s25, s25, 2\ns_lshr_b32 s27, s2, 6\ns_add_u32 s25, s25, s27")
    else:
        a("s_bfe_u32 s26, s2, 0x40003\ns_and_b32 s25, s2, 7\ns_lshl_b32 s25, s25, 1\ns_lshr_b32 s27, s2, 7\ns_add_u32 s25, s25, s27")
    a("s_and_b32 s46, s20, 1\ns_lshr_b32 s47, s20, 1\nv_lshlrev_b32 v30, 4, v0")
    a("s_lshl_b32 s51, s26, 6\ns_lshl_b32 s27, s25, 2\ns_add_u32 s51, s51, s27\ns_add_u32 s51, s51, s20\ns_lshl_b32 s34, s51, 12")
    sh = {1: 4, 2: 3, 4: 2, 8: 1, 16: 0}[NPH]
    if o.get("rotnt"): a(f"s_add_u32 s21, s26, s25\ns_and_b32 s21, s21, {NPH-1}")
    else: a(f"s_and_b32 s21, s26, {NPH-1}")
    a(f"s_lshl_b32 s21, s21, {sh+7}\ns_mul_i32 s22, s21, 3072\ns_lshr_b32 s28, s26, {4-sh}")
    POSC = 16//NPH
    a(f"s_lshl_b32 s50, 1, s28\ns_or_b32 s50, s50, {3 << POSC}\ns_mov_b32 s3, 0")
    a("s_lshl_b32 s35, s26, 18\ns_lshl_b32 s27, s20, 16\ns_add_u32 s35, s35, s27")
    a("v_lshrrev_b32 v16, 4, v0\nv_and_b32 v17, 7, v0\nv_xor_b32 v16, v16, v17\nv_lshl_add_u32 v16, v16, 4, s35\nv_lshrrev_b32 v18, 3, v0")
    a("v_lshl_add_u32 v2, v18, 11, v16\nv_xor_b32 v3, 64, v2")
    a(f"v_add_u32 v4, {16*2048 - 2048}, v2\nv_add_u32 v5, {24*2048 - 3072}, v3\nv_add_u32 v3, {8*2048 - 1024}, v3")
    a("s_lshl_b32 s27, s47, 5\ns_lshl_b32 s35, s46, 2\ns_add_u32 s35, s35, s27\ns_mul_i32 s35, s35, 6144\ns_lshl_b32 s27, s25, 7\ns_add_u32 s35, s35, s27")
    a("v_lshrrev_b32 v16, 4, v0\nv_lshlrev_b32 v16, 1, v16\nv_xor_b32 v16, v16, v17\nv_lshl_add_u32 v16, v16, 4, s35")
    a("v_lshrrev_b32 v18, 5, v0\nv_lshlrev_b32 v18, 3, v18\nv_bfe_u32 v19, v0, 3, 2\nv_add_u32 v18, v18, v19\nv_mul_u32_u24 v18, 6144, v18\nv_add_u32 v6, v18, v16")
    wimm = lambda part, i: (part*2048 + i*1024) % 4096
    for part in range(3):
        for i in range(2):
            if part or i: a(f"v_add_u32 v{6+2*part+i}, {16*i*6144 + part*2048 - wimm(part, i)}, v6")
    a("s_mul_i32 s45, s20, 10240\ns_mov_b32 s23, s45\ns_mov_b32 s44, 0")
    a("s_waitcnt lgkmcnt(0)")
    srd(a, 8, "s92", "s93", 4<<20)
    srd(a, 4, "s94", "s95", 1024*6144)
    XR = 156
    ws_srd(a, 16, WS_SS, WS_END - WS_SS)
    a(f"s_cmp_lg_u32 s2, 0\ns_cbranch_scc1 L_{name}_nz")
    a(f"v_mov_b32 v24, 0\nv_mov_b32 v25, 0\nv_mov_b32 v26, 0\nv_mov_b32 v27, 0\ns_lshl_b32 s27, s20, 12\ns_add_u32 s27, s27, {WS_FLAG - WS_SS}")
    for i in range(4): a(f"buffer_store_dwordx4 v[24:27], v30, s[16:19], s27 offen offset:{1024*i} sc1")
    a(f"L_{name}_nz:")
    def stat_loads(a):
        for i in range(4): a.vmem(f"buffer_load_dwordx4 v[{XR+4*i}:{XR+3+4*i}], v30, s[8:11], s34 offen offset:{1024*i} {xfl}", ("xr",))
    c = gemm16.Cfg()
    c.TB, c.NB, c.SPS, c.NST, c.NDMA = 4, 6, 1, 16, 10
    c.tok_lds = True; c.drain_at_P = True; c.tok_early = 0
    c.BODY = 2; c.LA, c.WR = 2, 3; c.PBACK = 16; c.LDS2 = False
    c.acc = lambda j, tb: f"v[{32+4*(4*j+tb)}:{35+4*(4*j+tb)}]"
    c.tokreg = lambda sl, tb, s: f"a[{24+32*sl+8*tb+4*s}:{24+32*sl+8*tb+4*s+3}]"
    c.wreg = lambda sl, s: f"a[{8*sl+4*s}:{8*sl+4*s+3}]"
    c.swap = lambda j: j >= 4
    c.tokwait = {0: [0], 2: [1, 2, 3]}
    c.first_zero = True
    if o.get("statpos", 0) == 0: c.prologue_00 = stat_loads
    def dma(a, st, i):
        f = []
        if i == 0:
            if st in (1, 2): f.append(lambda: a(f"s_add_u32 s23, s23, {SLOT}"))
            if st > 0: f.append(lambda: a("s_add_u32 s21, s21, 128")); f.append(lambda: a("s_and_b32 s21, s21, 0x7ff"))
            f.append(lambda: a("s_mov_b32 m0, s23"))
        if i == 4:
            if st > 0: f.append(lambda: a("s_mul_i32 s22, s21, 3072"))
            f.append(lambda: a("s_add_u32 m0, s23, 4096"))
        if i == 8: f.append(lambda: a("s_add_u32 m0, s23, 8192"))
        if i < 4: f.append(lambda: a.vmem(f"buffer_load_dwordx4 v{2+i}, s[8:11], s21 offen offset:{1024*i} {xfl} lds", ("dma", st)))
        else: f.append(lambda: a.vmem(f"buffer_load_dwordx4 v{2+i}, s[4:7], s22 offen offset:{wimm((i-4)//2, i%2)} {wfl} lds", ("dma", st)))
        return f
    c.dma = dma
    woff = lambda j, s, rd: (2*s+rd)*10240 + 4096 + (j//2)*2048
    def wread(a, st, sis, j, s, rd, sl, tag):
        lo = 8*sl + 4*s + 2*rd
        a.lds(f"ds_read_b64_tr_b16 a[{lo}:{lo+1}], v{14+j%2} offset:{woff(j, s, rd)}", tag)
    c.wread = wread
    def tokread(a, st, sis, tb, s, sl, tag):
        a.lds(f"ds_read_b128 {c.tokreg(sl, tb, s)}, v{12+s} offset:{(tb//2)*10240 + (tb%2)*2048}", tag)
    c.tokread = tokread
    c.dmapos = lambda i: o.get("dmapos", [-16, -10, -6, -2, 2, 7, 12, 15, 19, 23])[i]
    WP, ONES, F, P, MX, MN, EF = 128, 136, 140, 156, 188, 192, 196
    CS = lambda j: (244 + 4*j) if j < 2 else (228 + 4*(j-2))
    V = lambda s, tag: (lambda: a.vmem(s, tag))
    X = lambda s: (lambda: a(s))
    def fixed(st):
        ex = []
        if st < c.NST - 1:
            def chk(s):
                def f():
                    assert a.lg.count(("w", st*6+5, 1)) == 2 and ("w", st*6+6, 0) not in a.lg
                    a(s)
                return f
            ex += [(22, X(f"s_cmp_eq_u32 s44, {2*SLOT}\ns_cselect_b32 s43, s42, s41"))]
            ex += [(28 + r, chk(f"v_add_u32 v{12+r}, s43, v{12+r}")) for r in range(4)]
        return ex
    c.fixed = fixed
    def extra(st):
        ex = []
        if st == 12:
            ex += [(o.get("rdyld", 4), V("buffer_load_dword v20, v19, s[16:19], s40 offen sc1", ("rdy",)))]
        if st == 13:
            def check_ready():
                a.wait(vm=[("rdy",)])
                a(f"v_cmp_ne_u32 vcc, 1, v20\ns_nop 0\ns_cbranch_vccnz L_{name}_spin0\nL_{name}_rdy0:")
            seq = [check_ready]
            for u in range(4):
                for x in range(2): seq.append(V(f"buffer_load_dwordx4 v[{P+8*u+4*x}:{P+3+8*u+4*x}], v21, s[16:19], s{52 + u//2} offen offset:{2048*(u%2)+16*x} sc1", ("cs",)))
            for tb in range(4): seq.append(V(f"buffer_load_dwordx2 v[{2+2*tb}:{3+2*tb}], v22, s[16:19], s55 offen offset:{128*tb} sc1", ("st",)))
            for tb in range(4):
                for hf in range(2): seq.append(V(f"buffer_load_dwordx4 v[{EF+8*tb+4*hf}:{EF+3+8*tb+4*hf}], v23, s[16:19], s55 offen offset:{128*tb+16*hf} sc1", ("st",)))
            ex += [(26 + o.get("latestep", 3)*k, f) for k, f in enumerate(seq)]
        if st == 15:
            seq = [X("s_mov_b32 s8, s98\ns_mov_b32 s9, s99"), X(f"s_mov_b32 s10, {2<<20}\ns_lshl_b32 s27, s51, 11")]
            for i in range(2): seq.append(V(f"buffer_load_dwordx4 a[{88+4*i}:{91+4*i}], v30, s[8:11], s27 offen offset:{1024*i}", ("wo",)))
            if o.get("pf_gu"): seq += [V(s_, ("pf",)) for s_ in touch_gu_ops(56, 252, "")[:o.get("pf_gu")]]
            ex += [(0, f) for f in seq]
            seq = [lambda: a.wait(vm=[("cs",)])]
            for j in range(6):
                r = P + 4*(j%2) + j//2
                seq += [X(f"v_add_f32 v{r}, v{r}, v{r+8}"), X(f"v_add_f32 v{r+16}, v{r+16}, v{r+24}"), X(f"v_add_f32 v{r}, v{r}, v{r+16}")]
            ex += [(20, f) for f in seq]
        return ex
    c.extra = extra
    def share_check(a, k):
        a(f"s_bitcmp1_b32 s50, s3\ns_cbranch_scc0 L_{name}_ns{k}\ns_getpc_b64 s[100:101]\ns_branch L_{name}_share\nL_{name}_ns{k}:\ns_add_u32 s3, s3, 1")
    def on_P(a, st):
        assert st + 2 >= c.NST or a.vm.count(("dma", st+2)) == 10
        a("s_add_u32 s23, s44, s45\ns_add_u32 s44, s44, s43")
        tr(a)
        if st < 12: share_check(a, f"{st%2}{'p' if st < 2 else ''}")
    c.on_P = on_P
    def first_P(a):
        tr(a)
        a(f"s_or_b32 s27, s2, s20\ns_cbranch_scc1 L_{name}_nl\nv_mov_b32 v16, 1\ns_mov_b64 exec, 1\nbuffer_store_dword v16, v30, s[12:15], 0 offen sc1\ns_mov_b64 exec, -1\nL_{name}_nl:")
        share_check(a, "f")
    c.first_P = first_P
    assert POSC + 1 <= 10
    def pro0(a):
        if o.get("statpos", 0) == 1: stat_loads(a)
        srd(a, 12, "s96", "s97", 65536)
        a(f"s_lshl_b32 s27, s20, 10\ns_add_u32 m0, s27, {L_WPHI}\ns_lshl_b32 s35, s25, 12\ns_add_u32 s27, s27, s35")
        a.vmem("buffer_load_dwordx4 v30, s[12:15], s27 offen lds", ("wphi",))
    c.prologue_0 = pro0
    def pro_work(a):
        ws_srd(a, 36, WS_O, 4<<20)
        srd(a, 12, "s30", "s31", 256)
        a(f"s_mov_b32 s41, {SLOT}\ns_mov_b32 s42, {-2*SLOT & 0xffffffff}\ns_mov_b32 s40, {WS_FLAG - WS_SS}")
        a("s_lshl_b32 s27, s25, 1\ns_add_u32 s48, s27, s47")
        a(f"s_lshl_b32 s27, s25, 4\ns_add_u32 s27, s27, s26\ns_lshl_b32 s62, s27, 14\ns_lshl_b32 s35, s20, 12\ns_add_u32 s62, s62, s35\ns_add_u32 s62, s62, {WS_KVP - WS_SS}")
        a(f"s_lshl_b32 s63, s48, 12\ns_lshl_b32 s35, s46, 3\ns_add_u32 s63, s63, s35\ns_lshl_b32 s35, s26, 8\ns_add_u32 s63, s63, s35\ns_add_u32 s63, s63, {WS_ZP - WS_SS}")
        a(f"s_lshl_b32 s49, s27, 10\ns_add_u32 s49, s49, {WS_KVT - WS_SS}")
        a("v_and_b32 v16, 15, v0\nv_bfe_u32 v17, v0, 1, 3\nv_lshrrev_b32 v18, 4, v0\nv_xor_b32 v17, v17, v18\nv_lshlrev_b32 v17, 4, v17\nv_lshl_add_u32 v12, v16, 7, v17")
        a("s_mul_i32 s27, s46, 20480\nv_add_u32 v12, s27, v12\nv_xor_b32 v13, 64, v12")
        a("v_lshlrev_b32 v22, 3, v16\nv_lshlrev_b32 v23, 5, v18\nv_lshlrev_b32 v21, 5, v0\nv_mov_b32 v29, 1.0")
        a("s_lshl_b32 s27, s26, 7\ns_lshl_b32 s35, s25, 7\ns_add_u32 s35, s35, 2048\nv_mov_b32 v19, s35\nv_mov_b32 v17, s27\nv_cmp_gt_u32 vcc, 16, v0\nv_lshrrev_b32 v18, 2, v0\ns_nop 0\nv_cndmask_b32 v19, v19, v17, vcc\nv_lshl_add_u32 v19, v16, 2, v19")
        a("v_lshlrev_b32 v16, 7, v18\nv_bfe_u32 v17, v0, 3, 2\nv_lshlrev_b32 v17, 5, v17\nv_and_b32 v18, 3, v0\nv_lshlrev_b32 v18, 3, v18\nv_add3_u32 v14, v16, v17, v18")
        a("s_lshl_b32 s27, s47, 6\nv_xor_b32 v14, s27, v14\nv_xor_b32 v15, 32, v14")
        a(f"s_lshl_b32 s52, s48, 13\ns_add_u32 s52, s52, {WS_CS - WS_SS}\ns_add_u32 s53, s52, 4096")
        a(f"s_lshl_b32 s55, s26, 10\ns_lshl_b32 s27, s46, 9\ns_add_u32 s55, s55, s27\ns_add_u32 s55, s55, {WS_ST1 - WS_SS}")
        if o.get("pf_gu"): touch_gu_setup(a, 56, 252, o.get("pf_rows", 16))
        for r in range(136, 140): a(f"v_mov_b32 v{r}, 0x3f803f80")
        a.wait(vm=[("xr",)])
        a("@")
        U = 196
        for q in range(2):
            for d in range(8): a(f"v_lshlrev_b32 v{U+16*q+2*d}, 16, v{XR+8*q+d}\nv_and_b32 v{U+1+16*q+2*d}, 0xffff0000, v{XR+8*q+d}")
            a("@")
        for q in range(2):
            a(f"v_add_f32 v{140+2*q}, v{U+16*q}, v{U+1+16*q}")
            for e in range(2, 16): a(f"v_add_f32 v{140+2*q}, v{140+2*q}, v{U+16*q+e}")
            a("@")
        allreduce64(a, [140, 142], [144, 145])
        a("@")
        for q in range(2):
            a(f"v_mul_f32 v{140+2*q}, 0x3a800000, v{140+2*q}")
            for e in range(16): a(f"v_sub_f32 v{U+16*q+e}, v{U+16*q+e}, v{140+2*q}")
            a("@")
            a(f"v_mul_f32 v{141+2*q}, v{U+16*q}, v{U+16*q}")
            for e in range(1, 16): a(f"v_fmac_f32 v{141+2*q}, v{U+16*q+e}, v{U+16*q+e}")
            a("@")
        allreduce64(a, [141, 143], [144, 145])
        for q in range(2): a(f"v_mov_b32 v144, 0x3727c5ac\nv_fmac_f32 v144, 0x3a800000, v{141+2*q}\nv_rsq_f32 v{141+2*q}, v144")
    def own1(a, dmas):
        m = a.mark(); pro_work(a)
        work = a.lines[m:]; a.lines = a.lines[:m]
        assert work.count("@") == len(dmas)
        dmas = list(dmas)
        for l in work:
            if l != "@": a.lines.append(l); continue
            fns = dmas.pop(0)
            for k, fn in enumerate(fns):
                if k == len(fns) - 1 and k > 0: a("s_nop 0")
                fn()
    c.own_stage1 = own1
    def pro_mid(a):
        a(f"s_lshl_b32 s27, s51, 4\ns_add_u32 s27, s27, {WS_ST1 - WS_SS}\ns_mov_b64 exec, 1")
        a.vmem("buffer_store_dwordx4 v[140:143], v30, s[16:19], s27 offen sc1", ("clr",))
        a("s_mov_b64 exec, -1")
        if diag: stamp(a, 3); a("s_waitcnt lgkmcnt(0)")
    c.prologue_mid = pro_mid
    marks, stats = gemm16.mainloop(a, c)
    rolled = roll(a, marks, f"L_{name}_loop", "s24")
    if diag: stamp(a, 1)
    tr(a)
    t = tail
    t(f"L_{name}_share:\ns_add_u32 s100, s100, 4\ns_addc_u32 s101, s101, 0\ns_cmp_lt_u32 s3, {POSC}\ns_cbranch_scc0 L_{name}_clr")
    t("s_lshl_b32 s27, s46, 5\nv_xor_b32 v16, s27, v14")
    for part in range(3):
        for s in range(2):
            for rd in range(2): t(f"ds_read_b64_tr_b16 v[{P+8*part+4*s+2*rd}:{P+8*part+4*s+2*rd+1}], v16 offset:{woff(2*part, s, rd)}")
    t(f"s_lshl_b32 s27, s46, 4\ns_lshl_b32 s35, s26, 9\ns_add_u32 s27, s27, s35\ns_add_u32 s27, s27, s52\ns_waitcnt lgkmcnt(0)")
    for part in range(3):
        for s in range(2): t(f"v_mfma_f32_16x16x32_bf16 v[{144+4*part}:{147+4*part}], v[{ONES}:{ONES+3}], v[{P+8*part+4*s}:{P+8*part+4*s+3}], {'0' if s == 0 else f'v[{144+4*part}:{147+4*part}]'}")
    t("s_nop 7\nv_mov_b32 v145, v148\nv_mov_b32 v146, v152\ns_mov_b64 exec, 0xffff")
    t("buffer_store_dwordx4 v[144:147], v21, s[16:19], s27 offen sc1")
    t("s_mov_b64 exec, -1\ns_setpc_b64 s[100:101]")
    t(f"L_{name}_clr:\ns_cmp_eq_u32 s3, {POSC}\ns_cbranch_scc0 L_{name}_flag")
    t("v_mov_b32 v24, -1\nv_mov_b32 v25, -1\nv_mov_b32 v26, -1\nv_mov_b32 v27, -1\nv_mov_b32 v16, 0")
    t("buffer_load_dword v20, v16, s[12:15], 0 offen sc1")
    for i in range(4): t(f"buffer_store_dwordx4 v[24:27], v30, s[16:19], s62 offen offset:{1024*i} sc1")
    t("buffer_store_dword v24, v31, s[16:19], s49 offen sc1\ns_mov_b64 exec, 0xffff")
    t("buffer_store_dwordx2 v[24:25], v30, s[16:19], s63 offen sc1\ns_mov_b64 exec, -1\ns_setpc_b64 s[100:101]")
    t(f"L_{name}_flag:\ns_cmp_eq_u32 s20, 0\ns_cbranch_scc0 L_{name}_ret\ns_mov_b32 s27, {SPIN}\nv_mov_b32 v16, 0")
    t(f"L_{name}_flagb:\nv_cmp_eq_u32 vcc, 0, v20\ns_sub_u32 s27, s27, 1\ns_cbranch_vccz L_{name}_flagc\ns_cmp_eq_u32 s27, 0\ns_cbranch_scc1 L_{name}_flagc")
    t(f"buffer_load_dword v20, v16, s[12:15], 0 offen sc1\ns_waitcnt vmcnt(0)\ns_branch L_{name}_flagb")
    t(f"L_{name}_flagc:\nv_mov_b32 v16, 1\ns_add_u32 s27, s26, 16\ns_lshl_b32 s27, 1, s27\ns_lshl_b32 s35, 1, s25\ns_or_b32 exec_lo, s27, s35\ns_mov_b32 exec_hi, 0")
    t("buffer_store_dword v16, v19, s[16:19], s40 offen sc1\ns_mov_b64 exec, -1")
    t(f"L_{name}_ret:\ns_setpc_b64 s[100:101]")
    t(f"L_{name}_spin0:\ns_mov_b32 s27, {SPIN}\nL_{name}_spin0b:\nbuffer_load_dword v20, v19, s[16:19], s40 offen sc1\ns_waitcnt vmcnt(0)\nv_cmp_ne_u32 vcc, 1, v20\ns_sub_u32 s27, s27, 1")
    t(f"s_cbranch_vccz L_{name}_rdy0\ns_cmp_lg_u32 s27, 0\ns_cbranch_scc1 L_{name}_spin0b\ns_branch L_{name}_rdy0")
    S = lambda sg, tb: (140 if sg == 0 else 228) + 4*tb
    mf = lambda d, A_, B_, C_: a(f"v_mfma_f32_16x16x32_bf16 v[{d}:{d+3}], v[{A_}:{A_+3}], v[{B_}:{B_+3}], {C_ if C_ == '0' else f'v[{C_}:{C_+3}]'}")
    for j in (2, 3, 4, 5, 0, 1):
        r = P + 4*(j%2) + j//2
        A_, B_ = (r, 29) if j < 4 else (29, r)
        a(f"v_mfma_f32_16x16x4_f32 v[{CS(j)}:{CS(j)+3}], v{A_}, v{B_}, 0")
    a(f"v_lshrrev_b32 v16, 2, v0\nv_lshlrev_b32 v16, 6, v16\nv_and_b32 v17, 3, v0\nv_lshl_add_u32 v16, v17, 3, v16\ns_lshl_b32 s27, s47, 11\ns_add_u32 s27, s27, {L_WPHI}\nv_add_u32 v16, s27, v16")
    for fb in range(2):
        for rd in range(2): a(f"ds_read_b64_tr_b16 v[{WP+4*fb+2*rd}:{WP+4*fb+2*rd+1}], v16 offset:{1024*rd + 32*fb}")
    a.wait(vm=[("st",)])
    for tb in range(4): a(f"v_mul_f32 v{3+2*tb}, {LOG2E}, v{3+2*tb}")
    def feat1(j0, between=None):
        b = 32 + 16*j0
        for tb in range(4):
            for x in range(2):
                for r in range(4): a(f"v_fma_f32 v{b+16*x+4*tb+r}, -v{2+2*tb}, v{CS(j0+x)+r}, v{b+16*x+4*tb+r}")
            for d in range(4): a(f"v_cvt_pk_bf16_f32 v{F+4*tb+d}, v{b+16*(d//2)+4*tb+2*(d%2)}, v{b+16*(d//2)+4*tb+2*(d%2)+1}")
        a("s_waitcnt lgkmcnt(0)\ns_nop 0")
        for tb in range(4):
            for fb in range(2): mf(P + 8*tb + 4*fb, WP + 4*fb, F + 4*tb, "0")
        if between: between()
        else: a("s_nop 3")
        for tb in range(4):
            p = P + 8*tb
            for dst, op3, op2 in ((MX+tb, "v_max3_f32", "v_max_f32"), (MN+tb, "v_min3_f32", "v_min_f32")):
                a(f"{op3} v{dst}, v{p}, v{p+1}, v{p+2}\n{op3} v{dst}, v{dst}, v{p+3}, v{p+4}\n{op3} v{dst}, v{dst}, v{p+5}, v{p+6}\n{op2} v{dst}, v{dst}, v{p+7}")
        rs4(a, MX, "v_max_f32"); rs4(a, MN, "v_min_f32")
        bc4(a, MX); bc4(a, MN)
        for tb in range(4): a(f"v_mul_f32 v{MX+tb}, v{MX+tb}, v{3+2*tb}\nv_mul_f32 v{MN+tb}, v{MN+tb}, v{3+2*tb}")
    def feat2(b):
        for tb in range(4):
            for e in range(8): a(f"v_fma_f32 v{b+8*tb+e}, v{P+8*tb+e}, v{3+2*tb}, -v{MX+tb}")
            for e in range(8): a(f"v_fma_f32 v{P+8*tb+e}, -v{P+8*tb+e}, v{3+2*tb}, v{MN+tb}")
            for e in range(8): a(f"v_exp_f32 v{b+8*tb+e}, v{b+8*tb+e}")
            for e in range(8): a(f"v_exp_f32 v{P+8*tb+e}, v{P+8*tb+e}")
            for sg, src in ((0, b), (1, P)):
                for d in range(4): a(f"v_cvt_pk_bf16_f32 v{EF+16*sg+4*tb+d}, v{src+8*tb+2*d}, v{src+8*tb+2*d+1}")
        a("s_nop 1")
        for tb in range(4):
            for sg in range(2): mf(S(sg, tb), ONES, EF + 16*sg + 4*tb, "0")
    def scale_pack(b, sc):
        for tb in range(4):
            for sg, src in ((0, b), (1, P)):
                for e in range(8): a(f"v_mul_f32 v{src+8*tb+e}, v{src+8*tb+e}, v{sc(sg, tb)}")
                for d in range(4): a(f"v_cvt_pk_bf16_f32 v{EF+16*sg+4*tb+d}, v{src+8*tb+2*d}, v{src+8*tb+2*d+1}")
    VF, VG, AF, KV, Z = 96, 80, 156, 112, 64
    def vside():
        for db in range(2):
            for tb in range(4):
                for r in range(4):
                    x = 96 + 16*db + 4*tb + r
                    a(f"v_fma_f32 v{x}, -v{EF+8*tb+2*r}, v{CS(4+db)}, v{x}\nv_mul_f32 v{x}, v{x}, v{EF+8*tb+2*r+1}")
            for d in range(8): a(f"v_cvt_pk_bf16_f32 v{VF+8*db+d}, v{96+16*db+2*d}, v{97+16*db+2*d}")
        a(f"s_lshl_b32 s27, s20, 12\ns_add_u32 s27, s27, {L_VB}\nv_add_u32 v24, s27, v30\nv_xor_b32 v25, 4096, v24")
        for i in range(4): a(f"ds_write_b128 v24, v[{VF+4*i}:{VF+4*i+3}] offset:{1024*i}")
    feat1(2, vside); tr(a); feat2(64); tr(a)
    a("v_bfe_u32 v16, v0, 1, 2\nv_lshlrev_b32 v16, 2, v16\nv_and_b32 v17, 1, v0\nv_bfe_u32 v18, v0, 3, 1\nv_lshlrev_b32 v18, 1, v18\nv_or3_b32 v16, v16, v17, v18")
    a("v_lshrrev_b32 v17, 4, v0\nv_xor_b32 v16, v16, v17\nv_lshlrev_b32 v16, 3, v16\nv_and_b32 v17, 15, v0\nv_lshl_add_u32 v10, v17, 7, v16")
    a(f"s_lshl_b32 s27, s47, 14\ns_lshl_b32 s35, s46, 13\ns_add_u32 s27, s27, s35\ns_add_u32 s27, s27, {L_PH}\nv_add_u32 v10, s27, v10")
    for q in range(1, 4): a(f"v_xor_b32 v{10+q}, {32*q}, v10")
    for sg in range(2):
        for tb in range(4): a(f"v_rcp_f32 v{S(sg, tb)}, v{S(sg, tb)}")
    a("s_nop 0")
    for tb in range(4):
        for sg, src in ((0, 64), (1, P)):
            for e in range(8): a(f"v_mul_f32 v{src+8*tb+e}, v{src+8*tb+e}, v{S(sg, tb)}")
            for d in range(4): a(f"v_cvt_pk_bf16_f32 v{EF+16*sg+4*tb+d}, v{src+8*tb+2*d}, v{src+8*tb+2*d+1}")
            for fb in range(2): a(f"ds_write_b64 v{10+2*sg+fb}, v[{EF+16*sg+4*tb+2*fb}:{EF+16*sg+4*tb+2*fb+1}] offset:{2048*tb}")
    a("v_bfe_u32 v16, v0, 3, 2\nv_lshlrev_b32 v16, 2, v16\nv_bfe_u32 v17, v0, 2, 1\nv_lshrrev_b32 v18, 5, v0\nv_lshlrev_b32 v18, 1, v18\nv_or3_b32 v16, v16, v17, v18")
    a("v_and_b32 v17, 3, v0\nv_xor_b32 v16, v16, v17\nv_lshlrev_b32 v16, 3, v16\nv_lshrrev_b32 v17, 2, v0\nv_lshl_add_u32 v14, v17, 7, v16")
    a(f"s_lshl_b32 s27, s46, 6\nv_xor_b32 v14, s27, v14\ns_lshl_b32 s27, s47, 14\ns_add_u32 s27, s27, {L_PH}\ns_add_u32 s34, s27, s35\ns_xor_b32 s35, s35, 8192\ns_add_u32 s35, s27, s35")
    a("v_add_u32 v16, s35, v14\nv_add_u32 v14, s34, v14\nv_xor_b32 v15, 32, v14\nv_xor_b32 v17, 32, v16")
    tr(a)
    a("s_waitcnt lgkmcnt(0)\ns_barrier")
    tr(a)
    for who in range(2):
        for fb in range(2):
            for ks in range(2):
                for rd in range(2):
                    r = AF + 16*who + 8*fb + 4*ks + 2*rd
                    a(f"ds_read_b64_tr_b16 v[{r}:{r+1}], v{14+2*who+fb} offset:{(32*ks + 16*rd)*128}")
        if who == 0:
            for i in range(4): a(f"ds_read_b128 v[{VG+4*i}:{VG+4*i+3}], v25 offset:{1024*i}")
    for who in range(2):
        a(f"s_waitcnt lgkmcnt({12 if who == 0 else 0})")
        for fb in range(2):
            for db in range(3):
                for ks in range(2):
                    af = AF + 16*who + 8*fb + 4*ks
                    first = who == 0 and ks == 0
                    if db < 2: mf(KV + 8*fb + 4*db, af, (VF if who == 0 else VG) + 8*db + 4*ks, "0" if first else KV + 8*fb + 4*db)
                    else: mf(Z + 4*fb, ONES, af, "0" if first else Z + 4*fb)
    a(f"s_lshl_b32 s34, s25, 18\ns_lshl_b32 s27, s26, 10\ns_add_u32 s34, s34, s27\ns_add_u32 s52, s34, {WS_KVP - WS_SS}")
    a(f"s_lshl_b32 s53, s48, 12\ns_add_u32 s53, s53, {WS_ZP - WS_SS}\ns_nop 1")
    for i in range(4): a(f"buffer_store_dwordx4 v[{KV+4*i}:{KV+4*i+3}], v30, s[16:19], s62 offen offset:{1024*i} sc1")
    a(f"v_mov_b32 v{Z+1}, v{Z+4}\ns_mov_b64 exec, 0xffff\nbuffer_store_dwordx2 v[{Z}:{Z+1}], v30, s[16:19], s63 offen sc1\ns_mov_b64 exec, -1")
    if diag and not TR_: stamp(a, 4)
    tr(a)
    def kv_loads():
        a("s_mov_b32 s34, s52")
        for i in range(16):
            a(f"buffer_load_dword v{64+i}, v31, s[16:19], s34 offen sc1")
            if i < 15: a("s_add_u32 s34, s34, 16384")
    def z_loads():
        for q in range(4): a(f"buffer_load_dwordx4 v[{80+4*q}:{83+4*q}], v30, s[16:19], s53 offen offset:{1024*q} sc1")
    def retry(k, regs, again):
        a(f"s_mov_b32 s27, {SPIN}\nL_{name}_chk{k}:")
        umax(a, 20, regs)
        a(f"v_cmp_eq_u32 vcc, -1, v20\ns_sub_u32 s27, s27, 1\ns_cbranch_vccnz L_{name}_again{k}\nL_{name}_ok{k}:")
        keep, a.lines = a.lines, []
        a(f"L_{name}_again{k}:\ns_cmp_eq_u32 s27, 0\ns_cbranch_scc1 L_{name}_ok{k}")
        again()
        a(f"s_waitcnt vmcnt(0)\ns_branch L_{name}_chk{k}")
        tail.lines += a.lines; a.lines = keep
    feat1(0); tr(a)
    if o.get("early1"): kv_loads(); z_loads()
    feat2(32); tr(a)
    if not o.get("early1"): kv_loads(); z_loads()
    a("s_waitcnt vmcnt(25)")
    a(f"v_mfma_f32_16x16x32_bf16 v[96:99], v[{ONES}:{ONES+3}], a[88:91], 0\nv_mfma_f32_16x16x32_bf16 v[96:99], v[{ONES}:{ONES+3}], a[92:95], v[96:99]")
    a("s_lshr_b32 s34, s51, 5\ns_lshl_b32 s34, s34, 7\ns_bfe_u32 s35, s51, 0x20002\ns_lshl_b32 s35, s35, 5\ns_add_u32 s34, s34, s35")
    a(f"s_and_b32 s35, s51, 3\ns_lshl_b32 s35, s35, 1\ns_add_u32 s34, s34, s35\ns_bfe_u32 s35, s51, 0x10004\ns_lshl_b32 s35, s35, 3\ns_add_u32 s34, s34, s35\ns_add_u32 s54, s34, {WS_WB - WS_SS}")
    rowsum16(a, [96])
    a("v_mul_f32 v96, 0x3a800000, v96\nv_cvt_pk_bf16_f32 v97, v96, v96\nv_lshlrev_b32 v98, 16, v97\nv_sub_f32 v98, v96, v98\nv_cvt_pk_bf16_f32 v98, v98, v98")
    a("s_waitcnt vmcnt(4)")
    retry(1, range(64, 80), kv_loads)
    if diag and not TR_: stamp(a, 5)
    tr(a)
    for st_ in (8, 4, 2, 1):
        for i in range(st_): a(f"v_add_f32 v{64+i}, v{64+i}, v{64+i+st_}")
    a("buffer_store_dword v64, v31, s[16:19], s49 offen sc1")
    a("s_mov_b64 exec, 1\nbuffer_store_short v97, v30, s[16:19], s54 offen sc1\nbuffer_store_short v98, v30, s[16:19], s54 offen offset:16 sc1\ns_mov_b64 exec, -1")
    a("s_waitcnt vmcnt(3)")
    retry(2, range(80, 96), z_loads)
    for q in range(8): a(f"v_add_f32 v{80+q}, v{80+q}, v{88+q}")
    for q in range(4): a(f"v_add_f32 v{80+q}, v{80+q}, v{84+q}")
    a("s_nop 1")
    for q in range(4): a(f"v_mfma_f32_16x16x4_f32 v[{100+4*q}:{103+4*q}], v{80+q}, v29, 0")
    a(f"s_lshl_b32 s34, s25, 14\ns_lshl_b32 s27, s47, 13\ns_add_u32 s34, s34, s27\ns_add_u32 s52, s34, {WS_KVT - WS_SS}\ns_add_u32 s53, s52, 4096")
    a("s_lshl_b32 s27, s26, 3\ns_lshl_b32 s34, s46, 2\ns_add_u32 s27, s27, s34\ns_lshl_b32 s54, s27, 15\ns_lshl_b32 s35, s48, 10\ns_add_u32 s54, s54, s35")
    ZF, ZQ = 120, 64
    for d in range(8): a(f"v_cvt_pk_bf16_f32 v{ZF+d}, v{100+2*d}, v{101+2*d}")
    a("s_nop 1")
    for tb in range(4):
        for sg in range(2): mf(ZQ + 16*sg + 4*tb, ZF + 4*sg, EF + 16*sg + 4*tb, "0")
    a("s_nop 7\ns_mov_b32 s27, 0x358637bd")
    for tb in range(4):
        a(f"v_fma_f32 v{ZQ+4*tb}, v{S(0,tb)}, s27, v{ZQ+4*tb}\nv_mul_f32 v{ZQ+4*tb}, v{ZQ+4*tb}, v{S(1,tb)}\nv_fmac_f32 v{ZQ+4*tb}, v{ZQ+16+4*tb}, v{S(0,tb)}")
        a(f"v_rcp_f32 v{ZQ+4*tb}, v{ZQ+4*tb}")
    a("s_nop 0")
    for tb in range(4): a(f"v_mul_f32 v{100+tb}, v{ZQ+4*tb}, v{S(1,tb)}\nv_mul_f32 v{104+tb}, v{ZQ+4*tb}, v{S(0,tb)}")
    def tot_loads():
        for i in range(8): a(f"buffer_load_dwordx4 v[{64+4*i}:{67+4*i}], v30, s[16:19], {'s52' if i < 4 else 's53'} offen offset:{1024*(i%4)} sc1")
    if o.get("early2", 1): tot_loads()
    scale_pack(32, lambda sg, tb: 100 + 4*sg + tb)
    if not o.get("early2", 1): tot_loads()
    tr(a)
    a("s_waitcnt vmcnt(0)")
    retry(3, range(64, 96), tot_loads)
    if diag and not TR_: stamp(a, 6)
    tr(a)
    KF, O = 96, 32
    for sg in range(2):
        for db in range(2):
            for d in range(4):
                r = 64 + 16*sg + 8*(d//2) + 4*db + 2*(d % 2)
                a(f"v_cvt_pk_bf16_f32 v{KF+8*sg+4*db+d}, v{r}, v{r+1}")
    a("s_nop 1")
    for tb in range(4):
        for db in range(2):
            d = O + 8*tb + 4*db
            mf(d, KF + 4*db, EF + 4*tb, "0"); mf(d, KF + 8 + 4*db, EF + 16 + 4*tb, d)
    for tb in range(4):
        for d in range(4): a(f"v_cvt_pk_bf16_f32 v{64+4*tb+d}, v{O+8*tb+2*d}, v{O+8*tb+2*d+1}")
        a(f"buffer_store_dwordx4 v[{64+4*tb}:{67+4*tb}], v30, s[36:39], s54 offen {stfl}\ns_add_u32 s54, s54, 32768")
    if TR_: tr(a); trace_out(a, 255, 1, 16)
    if diag:
        a("s_nop 1" if o.get("nowait") else "s_waitcnt vmcnt(0)"); stamp(a, 2); stamp_out(a, 7, 1, "s32", "s33", 16)
    a(f"L_{name}_done:\ns_endpgm")
    return kernel_head(name) + a.text() + tail.text(), kernel_desc(name, 256 + 96, 256), launch_line(name, 3*SLOT + 4096), (rolled, stats)
if __name__ == "__main__":
    p = gen_k1(diag=True, o={"pf_gu": 1}); print(p[3])
    open("k1.s", "w").write(assemble([p]))
```

```python
from common import *
import gemm16

def gen_k24(which, name=None, diag=False, o={}):
    name = name or f"k{which}_kernel"
    K = 1024 if which == 2 else 3584
    natural = which == 4
    a = Asm()
    a(f"s_cmp_ge_u32 s2, 256\ns_cbranch_scc1 L_{name}_done")
    if diag: stamp(a, 0)
    a(f"s_load_dwordx2 s[28:29], s[0:1], {24 if which == 2 else 56}\ns_load_dwordx2 s[30:31], s[0:1], {0 if which == 2 else 64}\ns_load_dwordx2 s[32:33], s[0:1], 80")
    a("v_lshrrev_b32 v1, 6, v0\nv_and_b32 v0, 63, v0\ns_nop 0\nv_readfirstlane_b32 s20, v1")
    a("s_bfe_u32 s26, s2, 0x20001\ns_lshl_b32 s26, s26, 2\ns_bfe_u32 s27, s2, 0x20003\ns_add_u32 s26, s26, s27")
    a("s_and_b32 s25, s2, 1\ns_lshl_b32 s25, s25, 3\ns_lshr_b32 s27, s2, 5\ns_add_u32 s25, s25, s27")
    a("v_bfe_u32 v16, v0, 4, 2\nv_lshlrev_b32 v16, 1, v16\nv_and_b32 v17, 7, v0\nv_xor_b32 v16, v16, v17\nv_lshlrev_b32 v16, 4, v16")
    if natural: a("v_lshrrev_b32 v17, 5, v0\nv_lshlrev_b32 v17, 3, v17\nv_bfe_u32 v18, v0, 3, 2\nv_add_u32 v17, v17, v18")
    else: a("v_lshrrev_b32 v17, 3, v0")
    a("v_lshl_add_u32 v2, v17, 11, v16")
    for i in range(1, 4):
        k0 = (16*(i & 1) + 4*(i >> 1)) if natural else 8*i
        a(f"v_add_u32 v{2+i}, {k0*2048 - 1024*i}, v2")
    a("s_lshl_b32 s34, s26, 3\ns_lshl_b32 s35, s20, 1\ns_add_u32 s34, s34, s35")
    a(f"s_mul_i32 s21, s34, {K*32}")
    a(f"v_lshlrev_b32 v6, 4, v0\nv_add_u32 v7, {K*32}, v6")
    a("v_lshrrev_b32 v16, 2, v0\nv_lshlrev_b32 v16, 7, v16\nv_bfe_u32 v17, v0, 3, 2\nv_lshlrev_b32 v17, 5, v17\nv_and_b32 v18, 3, v0\nv_lshlrev_b32 v18, 3, v18\nv_add3_u32 v8, v16, v17, v18")
    for sg in range(1, 4): a(f"v_xor_b32 v{8+sg}, {32*sg}, v8")
    a("s_waitcnt lgkmcnt(0)")
    srd(a, 4, "s28", "s29", K*2048)
    ws_srd(a, 8, WS_O if which == 2 else WS_HH, 2048*K*2)
    a("s_lshl_b32 s22, s20, 16\ns_lshl_b32 s36, s25, 7\ns_add_u32 s22, s22, s36")
    a("s_lshl_b32 s23, s20, 12")
    ws_srd(a, 40, WS_SS, WS_KVP - WS_SS)
    c = gemm16.Cfg()
    c.TB, c.NB, c.SPS, c.NST, c.NDMA = 2, 4, 2, K//128, 4
    c.TR = o.get("TR", 4); c.BODY = {4: 2, 8: 4}[c.TR]
    c.LA, c.WR = o.get("LA", 2), 4
    c.PBACK = o.get("PBACK", 8); c.LDS2 = False
    c.acc = lambda j, tb: f"v[{32+4*(2*j+tb)}:{35+4*(2*j+tb)}]"
    c.tokreg = lambda sl, tb, s: f"a[{32+16*sl+8*tb+4*s}:{32+16*sl+8*tb+4*s+3}]"
    c.wreg = lambda sl, s: f"a[{8*sl+4*s}:{8*sl+4*s+3}]"
    wfl = o.get("wflags", "")
    def dma(a, st, i):
        f = []
        if i == 0 and st >= 2 and st % 2 == 0: f.append(lambda: a("s_xor_b32 s23, s23, 0x8000"))
        if i == 0 and st > 0: f.append(lambda: a(f"s_add_u32 s22, s22, {128*2048}"))
        if i == 0: f.append(lambda: a(f"s_add_u32 m0, s23, {(st%2)*16384}"))
        f.append(lambda: a.vmem(f"buffer_load_dwordx4 v{2+i}, s[4:7], s22 offen offset:{1024*i} {wfl} lds", ("dma", st)))
        return f
    c.dma = dma
    def tok(a, t, tb, s):
        f = []
        if t % 2 == 0 and tb == 0 and s == 0 and t > 0: f.append(lambda: a("s_add_u32 s21, s21, 4096"))
        f.append(lambda: a.vmem(f"buffer_load_dwordx4 {c.tokreg(t % c.TR, tb, s)}, v{6+tb}, s[8:11], s21 offen offset:{1024*((2*t+s)%4)}", ("tok", t, tb, s)))
        return f
    c.tok = tok
    def wread(a, st, sis, j, s, rd, sl, tag):
        lo = 8*sl + 4*s + 2*rd
        a.lds(f"ds_read_b64_tr_b16 a[{lo}:{lo+1}], v{8+j} offset:{(st%2)*16384 + (64*sis + 32*s + 16*rd)*128}", tag)
    c.wread = wread
    def on_P(a, st):
        if st % 2 == 1:
            for sg in range(4): a(f"v_xor_b32 v{8+sg}, 0x8000, v{8+sg}")
    c.on_P = on_P
    if which == 2:
        def pro0(a):
            a(f"s_lshl_b32 s44, s20, 10\ns_add_u32 m0, s44, 65536\ns_add_u32 s44, s44, {WS_WB - WS_SS}")
            a.vmem("buffer_load_dwordx4 v6, s[40:43], s44 offen lds", ("dma", 0))
        c.prologue_00 = pro0
        WBR = 32 + 16*c.TR
        def post_block(a, st, sis, j, sl):
            t = st*2 + sis
            if j == 0:
                for s_ in range(2): a.lds(f"ds_read_b128 a[{WBR+4*s_}:{WBR+4*s_+3}], v19 offset:{(t%4)*256 + s_*128}", ("wb", t))
            if j == 3:
                a.wait(lg=[("wb", t)])
                for tb in range(2):
                    for s_ in range(2): a(f"v_mfma_f32_16x16x32_bf16 v[{80+4*tb}:{83+4*tb}], a[{WBR+4*s_}:{WBR+4*s_+3}], {c.tokreg(t % c.TR, tb, s_)}, v[{80+4*tb}:{83+4*tb}]")
                if t % 4 == 3: a("v_add_u32 v19, 1024, v19")
        c.post_block = post_block
    c.tokpos = lambda i: 4*i
    c.dmapos = lambda i: 1 + 5*i
    def pro_mid(a):
        for r in range(32, 64): a(f"v_mov_b32 v{r}, 0")
        if which == 2:
            for r in range(80, 88): a(f"v_mov_b32 v{r}, 0")
            a("v_lshrrev_b32 v16, 4, v0\nv_lshlrev_b32 v16, 5, v16\nv_and_b32 v17, 1, v0\nv_lshl_add_u32 v19, v17, 4, v16\nv_add_u32 v19, 65536, v19")
        srd(a, 12, "s30", "s31", 4<<20)
        ws_srd(a, 16, WS_HC, 4<<20)
        a("v_and_b32 v16, 15, v0\nv_lshlrev_b32 v16, 11, v16\nv_bfe_u32 v17, v0, 4, 1\nv_lshlrev_b32 v17, 5, v17\nv_lshrrev_b32 v18, 5, v0\nv_lshlrev_b32 v18, 4, v18\nv_add3_u32 v12, v16, v17, v18")
        a("v_add_u32 v13, 32768, v12\ns_lshl_b32 s37, s34, 15\ns_lshl_b32 s36, s25, 7\ns_add_u32 s37, s37, s36")
        a("s_lshl_b32 s38, s34, 15\ns_lshl_b32 s36, s25, 11\ns_add_u32 s38, s38, s36\nv_add_u32 v15, 32768, v6")
        a("v_and_b32 v14, 31, v0\nv_lshlrev_b32 v14, 2, v14\ns_lshl_b32 s39, s34, 6")
        if "pf_gu" in o: touch_gu_setup(a, 48, 20, o["pf_rows"], o["pf_r0"])
        if diag: stamp(a, 3); a("s_waitcnt lgkmcnt(0)")
    c.prologue_mid = pro_mid
    side = []
    if which == 2:
        for tb in range(2):
            for u in range(2): side.append(f"buffer_load_dwordx4 v[{64+8*tb+4*u}:{67+8*tb+4*u}], v{12+tb}, s[12:15], s37 offen offset:{64*u}")
        side.append(f"!s_lshl_b32 s44, s34, 7")
        side.append(f"!s_add_u32 s44, s44, {WS_ST1 - WS_SS}")
        side.append(f"!v_and_b32 v16, 15, v0")
        side.append(f"!v_lshlrev_b32 v16, 3, v16")
        for tb in range(2): side.append(f"buffer_load_dword v{98+tb}, v16, s[40:43], s44 offen offset:{128*tb}")
    else:
        for tb in range(2):
            for u in range(2): side.append(f"buffer_load_dwordx4 v[{64+8*tb+4*u}:{67+8*tb+4*u}], v{6 if tb == 0 else 15}, s[16:19], s38 offen offset:{1024*u}")
        side.append(f"!s_add_u32 s44, s39, {WS_M2 - WS_SS}")
        side.append("buffer_load_dword v96, v14, s[40:43], s44 offen")
    def extra(st):
        ex = []
        if st == c.NST - 2: ex += [(16 + k, (lambda s=s: a(s[1:]) if s[0] == "!" else a.vmem(s, ("side",)))) for k, s in enumerate(side)]
        if st == o.get("pf_gu", -1): ex += [(o.get("pf_gap", 20), (lambda s=s: a.vmem(s, ("pf",)))) for s in touch_gu_ops(48, 20, o.get("fl", ""))[:1]]
        return ex
    c.extra = extra
    marks, stats = gemm16.mainloop(a, c)
    rolled = roll(a, marks, f"L_{name}_loop", "s24")
    if diag: stamp(a, 1)
    a.wait(vm=[("side",)]); a("s_waitcnt lgkmcnt(0)")
    acc = lambda nb, tb: 32 + 4*(2*nb + tb)
    if which == 4: a("v_mov_b32 v98, v96\nv_mov_b32 v99, v96\ns_nop 1\nv_permlane16_swap_b32 v98, v99")
    if which == 2:
        for tb in range(2):
            for u in range(2):
                x = 64 + 8*tb + 4*u
                a(f"v_permlane16_swap_b32 v{x}, v{x+2}\nv_permlane16_swap_b32 v{x+1}, v{x+3}")
        a("s_nop 0")
        for tb in range(2): a(f"v_add_f32 v{80+4*tb}, v{80+4*tb}, v{81+4*tb}\nv_add_f32 v{98+tb}, v{98+tb}, v{80+4*tb}")
        a(f"s_cmp_lg_u32 s25, 0\ns_cbranch_scc1 L_{name}_nom\ns_add_u32 s44, s39, {WS_M2 - WS_SS}\nv_lshrrev_b32 v16, 1, v16")
        a(f"buffer_store_dword v98, v16, s[40:43], s44 offen {o.get('stfl', '')}\nbuffer_store_dword v99, v16, s[40:43], s44 offen offset:64 {o.get('stfl', '')}\nL_{name}_nom:")
    for tb in range(2):
        for u in range(2):
            x = 64 + 8*tb + 4*u
            for d in range(4):
                r = acc(2*u + d//2, tb) + 2*(d % 2)
                a(f"v_lshlrev_b32 v100, 16, v{x+d}\nv_and_b32 v101, 0xffff0000, v{x+d}")
                op = "v_sub_f32" if which == 2 else "v_add_f32"
                a(f"{op} v{r}, v{r}, v{98+tb}\n{op} v{r+1}, v{r+1}, v{98+tb}\nv_add_f32 v{r}, v{r}, v100\nv_add_f32 v{r+1}, v{r+1}, v101")
                a(f"v_cvt_pk_bf16_f32 v{x+d}, v{r}, v{r+1}")
            if which == 2:
                a(f"buffer_store_dwordx4 v[{x}:{x+3}], v{6 if tb == 0 else 15}, s[16:19], s38 offen offset:{1024*u} {o.get('stfl', '')}")
            else:
                a(f"s_nop 1\nv_permlane16_swap_b32 v{x}, v{x+2}\nv_permlane16_swap_b32 v{x+1}, v{x+3}")
                a(f"buffer_store_dwordx4 v[{x}:{x+3}], v{12+tb}, s[12:15], s37 offen offset:{64*u} {o.get('stfl', '')}")
    if which == 2:
        for tb in range(2):
            rs = [acc(nb, tb) + r for nb in range(4) for r in range(4)]
            a(f"v_mul_f32 v{102+tb}, v{rs[0]}, v{rs[0]}")
            for r in rs[1:]: a(f"v_fmac_f32 v{102+tb}, v{r}, v{r}")
        a("s_nop 1\nv_permlane16_swap_b32 v102, v103\ns_nop 1\nv_add_f32 v102, v102, v103\nv_mov_b32 v103, v102\ns_nop 1\nv_permlane32_swap_b32 v102, v103\ns_nop 1\nv_add_f32 v102, v102, v103")
        a("s_lshl_b32 s44, s25, 13\ns_add_u32 s44, s44, s39\nbuffer_store_dword v102, v14, s[40:43], s44 offen " + o.get("stfl", ""))
    if diag:
        a("s_nop 1" if o.get("nowait") else "s_waitcnt vmcnt(0)"); stamp(a, 2); stamp_out(a, 4, which, "s32", "s33", 16)
    a(f"L_{name}_done:\ns_endpgm")
    return kernel_head(name) + a.text(), kernel_desc(name, 104 + 40 + 16*c.TR, 104), launch_line(name, 65536 + (4096 if which == 2 else 0)), (rolled, stats)
if __name__ == "__main__":
    import kk0
    ps = [kk0.gen_k0(diag=True), gen_k24(2, diag=True), gen_k24(4, diag=True)]
    print([p[3] for p in ps])
    open("k24.s", "w").write(assemble(ps))
```

```python
from common import *
import gemm16

def gen_k3(name="k3_kernel", diag=False, o={}):
    a = Asm()
    stfl = o.get("stfl", "sc1"); TAIL = o.get("tail", 1); PKF = o.get("pkf", 4); D = o.get("pfd", 8); G0 = o.get("g0", 1)
    TR_ = o.get("trace")
    def tr(a):
        if TR_: trace(a, 15)
    a(f"s_cmp_ge_u32 s2, 256\ns_cbranch_scc1 L_{name}_done")
    if TR_: a("s_mov_b32 s29, 0\nv_mov_b32 v15, 0"); tr(a)
    if diag: stamp(a, 0)
    a("s_load_dwordx4 s[44:47], s[0:1], 40\ns_load_dwordx2 s[32:33], s[0:1], 80\ns_load_dwordx2 s[40:41], s[0:1], 56")
    a("v_lshrrev_b32 v1, 6, v0\nv_and_b32 v0, 63, v0\ns_nop 0\nv_readfirstlane_b32 s20, v1")
    a("s_and_b32 s25, s2, 7\ns_lshr_b32 s26, s2, 3\ns_lshl_b32 s25, s25, 2\ns_and_b32 s27, s26, 3\ns_add_u32 s25, s25, s27\ns_lshr_b32 s26, s26, 2")
    a("s_movk_i32 s27, 6944\nv_lshlrev_b32 v9, 4, v0")
    for i in range(7):
        a(f"v_add_u32 v16, {64*i}, v0\nv_mul_u32_u24 v16, 4682, v16\nv_lshrrev_b32 v16, 16, v16\nv_mad_u32_u24 v{2+i}, v16, s27, v9")
        if i >= 4: a(f"v_add_u32 v{2+i}, 4096, v{2+i}")
    a("s_lshl_b32 s34, s26, 4\ns_lshl_b32 s35, s20, 2\ns_add_u32 s34, s34, s35")
    a("s_lshl_b32 s21, s34, 15")
    a("v_add_u32 v10, 32768, v9\nv_add_u32 v11, 65536, v9\nv_add_u32 v12, 98304, v9")
    a("s_lshr_b32 s35, s20, 1\ns_mul_i32 s22, s35, 229376\ns_mul_i32 s36, s25, 224\ns_add_u32 s22, s22, s36")
    a("s_and_b32 s36, s20, 1\ns_mul_i32 s36, s36, 14336\ns_mul_i32 s23, s35, 7168\ns_add_u32 s23, s23, s36")
    a("s_mov_b32 s6, 7340032\ns_mov_b32 s7, 0x20000")
    a("s_waitcnt lgkmcnt(0)")
    a("s_bitcmp1_b32 s20, 0\ns_cselect_b32 s4, s46, s44\ns_cselect_b32 s5, s47, s45")
    ws_srd(a, 8, WS_HC, 4<<20)
    c = gemm16.Cfg()
    c.TB, c.NB, c.SPS, c.NST, c.NDMA = 4, 14, 1, 16, 7
    c.TR = 2; c.BODY = 2
    c.LA, c.WR = 2, 4
    c.PBACK = 16; c.LDS2 = False; c.first_zero = True
    accr = lambda j, tb: 32 + 4*(4*j+tb)
    c.acc = lambda j, tb: f"v[{accr(j,tb)}:{accr(j,tb)+3}]"
    c.tokreg = lambda sl, tb, s: f"a[{32+32*sl+8*tb+4*s}:{32+32*sl+8*tb+4*s+3}]"
    c.wreg = lambda sl, s: f"a[{8*sl+4*s}:{8*sl+4*s+3}]"
    def dma(a, st, i):
        f = []
        if i == 0 and st >= 2 and st % 2 == 0: f.append(lambda: a("s_xor_b32 s23, s23, 0x10000"))
        if i == 0 and st > 0: f.append(lambda: a(f"s_add_u32 s22, s22, {64*7168}"))
        if i % 4 == 0: f.append(lambda: a(f"s_add_u32 m0, s23, {(st%2)*32768 + i*1024}"))
        f.append(lambda: a.vmem(f"buffer_load_dwordx4 v{2+i}, s[4:7], s22 offen offset:{1024*(i%4)} lds", ("dma", st)))
        return f
    c.dma = dma
    def tok(a, t, tb, s, sl=None):
        f = []
        if t % 2 == 0 and tb == 0 and s == 0 and t > 0: f.append(lambda: a("s_add_u32 s21, s21, 4096"))
        f.append(lambda: a.vmem(f"buffer_load_dwordx4 {c.tokreg(t % 2 if sl is None else sl, tb, s)}, v{9+tb}, s[8:11], s21 offen offset:{1024*((2*t+s)%4)}", ("tok", t, tb, s)))
        return f
    c.tok = tok
    woff = lambda st, j, s, rd: (st%2)*32768 + (j%2)*14336 + (32*s + 16*rd)*224 + (j//2)*32
    def wread(a, st, sis, j, s, rd, sl, tag):
        lo = 8*sl + 4*s + 2*rd
        a.lds(f"ds_read_b64_tr_b16 a[{lo}:{lo+1}], v13 offset:{woff(st, j, s, rd)}", tag)
    c.wread = wread
    def on_P(a, st):
        if st % 2 == 1: a("v_xor_b32 v13, 0x10000, v13")
        if TR_: a.wait_all(vm=False); tr(a)
    c.on_P = on_P
    c.first_P = tr
    c.pos_by_stage = True
    TP, DP = o.get("tp", (4, 4)), o.get("dp", (36, 8))
    DP2 = o.get("dp2", (44, 7))
    def tokpos(i, st):
        if st == 0 and o.get("lazy", 1): return 30 + 4*i
        if st == 13 and TAIL: return 30 + 3*i
        return TP[0] + TP[1]*i
    def dmapos(i, st):
        if st == 0 and o.get("lazy", 1): return 62 + 4*i
        if st == 13 and TAIL: return 4*i
        return DP[0] + DP[1]*i
    c.tokpos, c.dmapos = tokpos, dmapos
    if o.get("lazy", 1): c.lazy1 = lambda i: 4*i
    def pro_mid(a):
        a("v_lshrrev_b32 v16, 2, v0\nv_mul_u32_u24 v16, 224, v16\nv_and_b32 v17, 3, v0\nv_lshl_add_u32 v13, v17, 3, v16")
        ws_srd(a, 12, WS_HH, 2048*3584*2); ws_srd(a, 16, WS_SS, 16*2048*4)
        a("s_lshl_b32 s38, s34, 6\nv_lshlrev_b32 v14, 2, v0")
        a(f"s_lshr_b32 s36, s2, 3\ns_lshl_b32 s36, s36, 1\ns_add_u32 s36, s36, s35\ns_add_u32 s36, s36, {64*D}\ns_mul_i32 s36, s36, 7168\ns_and_b32 s37, s2, 7\ns_mul_i32 s37, s37, 896\ns_add_u32 s36, s36, s37")
        a("s_lshl_b32 s37, s2, 2\ns_add_u32 s37, s37, s20\ns_mul_i32 s37, s37, 896\ns_mov_b32 s42, 7340032\ns_mov_b32 s43, 0x20000")
        a(f"s_add_u32 s48, s36, {(15-D)*64*7168}\ns_mov_b32 s49, s37\ns_sub_u32 s37, s37, {6*917504}")
        a("v_min_u32 v1, 6, v0\nv_lshlrev_b32 v1, 7, v1")
        if diag: stamp(a, 3); a("s_waitcnt lgkmcnt(0)")
    c.prologue_mid = pro_mid
    V = lambda s, tag: (lambda: a.vmem(s, tag))
    X = lambda s: (lambda: a(s))
    def extra(st):
        ex = []
        g = o.get("pfgap", 90)
        if o.get("pf", 3) & 1 and G0 <= st < 12:
            ex += [(g, V("buffer_load_dword a128, v1, s[4:7], s36 offen", ("pf",))), (g+2, X(f"s_add_u32 s36, s36, {64*7168}")), (g+2, X("s_min_u32 s36, s36, s48"))]
        if o.get("pf", 3) & 2 and 1 <= st < 14:
            ex += [(g-3, X("s_add_u32 s37, s37, 917504")), (g-3, X("s_max_i32 s39, s37, s49")), (g, V("buffer_load_dword a129, v1, s[40:43], s39 offen", ("pf",)))]
        if st == 1:
            for i in range(16):
                ex.append((2 + 5*i, V(f"buffer_load_dword v{16+i}, v14, s[16:19], s38 offen", ("ss",))))
                if i < 15: ex.append((2 + 5*i, X("s_add_u32 s38, s38, 8192")))
        if st == 13 and TAIL:
            for i in range(8):
                for fn in tok(a, 15, i//2, i%2, 2): ex.append((56 + 3*i, fn))
        return ex
    c.extra = extra
    pre = Asm()
    for st_ in (8, 4, 2, 1):
        for i in range(st_): pre(f"v_add_f32 v{16+i}, v{16+i}, v{16+i+st_}")
    pre("v_mov_b32 v17, 0x3727c5ac\nv_fmac_f32 v17, 0x3a800000, v16\nv_sqrt_f32 v24, v17\nv_rsq_f32 v16, v17")
    pre("s_nop 0\nv_mul_f32 v16, 0xbfb8aa3b, v16")
    for b in (16, 24):
        pre(f"v_mov_b32 v{b+4}, v{b}\ns_nop 1\nv_permlane32_swap_b32 v{b}, v{b+4}\ns_nop 1\nv_mov_b32 v{b+2}, v{b}\nv_mov_b32 v{b+6}, v{b+4}\ns_nop 1")
        pre(f"v_permlane16_swap_b32 v{b}, v{b+2}\nv_permlane16_swap_b32 v{b+4}, v{b+6}")
    pre("v_and_b32 v2, 15, v0\nv_lshlrev_b32 v2, 4, v2\nv_bfe_u32 v3, v0, 4, 1\nv_mul_u32_u24 v3, 114688, v3\nv_lshrrev_b32 v4, 5, v0\nv_lshlrev_b32 v4, 8, v4\nv_add3_u32 v2, v2, v3, v4")
    pre("v_add_u32 v3, 229376, v2")
    pre("s_mul_i32 s35, s34, 114688\ns_mul_i32 s38, s25, 3584\ns_add_u32 s35, s35, s38")
    def gate_ops(fb, tb):
        g = accr(2*fb, tb); L = []; PK = fb >= PKF
        if PK:
            L += [(f"v_pk_mul_f32 v[{g+2*h}:{g+2*h+1}], v[{g+2*h}:{g+2*h+1}], v[{16+2*tb}:{17+2*tb}] op_sel_hi:[1,0]", 4) for h in range(2)]
            L += [(f"v_exp_f32 v{g+r}, v{g+r}", 8) for r in range(4)]
            L += [(f"v_pk_fma_f32 v[{g+2*h}:{g+2*h+1}], v[{g+2*h}:{g+2*h+1}], v[{24+2*tb}:{25+2*tb}], v[{24+2*tb}:{25+2*tb}] op_sel_hi:[1,0,0]", 4) for h in range(2)]
        else:
            L += [(f"v_mul_f32 v{g+r}, v{16+2*tb}, v{g+r}", 4) for r in range(4)]
            L += [(f"v_exp_f32 v{g+r}, v{g+r}", 8) for r in range(4)]
            L += [(f"v_fma_f32 v{g+r}, v{g+r}, v{24+2*tb}, v{24+2*tb}", 4) for r in range(4)]
        L += [(f"v_rcp_f32 v{g+r}, v{g+r}", 8) for r in range(4)]
        return L
    def fin_ops(fb, tp):
        gs = [accr(2*fb, 2*tp+x) for x in range(2)]; us = [accr(2*fb+1, 2*tp+x) for x in range(2)]; d = us[0]; L = []; PK = fb >= PKF
        for x in range(2):
            if PK: L += [(f"v_pk_mul_f32 v[{gs[x]+2*h}:{gs[x]+2*h+1}], v[{gs[x]+2*h}:{gs[x]+2*h+1}], v[{us[x]+2*h}:{us[x]+2*h+1}]", 4) for h in range(2)]
            else: L += [(f"v_mul_f32 v{gs[x]+r}, v{gs[x]+r}, v{us[x]+r}", 4) for r in range(4)]
        L += [(f"v_cvt_pk_bf16_f32 v{d}, v{gs[0]}, v{gs[0]+1}", 4), (f"v_cvt_pk_bf16_f32 v{d+2}, v{gs[1]}, v{gs[1]+1}", 4),
              (f"v_cvt_pk_bf16_f32 v{d+1}, v{gs[0]+2}, v{gs[0]+3}", 4), (f"v_cvt_pk_bf16_f32 v{d+3}, v{gs[1]+2}, v{gs[1]+3}", 4), ("s_nop 0", 4),
              (f"v_permlane16_swap_b32 v{d}, v{d+2}", 8), (f"v_permlane16_swap_b32 v{d+1}, v{d+3}", 8),
              (f"buffer_store_dwordx4 v[{d}:{d+3}], v{2+tp}, s[12:15], s35 offen offset:{512*fb} {stfl}", 4)]
        return L
    if TAIL:
        c.NRUN = 14
        twreg = lambda sl, s: 132 + 16*sl + 4*s
        def tread(j, s, rd):
            lo = twreg(j % 3, s) + 2*rd
            return lambda: a.lds(f"ds_read_b64_tr_b16 a[{lo}:{lo+1}], v13 offset:{woff(s//2, j, s%2, rd)}", ("tw", j))
        treads = lambda j: [tread(j, s, rd) for s in range(4) for rd in range(2)]
        c.tail_reads = treads(0)
        c.P_wait = lambda st: [("dma", 15)] if st == 13 else []
        def idle(st):
            if st != 12: return []
            na = len(pre.lines) - 11
            L = [l for l in pre.lines[:na] if not l.startswith("s_nop")]
            return [(0, lambda: a.wait(vm=[("ss",)]))] + [(0, X(l + ("\ns_nop 0" if l.startswith("v_mov") else ""))) for l in L] + [(112 + 40, X(l)) for l in pre.lines[na:]]
        c.idle = idle
    marks, stats = gemm16.mainloop(a, c)
    rolled = roll(a, marks, f"L_{name}_loop", "s24")
    if TAIL:
        q = []
        for fb in range(7):
            for tp in range(2):
                if fb > 0: q += [([(2*fb-1, 2*tp), (2*fb-1, 2*tp+1)], l, cst) for l, cst in fin_ops(fb-1, tp)]
            for tb in range(4): q += [([(2*fb, tb)], l, cst) for l, cst in gate_ops(fb, tb)]
        for tp in range(2): q += [([(13, 2*tp), (13, 2*tp+1)], l, cst) for l, cst in fin_ops(6, tp)]
        rate = o.get("rate", sum(x[2] for x in q) / (14*16 - 6))
        done = {}; credit = 0.0; rq = []
        for j in range(14):
            if j + 1 < 14: rq += treads(j + 1)
            for m in range(16):
                CH = o.get("chain", 4)
                if CH == 4: tb, s = divmod(m, 4); s = s if tb % 2 == 0 else 3 - s; last = m % 4 == 3
                elif CH == 1: s, tb = divmod(m, 4); last = s == 3
                elif CH == 2: tb = (m // 8)*2 + m % 2; s = (m % 8)//2; last = s == 3
                if m == 0: a.wait(vm=[("tok", t, x, y) for t in (14, 15) for x in range(4) for y in range(2)] if j == 0 else [], lg=[("tw", j)])
                a(f"v_mfma_f32_16x16x32_bf16 {c.acc(j, tb)}, a[{twreg(j%3, s)}:{twreg(j%3, s)+3}], {c.tokreg(2*(s//2), tb, s%2)}, {c.acc(j, tb)}")
                if last: done[(j, tb)] = a.mark()
                rd_ = rq and m < 12 and (m % 3 != 2)
                if rd_: rq.pop(0)()
                credit = min(credit + rate, 2*rate)
                if o.get("strict", 12): credit = o.get("strict", 12) - (4 if rd_ else 0) - (4 if m == 15 else 0)
                while q and (credit >= q[0][2] if o.get("strict", 12) else credit > 0) and all(n in done and a.mark() - done[n] >= 8 for n in q[0][0]):
                    _, l, cst = q.pop(0); a(l); credit -= cst
            assert not rq
        if diag: stamp(a, 1)
        tr(a)
        for need, l, cst in q:
            gap = min(a.mark() - done[n] for n in need)
            if gap < 8: a(f"s_nop {7 - gap}"); done = {k: -99 for k in done}
            a(l)
    else:
        if diag: stamp(a, 1)
        tr(a)
        a.wait(vm=[("ss",)])
        a.lines += pre.lines
        for fb in range(7):
            for tp in range(2):
                g0, g1 = gate_ops(fb, 2*tp), gate_ops(fb, 2*tp+1)
                for x, y in zip(g0, g1): a(x[0]); a(y[0])
                for l, _ in fin_ops(fb, tp): a(l)
    if TR_: tr(a); trace_out(a, 15, 3, 14)
    if diag:
        a("s_nop 1" if o.get("nowait") else "s_waitcnt vmcnt(0)"); stamp(a, 2); stamp_out(a, 4, 3, "s32", "s33", 14)
    a(f"L_{name}_done:\ns_endpgm")
    return kernel_head(name) + a.text(), kernel_desc(name, 256 + 184, 256), launch_line(name, 131072), (rolled, stats)
if __name__ == "__main__":
    for t in (0, 1):
        p = gen_k3(diag=True, o={"tail": t}); print(p[3])
        open("k3.s", "w").write(assemble([p]))
```

```python
import sys
from common import *
import kk1, kk24, kk3
NAME = "sequential_preLN__linear_kernel_hedgehog__glu_gated_glu__prompt"
def header():
    ref = open(f"cdna_kernels/{NAME}.s.ref").read().split("\n")
    return "\n".join(l for l in ref if l.startswith(";") and "@launch" not in l and "Override" not in l and "grid=ceil" not in l) + "\n"
DEF = {"k1": {"pf_gu": 1, "pf_rows": 8}, "k2": {"stfl": "sc1"}, "k3": {"pfd": 8}, "k4": {"stfl": "sc1"}}
def build(diag=False, o=DEF):
    ps = [kk1.gen_k1(diag=diag, o=o.get("k1", {})), kk24.gen_k24(2, diag=diag, o=o.get("k2", {})),
          kk3.gen_k3(diag=diag, o=o.get("k3", {})), kk24.gen_k24(4, diag=diag, o=o.get("k4", {}))]
    return ps
if __name__ == "__main__":
    out = sys.argv[1] if len(sys.argv) > 1 else f"cdna_kernels/{NAME}.s"
    open(out, "w").write(assemble(build(), header()))
    print("wrote", out)
```

```python
from build import *
KN = NAME + "_kernel"
def gbar(a, ph, inv=True):
    a("s_mov_b64 exec, -1\ns_waitcnt vmcnt(0) lgkmcnt(0)\ns_barrier")
    ws_srd(a, 4, WS_GF + 4096*ph, 4096)
    a(f"v_and_b32 v0, 63, v0\ns_lshl_b32 s8, s20, 6\nv_or_b32 v0, s8, v0\nv_lshlrev_b32 v1, 4, v0\nv_mov_b32 v2, 1\ns_lshl_b32 s8, s2, 4")
    a(f"s_cmp_lg_u32 s20, 0\ns_cbranch_scc1 L_gb{ph}_a\ns_mov_b64 exec, 1\nbuffer_store_dword v2, v1, s[4:7], s8 offen sc1\ns_mov_b64 exec, -1\nL_gb{ph}_a:")
    a(f"s_mov_b32 s9, 0x20000\nL_gb{ph}_b:\nbuffer_load_dword v2, v1, s[4:7], 0 offen sc1\ns_waitcnt vmcnt(0)\nv_cmp_ne_u32 vcc, 1, v2\ns_sub_u32 s9, s9, 1")
    a(f"s_cbranch_vccz L_gb{ph}_c\ns_cmp_lg_u32 s9, 0\ns_cbranch_scc1 L_gb{ph}_b\nL_gb{ph}_c:\ns_barrier")
    if inv: a("buffer_inv sc1\ns_waitcnt vmcnt(0)\ns_barrier")
def mega(diag=False, o=DEF, spin=False, name=KN, aslist=False, inv=True):
    ps = build(diag, o)
    a = Asm(); tails = []
    a("s_cmp_ge_u32 s2, 256\ns_cbranch_scc1 L_done")
    for i, p in enumerate(ps):
        L = p[0].split("\n")[4:]
        assert L[0].startswith("s_cmp_ge_u32 s2, 256")
        e = L.index("s_endpgm")
        a.lines += L[2:e-1]; tails += [l for l in L[e+1:] if l]
        if i < 3: gbar(a, i, inv)
    if spin:
        a("s_mov_b64 exec, -1\ns_waitcnt vmcnt(0)\ns_cmp_lg_u32 s2, 0\ns_cbranch_scc1 L_done\ns_memrealtime s[8:9]")
        a(f"s_add_u32 s32, s32, {WS_STAMP + 65536}\ns_addc_u32 s33, s33, 0\ns_load_dword s10, s[32:33], 0 glc\ns_waitcnt lgkmcnt(0)")
        a(f"s_sub_u32 s11, s8, s10\ns_min_u32 s11, s11, 20000")
        a("L_z_spin:\ns_memrealtime s[12:13]\ns_waitcnt lgkmcnt(0)\ns_sub_u32 s12, s12, s8\ns_cmp_lt_u32 s12, s11\ns_cbranch_scc1 L_z_spin")
    a("L_done:\ns_endpgm"); a.lines += tails
    ll = launch_line(name, 131072) if aslist else "; @launch grid=(256,1,1) block=(256,1,1) lds=131072\n"
    return kernel_head(name) + a.text(), kernel_desc(name, 512, 256), ll, None
if __name__ == "__main__":
    B = {k: {**v, "nowait": 1} for k, v in DEF.items()}
    w = lambda fn, p: open(f"var/{fn}.s", "w").write(assemble([p], header()))
    w("m_plain", mega()); w("m_diag", mega(True, B)); w("m_spin", mega(True, B, True))
    w("m_list", mega(aslist=True))
    open("a_base.s", "w").write(assemble(build(), header()))
```

```python
from asmlib import *
import os
WS_O, WS_HC, WS_HH = (0, 26<<20, 0) if os.environ.get('REUSE', '1') == '1' else (0, 4<<20, 8<<20)
WS_SS   = 24<<20
WS_ST1  = WS_SS + (128<<10)
WS_M2   = WS_ST1 + (16<<10)
WS_WB   = WS_M2 + (8<<10)
WS_FLAG = WS_WB + (4<<10)
WS_GF   = WS_FLAG + (4<<10)
WS_CS   = WS_WB + (20<<10)
WS_ZP   = WS_CS + (256<<10)
WS_KVT  = WS_ZP + (128<<10)
WS_KVP  = 26<<20
WS_END  = 30<<20
WS_XB   = 30<<20
WS_STAMP = 40<<20
def stamp(a, idx):
    a(f"s_memrealtime s[{64+4*idx}:{65+4*idx}]\ns_memtime s[{66+4*idx}:{67+4*idx}]")
def stamp_out(a, n, kid, wsl, wsh, vt, swave="s20"):
    a(f"s_add_u32 s56, {wsl}, {WS_STAMP + kid*65536}\ns_addc_u32 s57, {wsh}, 0\ns_mov_b32 s58, 65536\ns_mov_b32 s59, 0x20000")
    a(f"s_lshl_b32 s60, s2, 8\ns_lshl_b32 s61, {swave}, 6\ns_add_u32 s60, s60, s61\nv_mov_b32 v{vt}, s60")
    a("s_waitcnt lgkmcnt(0)\ns_mov_b64 exec, 1")
    for i in range(n): a(f"v_mov_b32 v{32+2*i}, s{64+4*i}\nv_mov_b32 v{33+2*i}, s{66+4*i}")
    for i in range(0, n, 2): a(f"buffer_store_dwordx4 v[{32+2*i}:{35+2*i}], v{vt}, s[56:59], 0 offen offset:{8*i}")
def ws_srd(a, r, off, nbytes, lo="s32", hi="s33"):
    a(f"s_add_u32 s{r}, {lo}, {off}\ns_addc_u32 s{r+1}, {hi}, 0\ns_mov_b32 s{r+2}, {nbytes}\ns_mov_b32 s{r+3}, 0x20000")
def assemble(parts, header=""):
    return header + "".join(p[2] for p in parts) + '.amdgcn_target "amdgcn-amd-amdhsa--gfx950"\n.text\n' + "".join(p[0] for p in parts) + 'L_code_end:\n.section .rodata,"a"\n' + "".join(p[1] for p in parts)
def launch_line(name, lds, grid=256, block=256):
    return f"; @launch kernel={name} grid=({grid},1,1) block=({block},1,1) lds={lds}\n"

def touch_gu_setup(a, sr, vr, R=16, R0=0, karg="s[0:1]"):
    a(f"s_and_b32 s{sr+4}, s20, 1\ns_lshl_b32 s{sr+4}, s{sr+4}, 3\ns_add_u32 s{sr+4}, s{sr+4}, 40")
    a(f"s_load_dwordx2 s[{sr}:{sr+1}], {karg}, s{sr+4}")
    a(f"s_lshr_b32 s{sr+4}, s2, 3\ns_lshl_b32 s{sr+4}, s{sr+4}, 1\ns_lshr_b32 s{sr+5}, s20, 1\ns_add_u32 s{sr+4}, s{sr+4}, s{sr+5}\ns_mul_i32 s{sr+4}, s{sr+4}, {R*7168}")
    a(f"s_and_b32 s{sr+5}, s2, 7\ns_mul_i32 s{sr+5}, s{sr+5}, 896\ns_add_u32 s{sr+4}, s{sr+4}, s{sr+5}\ns_add_u32 s{sr+4}, s{sr+4}, {R0*64*7168}\ns_add_u32 s{sr+5}, s{sr+4}, {8*7168}")
    a(f"v_lshrrev_b32 v{vr}, 3, v0\nv_min_u32 v{vr}, {min(R,8)-1}, v{vr}\nv_mul_u32_u24 v{vr}, 7168, v{vr}\nv_and_b32 v{vr+1}, 7, v0\nv_min_u32 v{vr+1}, 6, v{vr+1}\nv_lshl_add_u32 v{vr}, v{vr+1}, 7, v{vr}")
    a(f"s_waitcnt lgkmcnt(0)\ns_mov_b32 s{sr+2}, 7340032\ns_mov_b32 s{sr+3}, 0x20000")
def touch_gu_ops(sr, vr, fl=""):
    return [f"buffer_load_dword v{vr+1}, v{vr}, s[{sr}:{sr+3}], s{sr+4} offen {fl}", f"buffer_load_dword v{vr+2}, v{vr}, s[{sr}:{sr+3}], s{sr+5} offen {fl}"]
def touch_wd_setup(a, sr, vr):
    a(f"s_load_dwordx2 s[{sr}:{sr+1}], s[0:1], 56")
    a(f"s_lshl_b32 s{sr+4}, s2, 2\ns_add_u32 s{sr+4}, s{sr+4}, s20\ns_mul_i32 s{sr+4}, s{sr+4}, 7168")
    a(f"v_min_u32 v{vr}, 55, v0\nv_lshlrev_b32 v{vr}, 7, v{vr}")
    a(f"s_waitcnt lgkmcnt(0)\ns_mov_b32 s{sr+2}, 7340032\ns_mov_b32 s{sr+3}, 0x20000")
def touch_wd_ops(sr, vr, fl=""):
    return [f"buffer_load_dword v{vr+1}, v{vr}, s[{sr}:{sr+3}], s{sr+4} offen {fl}"]

WS_TRACE = 44<<20
def trace(a, vreg, sidx="s29", st="s[90:91]", lo="s90"):
    a(f"s_memtime {st}\ns_waitcnt lgkmcnt(0)\ns_lshl_b64 exec, 1, {sidx}\nv_mov_b32 v{vreg}, {lo}\ns_mov_b64 exec, -1\ns_add_u32 {sidx}, {sidx}, 1")
def trace_out(a, vreg, kid, vt):
    a(f"s_add_u32 s56, s32, {WS_TRACE + kid*(1<<18)}\ns_addc_u32 s57, s33, 0\ns_mov_b32 s58, {1<<18}\ns_mov_b32 s59, 0x20000")
    a(f"s_lshl_b32 s60, s2, 10\ns_lshl_b32 s61, s20, 8\ns_add_u32 s60, s60, s61\nv_lshlrev_b32 v{vt}, 2, v0")
    a(f"buffer_store_dword v{vreg}, v{vt}, s[56:59], s60 offen\ns_waitcnt vmcnt(0)")

def code_touch_setup(a, uid, first, last, sr, vr, per):
    a(f"s_getpc_b64 s[{sr}:{sr+1}]\nL_pc_{uid}:\ns_add_u32 s{sr}, s{sr}, {first}-L_pc_{uid}\ns_addc_u32 s{sr+1}, s{sr+1}, 0")
    a(f"s_lshr_b32 s{sr+2}, s2, 3\ns_lshl_b32 s{sr+2}, s{sr+2}, 2\ns_add_u32 s{sr+2}, s{sr+2}, s20\ns_mul_i32 s{sr+2}, s{sr+2}, {per}")
    a(f"v_min_u32 v{vr}, {per-1}, v0\nv_add_u32 v{vr}, s{sr+2}, v{vr}\nv_lshlrev_b32 v{vr}, 7, v{vr}\nv_min_u32 v{vr}, {last}-{first}-4, v{vr}")
    a(f"v_mov_b32 v{vr+1}, s{sr+1}\nv_add_co_u32 v{vr}, vcc, s{sr}, v{vr}\ns_nop 1\nv_addc_co_u32 v{vr+1}, vcc, 0, v{vr+1}, vcc")
def code_touch_op(vr, dst): return f"global_load_dword {dst}, v[{vr}:{vr+1}], off"
```

```python
from asmlib import *

class Cfg:
    tok_lds = False
    drain_at_P = False
    CAP = 2
    first_zero = False
    def swap(self, j): return False
    def on_P(self, a, st): pass
    def prologue_mid(self, a): pass
    def extra(self, st): return []
    def fixed(self, st): return []
    def P_wait(self, st): return []
    def idle(self, st): return []
    def post_block(self, a, st, sis, j, sl): pass
    def prologue_00(self, a): pass
    def first_P(self, a): pass
    def prologue_0(self, a): pass
    own_stage1 = None
    LEAD = 2
    PRE = 0
    def barrier_at(self, st): return True
    def drain_at(self, st): return self.drain_at_P
    def first_tok(self, a): pass
    pos_by_stage = False
    lazy1 = None
    NRUN = None
    tail_reads = ()
    tokwait = None

def mainloop(a, c, last_stage=None):
    TB, NB, SPS, NST = c.TB, c.NB, c.SPS, c.NST
    G = 2 * TB
    gps = NB * G
    gpst = SPS * gps
    nsteps = SPS * NST
    NRUN = c.NRUN or NST
    nblk = SPS * NRUN * NB
    Pg = lambda st: (st + 1) * gpst - c.PBACK if st >= 0 else -10**9
    lq = []
    def mk_w(n, s, rd):
        step, j = divmod(n, NB); st, sis = divmod(step, SPS)
        return lambda: c.wread(a, st, sis, j, s, rd, n % c.WR, ("w", n, s))
    def mk_tl(t, tb, s):
        st, sis = divmod(t, SPS)
        return lambda: c.tokread(a, st, sis, tb, s, t % 2, ("tok", t, tb, s))
    for n in range(nblk):
        step, j = divmod(n, NB); st = step // SPS
        e = max((n - c.LA) * G, Pg(st - 1))
        ws = [(e, mk_w(n, s, rd)) for s in range(2) for rd in range(2)]
        if c.tok_lds and j == 0:
            et = max((step - 1) * gps + c.tok_early, Pg(st - 1))
            tl = [(et, mk_tl(step, tb, (s ^ (tb % 2)))) for tb in range(TB) for s in range(2)]
            lq += ws[:2] + tl[:1] + ws[2:] + tl[1:]
        else: lq += ws
    lq += [(Pg(NRUN - 1), fn) for fn in c.tail_reads]
    vq = []
    for st in range(NRUN):
        ops = []
        if st == 0 and c.lazy1:
            for i in range(c.NDMA):
                for fn in c.dma(a, 1, i): ops.append((c.lazy1(i), len(ops), fn))
        if c.PRE <= st + c.LEAD < NST:
            for i in range(c.NDMA):
                g = st * gpst + (c.dmapos(i, st) if c.pos_by_stage else c.dmapos(i))
                assert Pg(st - 1) <= g < Pg(st), (st, i, g)
                for k, fn in enumerate(c.dma(a, st + c.LEAD, i)): ops.append((g, len(ops), fn))
        if not c.tok_lds:
            for sis in range(SPS):
                t0 = st * SPS + sis; t = t0 + c.TR - 1
                if t < nsteps:
                    for i in range(G):
                        tb, s = divmod(i, 2)
                        g = t0 * gps + (c.tokpos(i, st) if c.pos_by_stage else c.tokpos(i))
                        for fn in c.tok(a, t, tb, s): ops.append((g, len(ops), fn))
        for g, fn in c.extra(st): ops.append((st * gpst + g, len(ops), fn))
        vq += [(g, st, k, fn) for g, k, fn in ops]
    vq.sort(key=lambda x: x[:3])
    vq = [(g, fn) for g, _, _, fn in vq]
    iq = [(st * gpst + g, fn) for st in range(NRUN) for g, fn in c.idle(st)]
    fx = {}
    for st in range(NRUN):
        for g, fn in c.fixed(st): fx.setdefault(st * gpst + g, []).append(fn)
    def run(fns):
        for k, fn in enumerate(fns):
            fn()
    def dma_all(st):
        for i in range(c.NDMA):
            fns = c.dma(a, st, i)
            for k, fn in enumerate(fns):
                if k == len(fns) - 1 and k > 0 and "m0" in a.lines[-1]: a("s_nop 0")
                fn()
    c.prologue_00(a)
    assert c.PRE == 0 and c.LEAD == 2 or c.PRE >= c.LEAD
    if not c.PRE: dma_all(0)
    if not c.tok_lds:
        for t in range(min(SPS, c.TR - 1)):
            for tb in range(TB):
                for s in range(2): run(c.tok(a, t, tb, s))
    c.prologue_0(a)
    if c.own_stage1: c.own_stage1(a, [c.dma(a, 1, i) for i in range(c.NDMA)])
    elif not c.lazy1 and not c.PRE: dma_all(1)
    if not c.tok_lds:
        for t in range(SPS, c.TR - 1):
            for tb in range(TB):
                for s in range(2): run(c.tok(a, t, tb, s))
    c.prologue_mid(a)
    if not c.PRE:
        a.wait(vm=[("dma", 0)])
        a("s_barrier")
    c.first_P(a)
    li = 0; vi = 0
    while li < len(lq) and lq[li][0] < 0: lq[li][1](); li += 1
    marks = []
    stats = {"over": 0}
    total = nblk * G
    for g in range(total):
        n, m = divmod(g, G); step, j = divmod(n, NB); st = step // SPS
        if g % (gpst * c.BODY) == 0: marks.append(a.mark())
        if g == Pg(st) and st + 1 < NST:
            if c.barrier_at(st):
                nxt = st + 1
                while nxt + 1 < NST and not c.barrier_at(nxt): nxt += 1
                need = [("dma", x) for x in range(st + 1, nxt + 1) if x >= c.PRE]
                for t_ in need: assert a.vm.count(t_) == c.NDMA, t_
                if c.drain_at(st):
                    assert lq[li][0] >= g, "reads of the current stage still pending at P"
                    a.wait(vm=need + c.P_wait(st), lg=[a.lg[-1]])
                else: a.wait(vm=need + c.P_wait(st))
                a("s_barrier")
            c.on_P(a, st)
        tb = m // 2; s = (m % 2) ^ (tb % 2)
        need_w = [("w", n, 0), ("w", n, 1)] if m == 0 else []
        need_t = [("tok", step, tb, s)] if j == 0 else []
        if c.tok_lds and c.tokwait is not None and j == 0:
            need_t = [("tok", step, x, y) for x in c.tokwait.get(m, []) for y in range(2)]
        if not c.tok_lds and need_t: need_t = [("tok", step, x, y) for x in range(TB) for y in range(2)]
        for tag in need_w + (need_t if c.tok_lds else []):
            while tag not in a.lg or (tag[0] == "w" and a.lg.count(tag) < 2):
                assert lq[li][0] <= g, "deadline before earliest"
                lq[li][1](); li += 1; stats["over"] += 1
        if c.tok_lds: a.wait(lg=need_w + need_t)
        else: a.wait(vm=need_t, lg=need_w)
        if g == 0: c.first_tok(a)
        A_, B_ = c.wreg(n % c.WR, s), c.tokreg(step % (2 if c.tok_lds else c.TR), tb, s)
        if c.swap(j): A_, B_ = B_, A_
        C_ = "0" if (c.first_zero and step == 0 and m % 2 == 0) else c.acc(j, tb)
        a(f"v_mfma_f32_16x16x32_bf16 {c.acc(j, tb)}, {A_}, {B_}, {C_}")
        cap = c.CAP - (1 if (m == G - 1) else 0)
        used = 0
        for fn in fx.get(g, []): fn(); used += 1
        if li < len(lq) and lq[li][0] <= g and used < cap:
            lq[li][1](); li += 1; used += 1
        if vi < len(vq) and vq[vi][0] <= g and used < cap:
            vq[vi][1](); vi += 1; used += 1
        if used == 0 and iq and iq[0][0] <= g: iq.pop(0)[1]()
        if m == G - 1: c.post_block(a, st, step % SPS, j, n % c.WR)
        if c.LDS2 and li < len(lq) and lq[li][0] <= g and used < cap:
            lq[li][1](); li += 1; used += 1
    assert not iq, len(iq)
    assert li == len(lq) and vi == len(vq), (li, len(lq), vi, len(vq))
    marks.append(a.mark())
    return marks, stats
```

```python
from common import *
import gemm16
SLOT = 40960
L_WPHI = 3*SLOT
L_PH = SLOT
L_VB = SLOT + 32768
LOG2E = "0x3fb8aa3b"
SPIN = 0x20000

def rs4(a, r, op):
    a(f"s_nop 1\nv_permlane16_swap_b32 v{r}, v{r+1}\nv_permlane16_swap_b32 v{r+2}, v{r+3}\ns_nop 0")
    a(f"{op} v{r}, v{r}, v{r+1}\n{op} v{r+2}, v{r+2}, v{r+3}\ns_nop 1\nv_permlane32_swap_b32 v{r}, v{r+2}\ns_nop 0\n{op} v{r}, v{r}, v{r+2}")
def bc4(a, r):
    a(f"v_mov_b32 v{r+2}, v{r}\ns_nop 1\nv_permlane32_swap_b32 v{r}, v{r+2}\ns_nop 0\nv_mov_b32 v{r+1}, v{r}\nv_mov_b32 v{r+3}, v{r+2}\ns_nop 1")
    a(f"v_permlane16_swap_b32 v{r}, v{r+1}\nv_permlane16_swap_b32 v{r+2}, v{r+3}")
def rowsum16(a, regs):
    for k, mod in enumerate(("quad_perm:[1,0,3,2]", "quad_perm:[2,3,0,1]", "row_half_mirror", "row_mirror")):
        a("s_nop 1" if k == 0 or len(regs) < 2 else "s_nop 0")
        for r in regs: a(f"v_add_f32_dpp v{r}, v{r}, v{r} {mod} row_mask:0xf bank_mask:0xf")
def allreduce64(a, regs, tmp):
    rowsum16(a, regs)
    for op in ("v_permlane16_swap_b32", "v_permlane32_swap_b32"):
        for r, t in zip(regs, tmp): a(f"v_mov_b32 v{t}, v{r}")
        a("s_nop 1")
        for r, t in zip(regs, tmp): a(f"{op} v{r}, v{t}")
        for r, t in zip(regs, tmp): a(f"v_add_f32 v{r}, v{r}, v{t}")
def umax(a, dst, regs):
    regs = list(regs)
    a(f"v_max3_u32 v{dst}, v{regs[0]}, v{regs[1]}, v{regs[2]}"); regs = regs[3:]
    while len(regs) >= 2: a(f"v_max3_u32 v{dst}, v{dst}, v{regs[0]}, v{regs[1]}"); regs = regs[2:]
    if regs: a(f"v_max_u32 v{dst}, v{dst}, v{regs[0]}")

def gen_k1(name="k1_kernel", diag=False, o={}):
    a = Asm(); tail = Asm()
    NPH = o.get("NPH", 4); xfl, wfl, stfl = o.get("xfl", ""), o.get("wfl", ""), o.get("stfl", "sc1")
    a(f"s_cmp_ge_u32 s2, 256\ns_cbranch_scc1 L_{name}_done")
    TR_ = o.get("trace")
    def tr(a):
        if TR_: trace(a, 255)
    if TR_: a("s_mov_b32 s29, 0\nv_mov_b32 v255, 0"); tr(a)
    if diag: stamp(a, 0)
    a("s_load_dwordx8 s[92:99], s[0:1], 0\ns_load_dwordx2 s[30:31], s[0:1], 72\ns_load_dwordx2 s[32:33], s[0:1], 80")
    a("v_lshrrev_b32 v1, 6, v0\nv_lshlrev_b32 v31, 2, v0\nv_and_b32 v0, 63, v0\nv_readfirstlane_b32 s20, v1")
    if o.get("map", "2x4") == "2x4":
        a("s_and_b32 s26, s2, 1\ns_lshl_b32 s26, s26, 3\ns_bfe_u32 s27, s2, 0x30003\ns_add_u32 s26, s26, s27")
        a("s_bfe_u32 s25, s2, 0x20001\ns_lshl_b32 s25, s25, 2\ns_lshr_b32 s27, s2, 6\ns_add_u32 s25, s25, s27")
    else:
        a("s_bfe_u32 s26, s2, 0x40003\ns_and_b32 s25, s2, 7\ns_lshl_b32 s25, s25, 1\ns_lshr_b32 s27, s2, 7\ns_add_u32 s25, s25, s27")
    a("s_and_b32 s46, s20, 1\ns_lshr_b32 s47, s20, 1\nv_lshlrev_b32 v30, 4, v0")
    a("s_lshl_b32 s51, s26, 6\ns_lshl_b32 s27, s25, 2\ns_add_u32 s51, s51, s27\ns_add_u32 s51, s51, s20\ns_lshl_b32 s34, s51, 12")
    sh = {1: 4, 2: 3, 4: 2, 8: 1, 16: 0}[NPH]
    if o.get("rotnt"): a(f"s_add_u32 s21, s26, s25\ns_and_b32 s21, s21, {NPH-1}")
    else: a(f"s_and_b32 s21, s26, {NPH-1}")
    a(f"s_lshl_b32 s21, s21, {sh+7}\ns_mul_i32 s22, s21, 3072\ns_lshr_b32 s28, s26, {4-sh}")
    POSC = 16//NPH
    a(f"s_lshl_b32 s50, 1, s28\ns_or_b32 s50, s50, {3 << POSC}\ns_mov_b32 s3, 0")
    a("s_lshl_b32 s35, s26, 18\ns_lshl_b32 s27, s20, 16\ns_add_u32 s35, s35, s27")
    a("v_lshrrev_b32 v16, 4, v0\nv_and_b32 v17, 7, v0\nv_xor_b32 v16, v16, v17\nv_lshl_add_u32 v16, v16, 4, s35\nv_lshrrev_b32 v18, 3, v0")
    a("v_lshl_add_u32 v2, v18, 11, v16\nv_xor_b32 v3, 64, v2")
    a(f"v_add_u32 v4, {16*2048 - 2048}, v2\nv_add_u32 v5, {24*2048 - 3072}, v3\nv_add_u32 v3, {8*2048 - 1024}, v3")
    a("s_lshl_b32 s27, s47, 5\ns_lshl_b32 s35, s46, 2\ns_add_u32 s35, s35, s27\ns_mul_i32 s35, s35, 6144\ns_lshl_b32 s27, s25, 7\ns_add_u32 s35, s35, s27")
    a("v_lshrrev_b32 v16, 4, v0\nv_lshlrev_b32 v16, 1, v16\nv_xor_b32 v16, v16, v17\nv_lshl_add_u32 v16, v16, 4, s35")
    a("v_lshrrev_b32 v18, 5, v0\nv_lshlrev_b32 v18, 3, v18\nv_bfe_u32 v19, v0, 3, 2\nv_add_u32 v18, v18, v19\nv_mul_u32_u24 v18, 6144, v18\nv_add_u32 v6, v18, v16")
    wimm = lambda part, i: (part*2048 + i*1024) % 4096
    for part in range(3):
        for i in range(2):
            if part or i: a(f"v_add_u32 v{6+2*part+i}, {16*i*6144 + part*2048 - wimm(part, i)}, v6")
    a("s_mul_i32 s45, s20, 10240\ns_mov_b32 s23, s45\ns_mov_b32 s44, 0")
    a("s_waitcnt lgkmcnt(0)")
    srd(a, 8, "s92", "s93", 4<<20)
    srd(a, 4, "s94", "s95", 1024*6144)
    XR = 156
    ws_srd(a, 16, WS_SS, WS_END - WS_SS)
    a(f"s_cmp_lg_u32 s2, 0\ns_cbranch_scc1 L_{name}_nz")
    a(f"v_mov_b32 v24, 0\nv_mov_b32 v25, 0\nv_mov_b32 v26, 0\nv_mov_b32 v27, 0\ns_lshl_b32 s27, s20, 12\ns_add_u32 s27, s27, {WS_FLAG - WS_SS}")
    for i in range(4): a(f"buffer_store_dwordx4 v[24:27], v30, s[16:19], s27 offen offset:{1024*i} sc1")
    a(f"L_{name}_nz:")
    def stat_loads(a):
        for i in range(4): a.vmem(f"buffer_load_dwordx4 v[{XR+4*i}:{XR+3+4*i}], v30, s[8:11], s34 offen offset:{1024*i} {xfl}", ("xr",))
    c = gemm16.Cfg()
    c.TB, c.NB, c.SPS, c.NST, c.NDMA = 4, 6, 1, 16, 10
    c.tok_lds = True; c.drain_at_P = True; c.tok_early = 0
    c.BODY = 2; c.LA, c.WR = 2, 3; c.PBACK = 16; c.LDS2 = False
    c.acc = lambda j, tb: f"v[{32+4*(4*j+tb)}:{35+4*(4*j+tb)}]"
    c.tokreg = lambda sl, tb, s: f"a[{24+32*sl+8*tb+4*s}:{24+32*sl+8*tb+4*s+3}]"
    c.wreg = lambda sl, s: f"a[{8*sl+4*s}:{8*sl+4*s+3}]"
    c.swap = lambda j: j >= 4
    c.tokwait = {0: [0], 2: [1, 2, 3]}
    c.first_zero = True
    if o.get("statpos", 0) == 0: c.prologue_00 = stat_loads
    def dma(a, st, i):
        f = []
        if i == 0:
            if st in (1, 2): f.append(lambda: a(f"s_add_u32 s23, s23, {SLOT}"))
            if st > 0: f.append(lambda: a("s_add_u32 s21, s21, 128")); f.append(lambda: a("s_and_b32 s21, s21, 0x7ff"))
            f.append(lambda: a("s_mov_b32 m0, s23"))
        if i == 4:
            if st > 0: f.append(lambda: a("s_mul_i32 s22, s21, 3072"))
            f.append(lambda: a("s_add_u32 m0, s23, 4096"))
        if i == 8: f.append(lambda: a("s_add_u32 m0, s23, 8192"))
        if i < 4: f.append(lambda: a.vmem(f"buffer_load_dwordx4 v{2+i}, s[8:11], s21 offen offset:{1024*i} {xfl} lds", ("dma", st)))
        else: f.append(lambda: a.vmem(f"buffer_load_dwordx4 v{2+i}, s[4:7], s22 offen offset:{wimm((i-4)//2, i%2)} {wfl} lds", ("dma", st)))
        return f
    c.dma = dma
    woff = lambda j, s, rd: (2*s+rd)*10240 + 4096 + (j//2)*2048
    def wread(a, st, sis, j, s, rd, sl, tag):
        lo = 8*sl + 4*s + 2*rd
        a.lds(f"ds_read_b64_tr_b16 a[{lo}:{lo+1}], v{14+j%2} offset:{woff(j, s, rd)}", tag)
    c.wread = wread
    def tokread(a, st, sis, tb, s, sl, tag):
        a.lds(f"ds_read_b128 {c.tokreg(sl, tb, s)}, v{12+s} offset:{(tb//2)*10240 + (tb%2)*2048}", tag)
    c.tokread = tokread
    c.dmapos = lambda i: o.get("dmapos", [-16, -10, -6, -2, 2, 7, 12, 15, 19, 23])[i]
    WP, ONES, F, P, MX, MN, EF = 128, 136, 140, 156, 188, 192, 196
    CS = lambda j: (244 + 4*j) if j < 2 else (228 + 4*(j-2))
    V = lambda s, tag: (lambda: a.vmem(s, tag))
    X = lambda s: (lambda: a(s))
    def fixed(st):
        ex = []
        if st < c.NST - 1:
            def chk(s):
                def f():
                    assert a.lg.count(("w", st*6+5, 1)) == 2 and ("w", st*6+6, 0) not in a.lg
                    a(s)
                return f
            ex += [(22, X(f"s_cmp_eq_u32 s44, {2*SLOT}\ns_cselect_b32 s43, s42, s41"))]
            ex += [(28 + r, chk(f"v_add_u32 v{12+r}, s43, v{12+r}")) for r in range(4)]
        return ex
    c.fixed = fixed
    def extra(st):
        ex = []
        if st == 12:
            ex += [(o.get("rdyld", 4), V("buffer_load_dword v20, v19, s[16:19], s40 offen sc1", ("rdy",)))]
        if st == 13:
            def check_ready():
                a.wait(vm=[("rdy",)])
                a(f"v_cmp_ne_u32 vcc, 1, v20\ns_nop 0\ns_cbranch_vccnz L_{name}_spin0\nL_{name}_rdy0:")
            seq = [check_ready]
            for u in range(4):
                for x in range(2): seq.append(V(f"buffer_load_dwordx4 v[{P+8*u+4*x}:{P+3+8*u+4*x}], v21, s[16:19], s{52 + u//2} offen offset:{2048*(u%2)+16*x} sc1", ("cs",)))
            for tb in range(4): seq.append(V(f"buffer_load_dwordx2 v[{2+2*tb}:{3+2*tb}], v22, s[16:19], s55 offen offset:{128*tb} sc1", ("st",)))
            for tb in range(4):
                for hf in range(2): seq.append(V(f"buffer_load_dwordx4 v[{EF+8*tb+4*hf}:{EF+3+8*tb+4*hf}], v23, s[16:19], s55 offen offset:{128*tb+16*hf} sc1", ("st",)))
            ex += [(26 + o.get("latestep", 3)*k, f) for k, f in enumerate(seq)]
        if st == 15:
            seq = [X("s_mov_b32 s8, s98\ns_mov_b32 s9, s99"), X(f"s_mov_b32 s10, {2<<20}\ns_lshl_b32 s27, s51, 11")]
            for i in range(2): seq.append(V(f"buffer_load_dwordx4 a[{88+4*i}:{91+4*i}], v30, s[8:11], s27 offen offset:{1024*i}", ("wo",)))
            if o.get("ct"):
                ct = Asm(); code_touch_setup(ct, "k1b", "k2_kernel", "k3_kernel", 92, 24, 1)
                seq += [X("\n".join(ct.lines[:4]))] + [X(l) for l in ct.lines[4:-3]] + [X("\n".join(ct.lines[-3:])), V(code_touch_op(24, "v26"), ("ct",))]
            if o.get("pf_gu"): seq += [V(s_, ("pf",)) for s_ in touch_gu_ops(56, 252, "")[:o.get("pf_gu")]]
            ex += [(0, f) for f in seq]
            seq = [lambda: a.wait(vm=[("cs",)])]
            for j in range(6):
                r = P + 4*(j%2) + j//2
                seq += [X(f"v_add_f32 v{r}, v{r}, v{r+8}"), X(f"v_add_f32 v{r+16}, v{r+16}, v{r+24}"), X(f"v_add_f32 v{r}, v{r}, v{r+16}")]
            ex += [(20, f) for f in seq]
        return ex
    c.extra = extra
    def share_check(a, k):
        a(f"s_bitcmp1_b32 s50, s3\ns_cbranch_scc0 L_{name}_ns{k}\ns_getpc_b64 s[100:101]\ns_branch L_{name}_share\nL_{name}_ns{k}:\ns_add_u32 s3, s3, 1")
    def on_P(a, st):
        assert st + 2 >= c.NST or a.vm.count(("dma", st+2)) == 10
        a("s_add_u32 s23, s44, s45\ns_add_u32 s44, s44, s43")
        tr(a)
        if st < 12: share_check(a, f"{st%2}{'p' if st < 2 else ''}")
    c.on_P = on_P
    def first_P(a):
        tr(a)
        a(f"s_or_b32 s27, s2, s20\ns_cbranch_scc1 L_{name}_nl\nv_mov_b32 v16, 1\ns_mov_b64 exec, 1\nbuffer_store_dword v16, v30, s[12:15], 0 offen sc1\ns_mov_b64 exec, -1\nL_{name}_nl:")
        share_check(a, "f")
    c.first_P = first_P
    assert POSC + 1 <= 10
    def pro0(a):
        if o.get("statpos", 0) == 1: stat_loads(a)
        srd(a, 12, "s96", "s97", 65536)
        a(f"s_lshl_b32 s27, s20, 10\ns_add_u32 m0, s27, {L_WPHI}\ns_lshl_b32 s35, s25, 12\ns_add_u32 s27, s27, s35")
        a.vmem("buffer_load_dwordx4 v30, s[12:15], s27 offen lds", ("wphi",))
        if o.get("ct"):
            code_touch_setup(a, "k1a", f"L_{name}_loop", "L_code_end", 56, 24, 4)
            a.vmem(code_touch_op(24, "v26"), ("ct",))
    c.prologue_0 = pro0
    def pro_work(a):
        ws_srd(a, 36, WS_O, 4<<20)
        srd(a, 12, "s30", "s31", 256)
        a(f"s_mov_b32 s41, {SLOT}\ns_mov_b32 s42, {-2*SLOT & 0xffffffff}\ns_mov_b32 s40, {WS_FLAG - WS_SS}")
        a("s_lshl_b32 s27, s25, 1\ns_add_u32 s48, s27, s47")
        a(f"s_lshl_b32 s27, s25, 4\ns_add_u32 s27, s27, s26\ns_lshl_b32 s62, s27, 14\ns_lshl_b32 s35, s20, 12\ns_add_u32 s62, s62, s35\ns_add_u32 s62, s62, {WS_KVP - WS_SS}")
        a(f"s_lshl_b32 s63, s48, 12\ns_lshl_b32 s35, s46, 3\ns_add_u32 s63, s63, s35\ns_lshl_b32 s35, s26, 8\ns_add_u32 s63, s63, s35\ns_add_u32 s63, s63, {WS_ZP - WS_SS}")
        a(f"s_lshl_b32 s49, s27, 10\ns_add_u32 s49, s49, {WS_KVT - WS_SS}")
        a("v_and_b32 v16, 15, v0\nv_bfe_u32 v17, v0, 1, 3\nv_lshrrev_b32 v18, 4, v0\nv_xor_b32 v17, v17, v18\nv_lshlrev_b32 v17, 4, v17\nv_lshl_add_u32 v12, v16, 7, v17")
        a("s_mul_i32 s27, s46, 20480\nv_add_u32 v12, s27, v12\nv_xor_b32 v13, 64, v12")
        a("v_lshlrev_b32 v22, 3, v16\nv_lshlrev_b32 v23, 5, v18\nv_lshlrev_b32 v21, 5, v0\nv_mov_b32 v29, 1.0")
        a("s_lshl_b32 s27, s26, 7\ns_lshl_b32 s35, s25, 7\ns_add_u32 s35, s35, 2048\nv_mov_b32 v19, s35\nv_mov_b32 v17, s27\nv_cmp_gt_u32 vcc, 16, v0\nv_lshrrev_b32 v18, 2, v0\ns_nop 0\nv_cndmask_b32 v19, v19, v17, vcc\nv_lshl_add_u32 v19, v16, 2, v19")
        a("v_lshlrev_b32 v16, 7, v18\nv_bfe_u32 v17, v0, 3, 2\nv_lshlrev_b32 v17, 5, v17\nv_and_b32 v18, 3, v0\nv_lshlrev_b32 v18, 3, v18\nv_add3_u32 v14, v16, v17, v18")
        a("s_lshl_b32 s27, s47, 6\nv_xor_b32 v14, s27, v14\nv_xor_b32 v15, 32, v14")
        a(f"s_lshl_b32 s52, s48, 13\ns_add_u32 s52, s52, {WS_CS - WS_SS}\ns_add_u32 s53, s52, 4096")
        a(f"s_lshl_b32 s55, s26, 10\ns_lshl_b32 s27, s46, 9\ns_add_u32 s55, s55, s27\ns_add_u32 s55, s55, {WS_ST1 - WS_SS}")
        if o.get("pf_gu"): touch_gu_setup(a, 56, 252, o.get("pf_rows", 16))
        for r in range(136, 140): a(f"v_mov_b32 v{r}, 0x3f803f80")
        a.wait(vm=[("xr",)])
        a("@")
        U = 196
        for q in range(2):
            for d in range(8): a(f"v_lshlrev_b32 v{U+16*q+2*d}, 16, v{XR+8*q+d}\nv_and_b32 v{U+1+16*q+2*d}, 0xffff0000, v{XR+8*q+d}")
            a("@")
        for q in range(2):
            a(f"v_add_f32 v{140+2*q}, v{U+16*q}, v{U+1+16*q}")
            for e in range(2, 16): a(f"v_add_f32 v{140+2*q}, v{140+2*q}, v{U+16*q+e}")
            a("@")
        allreduce64(a, [140, 142], [144, 145])
        a("@")
        for q in range(2):
            a(f"v_mul_f32 v{140+2*q}, 0x3a800000, v{140+2*q}")
            for e in range(16): a(f"v_sub_f32 v{U+16*q+e}, v{U+16*q+e}, v{140+2*q}")
            a("@")
            a(f"v_mul_f32 v{141+2*q}, v{U+16*q}, v{U+16*q}")
            for e in range(1, 16): a(f"v_fmac_f32 v{141+2*q}, v{U+16*q+e}, v{U+16*q+e}")
            a("@")
        allreduce64(a, [141, 143], [144, 145])
        for q in range(2): a(f"v_mov_b32 v144, 0x3727c5ac\nv_fmac_f32 v144, 0x3a800000, v{141+2*q}\nv_rsq_f32 v{141+2*q}, v144")
    def own1(a, dmas):
        m = a.mark(); pro_work(a)
        work = a.lines[m:]; a.lines = a.lines[:m]
        assert work.count("@") == len(dmas)
        dmas = list(dmas)
        for l in work:
            if l != "@": a.lines.append(l); continue
            fns = dmas.pop(0)
            for k, fn in enumerate(fns):
                if k == len(fns) - 1 and k > 0: a("s_nop 0")
                fn()
    c.own_stage1 = own1
    def pro_mid(a):
        a(f"s_lshl_b32 s27, s51, 4\ns_add_u32 s27, s27, {WS_ST1 - WS_SS}\ns_mov_b64 exec, 1")
        a.vmem("buffer_store_dwordx4 v[140:143], v30, s[16:19], s27 offen sc1", ("clr",))
        a("s_mov_b64 exec, -1")
        if diag: stamp(a, 3); a("s_waitcnt lgkmcnt(0)")
    c.prologue_mid = pro_mid
    marks, stats = gemm16.mainloop(a, c)
    rolled = roll(a, marks, f"L_{name}_loop", "s24")
    if diag: stamp(a, 1)
    tr(a)
    t = tail
    t(f"L_{name}_share:\ns_add_u32 s100, s100, 4\ns_addc_u32 s101, s101, 0\ns_cmp_lt_u32 s3, {POSC}\ns_cbranch_scc0 L_{name}_clr")
    t("s_lshl_b32 s27, s46, 5\nv_xor_b32 v16, s27, v14")
    for part in range(3):
        for s in range(2):
            for rd in range(2): t(f"ds_read_b64_tr_b16 v[{P+8*part+4*s+2*rd}:{P+8*part+4*s+2*rd+1}], v16 offset:{woff(2*part, s, rd)}")
    t(f"s_lshl_b32 s27, s46, 4\ns_lshl_b32 s35, s26, 9\ns_add_u32 s27, s27, s35\ns_add_u32 s27, s27, s52\ns_waitcnt lgkmcnt(0)")
    for part in range(3):
        for s in range(2): t(f"v_mfma_f32_16x16x32_bf16 v[{144+4*part}:{147+4*part}], v[{ONES}:{ONES+3}], v[{P+8*part+4*s}:{P+8*part+4*s+3}], {'0' if s == 0 else f'v[{144+4*part}:{147+4*part}]'}")
    t("s_nop 7\nv_mov_b32 v145, v148\nv_mov_b32 v146, v152\ns_mov_b64 exec, 0xffff")
    t("buffer_store_dwordx4 v[144:147], v21, s[16:19], s27 offen sc1")
    t("s_mov_b64 exec, -1\ns_setpc_b64 s[100:101]")
    t(f"L_{name}_clr:\ns_cmp_eq_u32 s3, {POSC}\ns_cbranch_scc0 L_{name}_flag")
    t("v_mov_b32 v24, -1\nv_mov_b32 v25, -1\nv_mov_b32 v26, -1\nv_mov_b32 v27, -1\nv_mov_b32 v16, 0")
    t("buffer_load_dword v20, v16, s[12:15], 0 offen sc1")
    for i in range(4): t(f"buffer_store_dwordx4 v[24:27], v30, s[16:19], s62 offen offset:{1024*i} sc1")
    t("buffer_store_dword v24, v31, s[16:19], s49 offen sc1\ns_mov_b64 exec, 0xffff")
    t("buffer_store_dwordx2 v[24:25], v30, s[16:19], s63 offen sc1\ns_mov_b64 exec, -1\ns_setpc_b64 s[100:101]")
    t(f"L_{name}_flag:\ns_cmp_eq_u32 s20, 0\ns_cbranch_scc0 L_{name}_ret\ns_mov_b32 s27, {SPIN}\nv_mov_b32 v16, 0")
    t(f"L_{name}_flagb:\nv_cmp_eq_u32 vcc, 0, v20\ns_sub_u32 s27, s27, 1\ns_cbranch_vccz L_{name}_flagc\ns_cmp_eq_u32 s27, 0\ns_cbranch_scc1 L_{name}_flagc")
    t(f"buffer_load_dword v20, v16, s[12:15], 0 offen sc1\ns_waitcnt vmcnt(0)\ns_branch L_{name}_flagb")
    t(f"L_{name}_flagc:\nv_mov_b32 v16, 1\ns_add_u32 s27, s26, 16\ns_lshl_b32 s27, 1, s27\ns_lshl_b32 s35, 1, s25\ns_or_b32 exec_lo, s27, s35\ns_mov_b32 exec_hi, 0")
    t("buffer_store_dword v16, v19, s[16:19], s40 offen sc1\ns_mov_b64 exec, -1")
    t(f"L_{name}_ret:\ns_setpc_b64 s[100:101]")
    t(f"L_{name}_spin0:\ns_mov_b32 s27, {SPIN}\nL_{name}_spin0b:\nbuffer_load_dword v20, v19, s[16:19], s40 offen sc1\ns_waitcnt vmcnt(0)\nv_cmp_ne_u32 vcc, 1, v20\ns_sub_u32 s27, s27, 1")
    t(f"s_cbranch_vccz L_{name}_rdy0\ns_cmp_lg_u32 s27, 0\ns_cbranch_scc1 L_{name}_spin0b\ns_branch L_{name}_rdy0")
    S = lambda sg, tb: (140 if sg == 0 else 228) + 4*tb
    mf = lambda d, A_, B_, C_: a(f"v_mfma_f32_16x16x32_bf16 v[{d}:{d+3}], v[{A_}:{A_+3}], v[{B_}:{B_+3}], {C_ if C_ == '0' else f'v[{C_}:{C_+3}]'}")
    for j in (2, 3, 4, 5, 0, 1):
        r = P + 4*(j%2) + j//2
        A_, B_ = (r, 29) if j < 4 else (29, r)
        a(f"v_mfma_f32_16x16x4_f32 v[{CS(j)}:{CS(j)+3}], v{A_}, v{B_}, 0")
    a(f"v_lshrrev_b32 v16, 2, v0\nv_lshlrev_b32 v16, 6, v16\nv_and_b32 v17, 3, v0\nv_lshl_add_u32 v16, v17, 3, v16\ns_lshl_b32 s27, s47, 11\ns_add_u32 s27, s27, {L_WPHI}\nv_add_u32 v16, s27, v16")
    for fb in range(2):
        for rd in range(2): a(f"ds_read_b64_tr_b16 v[{WP+4*fb+2*rd}:{WP+4*fb+2*rd+1}], v16 offset:{1024*rd + 32*fb}")
    a.wait(vm=[("st",)])
    for tb in range(4): a(f"v_mul_f32 v{3+2*tb}, {LOG2E}, v{3+2*tb}")
    def feat1(j0, between=None):
        b = 32 + 16*j0
        for tb in range(4):
            for x in range(2):
                for r in range(4): a(f"v_fma_f32 v{b+16*x+4*tb+r}, -v{2+2*tb}, v{CS(j0+x)+r}, v{b+16*x+4*tb+r}")
            for d in range(4): a(f"v_cvt_pk_bf16_f32 v{F+4*tb+d}, v{b+16*(d//2)+4*tb+2*(d%2)}, v{b+16*(d//2)+4*tb+2*(d%2)+1}")
        a("s_waitcnt lgkmcnt(0)\ns_nop 0")
        for tb in range(4):
            for fb in range(2): mf(P + 8*tb + 4*fb, WP + 4*fb, F + 4*tb, "0")
        if between: between()
        else: a("s_nop 3")
        for tb in range(4):
            p = P + 8*tb
            for dst, op3, op2 in ((MX+tb, "v_max3_f32", "v_max_f32"), (MN+tb, "v_min3_f32", "v_min_f32")):
                a(f"{op3} v{dst}, v{p}, v{p+1}, v{p+2}\n{op3} v{dst}, v{dst}, v{p+3}, v{p+4}\n{op3} v{dst}, v{dst}, v{p+5}, v{p+6}\n{op2} v{dst}, v{dst}, v{p+7}")
        rs4(a, MX, "v_max_f32"); rs4(a, MN, "v_min_f32")
        bc4(a, MX); bc4(a, MN)
        for tb in range(4): a(f"v_mul_f32 v{MX+tb}, v{MX+tb}, v{3+2*tb}\nv_mul_f32 v{MN+tb}, v{MN+tb}, v{3+2*tb}")
    def feat2(b):
        for tb in range(4):
            for e in range(8): a(f"v_fma_f32 v{b+8*tb+e}, v{P+8*tb+e}, v{3+2*tb}, -v{MX+tb}")
            for e in range(8): a(f"v_fma_f32 v{P+8*tb+e}, -v{P+8*tb+e}, v{3+2*tb}, v{MN+tb}")
            for e in range(8): a(f"v_exp_f32 v{b+8*tb+e}, v{b+8*tb+e}")
            for e in range(8): a(f"v_exp_f32 v{P+8*tb+e}, v{P+8*tb+e}")
            for sg, src in ((0, b), (1, P)):
                for d in range(4): a(f"v_cvt_pk_bf16_f32 v{EF+16*sg+4*tb+d}, v{src+8*tb+2*d}, v{src+8*tb+2*d+1}")
        a("s_nop 1")
        for tb in range(4):
            for sg in range(2): mf(S(sg, tb), ONES, EF + 16*sg + 4*tb, "0")
    def scale_pack(b, sc):
        for tb in range(4):
            for sg, src in ((0, b), (1, P)):
                for e in range(8): a(f"v_mul_f32 v{src+8*tb+e}, v{src+8*tb+e}, v{sc(sg, tb)}")
                for d in range(4): a(f"v_cvt_pk_bf16_f32 v{EF+16*sg+4*tb+d}, v{src+8*tb+2*d}, v{src+8*tb+2*d+1}")
    VF, VG, AF, KV, Z = 96, 80, 156, 112, 64
    def vside():
        for db in range(2):
            for tb in range(4):
                for r in range(4):
                    x = 96 + 16*db + 4*tb + r
                    a(f"v_fma_f32 v{x}, -v{EF+8*tb+2*r}, v{CS(4+db)}, v{x}\nv_mul_f32 v{x}, v{x}, v{EF+8*tb+2*r+1}")
            for d in range(8): a(f"v_cvt_pk_bf16_f32 v{VF+8*db+d}, v{96+16*db+2*d}, v{97+16*db+2*d}")
        a(f"s_lshl_b32 s27, s20, 12\ns_add_u32 s27, s27, {L_VB}\nv_add_u32 v24, s27, v30\nv_xor_b32 v25, 4096, v24")
        for i in range(4): a(f"ds_write_b128 v24, v[{VF+4*i}:{VF+4*i+3}] offset:{1024*i}")
    feat1(2, vside); tr(a); feat2(64); tr(a)
    a("v_bfe_u32 v16, v0, 1, 2\nv_lshlrev_b32 v16, 2, v16\nv_and_b32 v17, 1, v0\nv_bfe_u32 v18, v0, 3, 1\nv_lshlrev_b32 v18, 1, v18\nv_or3_b32 v16, v16, v17, v18")
    a("v_lshrrev_b32 v17, 4, v0\nv_xor_b32 v16, v16, v17\nv_lshlrev_b32 v16, 3, v16\nv_and_b32 v17, 15, v0\nv_lshl_add_u32 v10, v17, 7, v16")
    a(f"s_lshl_b32 s27, s47, 14\ns_lshl_b32 s35, s46, 13\ns_add_u32 s27, s27, s35\ns_add_u32 s27, s27, {L_PH}\nv_add_u32 v10, s27, v10")
    for q in range(1, 4): a(f"v_xor_b32 v{10+q}, {32*q}, v10")
    for sg in range(2):
        for tb in range(4): a(f"v_rcp_f32 v{S(sg, tb)}, v{S(sg, tb)}")
    a("s_nop 0")
    for tb in range(4):
        for sg, src in ((0, 64), (1, P)):
            for e in range(8): a(f"v_mul_f32 v{src+8*tb+e}, v{src+8*tb+e}, v{S(sg, tb)}")
            for d in range(4): a(f"v_cvt_pk_bf16_f32 v{EF+16*sg+4*tb+d}, v{src+8*tb+2*d}, v{src+8*tb+2*d+1}")
            for fb in range(2): a(f"ds_write_b64 v{10+2*sg+fb}, v[{EF+16*sg+4*tb+2*fb}:{EF+16*sg+4*tb+2*fb+1}] offset:{2048*tb}")
    a("v_bfe_u32 v16, v0, 3, 2\nv_lshlrev_b32 v16, 2, v16\nv_bfe_u32 v17, v0, 2, 1\nv_lshrrev_b32 v18, 5, v0\nv_lshlrev_b32 v18, 1, v18\nv_or3_b32 v16, v16, v17, v18")
    a("v_and_b32 v17, 3, v0\nv_xor_b32 v16, v16, v17\nv_lshlrev_b32 v16, 3, v16\nv_lshrrev_b32 v17, 2, v0\nv_lshl_add_u32 v14, v17, 7, v16")
    a(f"s_lshl_b32 s27, s46, 6\nv_xor_b32 v14, s27, v14\ns_lshl_b32 s27, s47, 14\ns_add_u32 s27, s27, {L_PH}\ns_add_u32 s34, s27, s35\ns_xor_b32 s35, s35, 8192\ns_add_u32 s35, s27, s35")
    a("v_add_u32 v16, s35, v14\nv_add_u32 v14, s34, v14\nv_xor_b32 v15, 32, v14\nv_xor_b32 v17, 32, v16")
    tr(a)
    a("s_waitcnt lgkmcnt(0)\ns_barrier")
    tr(a)
    for who in range(2):
        for fb in range(2):
            for ks in range(2):
                for rd in range(2):
                    r = AF + 16*who + 8*fb + 4*ks + 2*rd
                    a(f"ds_read_b64_tr_b16 v[{r}:{r+1}], v{14+2*who+fb} offset:{(32*ks + 16*rd)*128}")
        if who == 0:
            for i in range(4): a(f"ds_read_b128 v[{VG+4*i}:{VG+4*i+3}], v25 offset:{1024*i}")
    for who in range(2):
        a(f"s_waitcnt lgkmcnt({12 if who == 0 else 0})")
        for fb in range(2):
            for db in range(3):
                for ks in range(2):
                    af = AF + 16*who + 8*fb + 4*ks
                    first = who == 0 and ks == 0
                    if db < 2: mf(KV + 8*fb + 4*db, af, (VF if who == 0 else VG) + 8*db + 4*ks, "0" if first else KV + 8*fb + 4*db)
                    else: mf(Z + 4*fb, ONES, af, "0" if first else Z + 4*fb)
    a(f"s_lshl_b32 s34, s25, 18\ns_lshl_b32 s27, s26, 10\ns_add_u32 s34, s34, s27\ns_add_u32 s52, s34, {WS_KVP - WS_SS}")
    a(f"s_lshl_b32 s53, s48, 12\ns_add_u32 s53, s53, {WS_ZP - WS_SS}\ns_nop 1")
    for i in range(4): a(f"buffer_store_dwordx4 v[{KV+4*i}:{KV+4*i+3}], v30, s[16:19], s62 offen offset:{1024*i} sc1")
    a(f"v_mov_b32 v{Z+1}, v{Z+4}\ns_mov_b64 exec, 0xffff\nbuffer_store_dwordx2 v[{Z}:{Z+1}], v30, s[16:19], s63 offen sc1\ns_mov_b64 exec, -1")
    if diag and not TR_: stamp(a, 4)
    tr(a)
    def kv_loads():
        a("s_mov_b32 s34, s52")
        for i in range(16):
            a(f"buffer_load_dword v{64+i}, v31, s[16:19], s34 offen sc1")
            if i < 15: a("s_add_u32 s34, s34, 16384")
    def z_loads():
        for q in range(4): a(f"buffer_load_dwordx4 v[{80+4*q}:{83+4*q}], v30, s[16:19], s53 offen offset:{1024*q} sc1")
    def retry(k, regs, again):
        a(f"s_mov_b32 s27, {SPIN}\nL_{name}_chk{k}:")
        umax(a, 20, regs)
        a(f"v_cmp_eq_u32 vcc, -1, v20\ns_sub_u32 s27, s27, 1\ns_cbranch_vccnz L_{name}_again{k}\nL_{name}_ok{k}:")
        keep, a.lines = a.lines, []
        a(f"L_{name}_again{k}:\ns_cmp_eq_u32 s27, 0\ns_cbranch_scc1 L_{name}_ok{k}")
        again()
        a(f"s_waitcnt vmcnt(0)\ns_branch L_{name}_chk{k}")
        tail.lines += a.lines; a.lines = keep
    feat1(0); tr(a)
    if o.get("early1"): kv_loads(); z_loads()
    feat2(32); tr(a)
    if not o.get("early1"): kv_loads(); z_loads()
    a("s_waitcnt vmcnt(25)")
    a(f"v_mfma_f32_16x16x32_bf16 v[96:99], v[{ONES}:{ONES+3}], a[88:91], 0\nv_mfma_f32_16x16x32_bf16 v[96:99], v[{ONES}:{ONES+3}], a[92:95], v[96:99]")
    a("s_lshr_b32 s34, s51, 5\ns_lshl_b32 s34, s34, 7\ns_bfe_u32 s35, s51, 0x20002\ns_lshl_b32 s35, s35, 5\ns_add_u32 s34, s34, s35")
    a(f"s_and_b32 s35, s51, 3\ns_lshl_b32 s35, s35, 1\ns_add_u32 s34, s34, s35\ns_bfe_u32 s35, s51, 0x10004\ns_lshl_b32 s35, s35, 3\ns_add_u32 s34, s34, s35\ns_add_u32 s54, s34, {WS_WB - WS_SS}")
    rowsum16(a, [96])
    a("v_mul_f32 v96, 0x3a800000, v96\nv_cvt_pk_bf16_f32 v97, v96, v96\nv_lshlrev_b32 v98, 16, v97\nv_sub_f32 v98, v96, v98\nv_cvt_pk_bf16_f32 v98, v98, v98")
    a("s_waitcnt vmcnt(4)")
    retry(1, range(64, 80), kv_loads)
    if diag and not TR_: stamp(a, 5)
    tr(a)
    for st_ in (8, 4, 2, 1):
        for i in range(st_): a(f"v_add_f32 v{64+i}, v{64+i}, v{64+i+st_}")
    a("buffer_store_dword v64, v31, s[16:19], s49 offen sc1")
    a("s_mov_b64 exec, 1\nbuffer_store_short v97, v30, s[16:19], s54 offen sc1\nbuffer_store_short v98, v30, s[16:19], s54 offen offset:16 sc1\ns_mov_b64 exec, -1")
    a("s_waitcnt vmcnt(3)")
    retry(2, range(80, 96), z_loads)
    for q in range(8): a(f"v_add_f32 v{80+q}, v{80+q}, v{88+q}")
    for q in range(4): a(f"v_add_f32 v{80+q}, v{80+q}, v{84+q}")
    a("s_nop 1")
    for q in range(4): a(f"v_mfma_f32_16x16x4_f32 v[{100+4*q}:{103+4*q}], v{80+q}, v29, 0")
    a(f"s_lshl_b32 s34, s25, 14\ns_lshl_b32 s27, s47, 13\ns_add_u32 s34, s34, s27\ns_add_u32 s52, s34, {WS_KVT - WS_SS}\ns_add_u32 s53, s52, 4096")
    a("s_lshl_b32 s27, s26, 3\ns_lshl_b32 s34, s46, 2\ns_add_u32 s27, s27, s34\ns_lshl_b32 s54, s27, 15\ns_lshl_b32 s35, s48, 10\ns_add_u32 s54, s54, s35")
    ZF, ZQ = 120, 64
    for d in range(8): a(f"v_cvt_pk_bf16_f32 v{ZF+d}, v{100+2*d}, v{101+2*d}")
    a("s_nop 1")
    for tb in range(4):
        for sg in range(2): mf(ZQ + 16*sg + 4*tb, ZF + 4*sg, EF + 16*sg + 4*tb, "0")
    a("s_nop 7\ns_mov_b32 s27, 0x358637bd")
    for tb in range(4):
        a(f"v_fma_f32 v{ZQ+4*tb}, v{S(0,tb)}, s27, v{ZQ+4*tb}\nv_mul_f32 v{ZQ+4*tb}, v{ZQ+4*tb}, v{S(1,tb)}\nv_fmac_f32 v{ZQ+4*tb}, v{ZQ+16+4*tb}, v{S(0,tb)}")
        a(f"v_rcp_f32 v{ZQ+4*tb}, v{ZQ+4*tb}")
    a("s_nop 0")
    for tb in range(4): a(f"v_mul_f32 v{100+tb}, v{ZQ+4*tb}, v{S(1,tb)}\nv_mul_f32 v{104+tb}, v{ZQ+4*tb}, v{S(0,tb)}")
    def tot_loads():
        for i in range(8): a(f"buffer_load_dwordx4 v[{64+4*i}:{67+4*i}], v30, s[16:19], {'s52' if i < 4 else 's53'} offen offset:{1024*(i%4)} sc1")
    if o.get("early2", 1): tot_loads()
    scale_pack(32, lambda sg, tb: 100 + 4*sg + tb)
    if not o.get("early2", 1): tot_loads()
    tr(a)
    a("s_waitcnt vmcnt(0)")
    retry(3, range(64, 96), tot_loads)
    if diag and not TR_: stamp(a, 6)
    tr(a)
    KF, O = 96, 32
    for sg in range(2):
        for db in range(2):
            for d in range(4):
                r = 64 + 16*sg + 8*(d//2) + 4*db + 2*(d % 2)
                a(f"v_cvt_pk_bf16_f32 v{KF+8*sg+4*db+d}, v{r}, v{r+1}")
    a("s_nop 1")
    for tb in range(4):
        for db in range(2):
            d = O + 8*tb + 4*db
            mf(d, KF + 4*db, EF + 4*tb, "0"); mf(d, KF + 8 + 4*db, EF + 16 + 4*tb, d)
    for tb in range(4):
        for d in range(4): a(f"v_cvt_pk_bf16_f32 v{64+4*tb+d}, v{O+8*tb+2*d}, v{O+8*tb+2*d+1}")
        a(f"buffer_store_dwordx4 v[{64+4*tb}:{67+4*tb}], v30, s[36:39], s54 offen {stfl}\ns_add_u32 s54, s54, 32768")
    if TR_: tr(a); trace_out(a, 255, 1, 16)
    if diag:
        a("s_nop 1" if o.get("nowait") else "s_waitcnt vmcnt(0)"); stamp(a, 2); stamp_out(a, 7, 1, "s32", "s33", 16)
    a(f"L_{name}_done:\ns_endpgm")
    return kernel_head(name) + a.text() + tail.text(), kernel_desc(name, 256 + 96, 256), launch_line(name, 3*SLOT + 4096), (rolled, stats)
if __name__ == "__main__":
    p = gen_k1(diag=True, o={"pf_gu": 1}); print(p[3])
    open("k1.s", "w").write(assemble([p]))
```

```python
from asmlib import *
import gemm16
from kk1 import rs4, bc4, rowsum16, allreduce64, umax
NAME = "sequential_preLN__linear_kernel_hedgehog__glu_gated_glu__prompt"
WS_O, WS_HC, WS_HH, WS_G = 0, 4<<20, 8<<20, 24<<20
G_SS, G_ST1, G_WB, G_FL, G_CS, G_XS, G_SIZE = 0, 128<<10, 144<<10, 160<<10, 192<<10, 512<<10, 6<<20
XS, XS_Z, XS_T = 20480, 16384, 17408
WS_TRACE = 44<<20
SPIN = 0x20000
LOG2E = "0x3fb8aa3b"
SLOT = 40960; L_WPHI = 3*SLOT; L_PH = SLOT; L_VB = SLOT + 32768
B2 = [0, 16384, 40960, 57344, 90112, 106496, 126976, 143360]; L_WB = 159744
HSAVE = 184
P_X, P_WQKV, P_WPHI, P_WO, P_WG, P_WU, P_WD, P_OUT = 64, 66, 68, 70, 72, 74, 76, 78

def psrd(a, r, p, n): srd(a, r, f"s{p}", f"s{p+1}", n)
def ws_srd(a, r, off, n):
    a(f"s_add_u32 s{r}, s32, {off}\ns_addc_u32 s{r+1}, s33, 0\ns_mov_b32 s{r+2}, {n}\ns_mov_b32 s{r+3}, 0x20000")

class Gen:
    def __init__(self, o):
        self.o = o; self.a = Asm(); self.tail = Asm(); self.names = []; self.info = []
    def tr(self, name, lvl=1):
        if self.o.get("trace", 0) < lvl: return
        a = self.a; self.names.append(name)
        a("s_memrealtime s[88:89]\ns_memtime s[90:91]"); a.wait_all(vm=False)
        a("s_lshl_b64 exec, 1, s29\nv_accvgpr_write_b32 a252, s88\nv_accvgpr_write_b32 a253, s90\ns_mov_b64 exec, -1\ns_add_u32 s29, s29, 1")
    def weave(self, body, ops, skip=0):
        a = self.a; m = a.mark(); nv = len(a.vm); body(); assert len(a.vm) == nv
        work = a.lines[m:]; a.lines = a.lines[:m]; n = len(ops); k = 0
        for i, l in enumerate(work):
            while k < n and i >= skip + k*(len(work) - skip)//n:
                self.group(ops[k]); k += 1
            a.lines.append(l)
        assert k == n
    def group(self, fns):
        for k, fn in enumerate(fns):
            if k == len(fns) - 1 and k > 0 and "m0" in self.a.lines[-1]: self.a("s_nop 0")
            fn()
    def signal(self, val):
        a = self.a
        a.wait_all(); a.reset(); a("s_barrier")
        a(f"s_cmp_lg_u32 s20, 0\ns_cbranch_scc1 L_sig{val}\nv_mov_b32 v30, {val}\nv_mov_b32 v31, 0\ns_lshl_b32 s27, s2, 7\ns_add_u32 s27, s27, {G_FL}")
        a(f"s_mov_b64 exec, 1\nbuffer_store_dword v30, v31, s[16:19], s27 offen sc1\ns_mov_b64 exec, -1\nL_sig{val}:")
    def await_(self, val, ids):
        a = self.a
        a(f"s_cmp_lg_u32 s20, 0\ns_cbranch_scc1 L_got{val}"); a(ids)
        a(f"v_lshlrev_b32 v31, 7, v31\ns_mov_b32 s34, {G_FL}\ns_mov_b32 s27, {SPIN}\nL_poll{val}:\nbuffer_load_dword v30, v31, s[16:19], s34 offen sc1\ns_waitcnt vmcnt(0)")
        a(f"v_cmp_gt_u32 vcc, {val}, v30\ns_sub_u32 s27, s27, 1\ns_cbranch_vccz L_got{val}\ns_cmp_lg_u32 s27, 0\ns_cbranch_scc1 L_poll{val}\nL_got{val}:")
        a.wait_all(); a.reset(); a("s_barrier")
    def code_touch(self, uid, first, last, sr, vr, per):
        c = Asm()
        c(f"s_getpc_b64 s[{sr}:{sr+1}]\nL_pc_{uid}:\ns_add_u32 s{sr}, s{sr}, {first}-L_pc_{uid}\ns_addc_u32 s{sr+1}, s{sr+1}, 0")
        c(f"s_lshr_b32 s{sr+2}, s2, 3\ns_lshl_b32 s{sr+2}, s{sr+2}, 2\ns_add_u32 s{sr+2}, s{sr+2}, s20\ns_mul_i32 s{sr+2}, s{sr+2}, {per}")
        c(f"v_min_u32 v{vr}, {per-1}, v0\nv_add_u32 v{vr}, s{sr+2}, v{vr}\nv_lshlrev_b32 v{vr}, 7, v{vr}\nv_min_u32 v{vr}, {last}-{first}-4, v{vr}")
        c(f"v_mov_b32 v{vr+1}, s{sr+1}\nv_add_co_u32 v{vr}, vcc, s{sr}, v{vr}\ns_nop 1\nv_addc_co_u32 v{vr+1}, vcc, 0, v{vr+1}, vcc")
        a = self.a; X = lambda s: (lambda: a(s))
        return [X("\n".join(c.lines[:4]))] + [X(l) for l in c.lines[4:-3]] + [X("\n".join(c.lines[-3:])), lambda: a.vmem(f"global_load_dword a250, v[{vr}:{vr+1}], off", ("ct",))]

    def ids24(self):
        return ("s_bfe_u32 s80, s2, 0x20001\ns_lshl_b32 s80, s80, 2\ns_bfe_u32 s27, s2, 0x20003\ns_add_u32 s80, s80, s27\n"
                "s_and_b32 s81, s2, 1\ns_lshl_b32 s81, s81, 3\ns_lshr_b32 s27, s2, 5\ns_add_u32 s81, s81, s27\n"
                "s_lshl_b32 s82, s80, 3\ns_lshl_b32 s27, s20, 1\ns_add_u32 s82, s82, s27\n"
                "s_lshl_b32 s83, s20, 16\ns_lshl_b32 s27, s81, 7\ns_add_u32 s83, s83, s27\ns_lshl_b32 s84, s20, 12")
    def voff24(self, v, natural):
        t = f"v_bfe_u32 v{v+1}, v0, 4, 2\nv_lshlrev_b32 v{v+1}, 1, v{v+1}\nv_and_b32 v{v+2}, 7, v0\nv_xor_b32 v{v+1}, v{v+1}, v{v+2}\nv_lshlrev_b32 v{v+1}, 4, v{v+1}\n"
        if natural: t += f"v_lshrrev_b32 v{v+2}, 5, v0\nv_lshlrev_b32 v{v+2}, 3, v{v+2}\nv_bfe_u32 v{v+3}, v0, 3, 2\nv_add_u32 v{v+2}, v{v+2}, v{v+3}\n"
        else: t += f"v_lshrrev_b32 v{v+2}, 3, v0\n"
        t += f"v_lshl_add_u32 v{v}, v{v+2}, 11, v{v+1}\n"
        for i in range(1, 4): t += f"v_add_u32 v{v+i}, {((16*(i & 1) + 4*(i >> 1)) if natural else 8*i)*2048 - 1024*i}, v{v}\n"
        return t
    def pre24(self, st, i, base, v, sr):
        a = self.a; f = []
        if i == 0: f += [lambda: a(f"s_add_u32 s85, s83, {st*262144}"), lambda: a(f"s_add_u32 m0, s84, {base}")]
        f.append(lambda: a.vmem(f"buffer_load_dwordx4 v{v+i}, s[{sr}:{sr+3}], s85 offen offset:{1024*i} lds", ("pre",)))
        return f
    def rdaddr24(self, v):
        t = f"v_lshrrev_b32 v{v+1}, 2, v0\nv_lshlrev_b32 v{v+1}, 7, v{v+1}\nv_bfe_u32 v{v+2}, v0, 3, 2\nv_lshlrev_b32 v{v+2}, 5, v{v+2}\nv_and_b32 v{v+3}, 3, v0\nv_lshlrev_b32 v{v+3}, 3, v{v+3}\nv_add3_u32 v{v}, v{v+1}, v{v+2}, v{v+3}\n"
        for sg in range(1, 4): t += f"v_xor_b32 v{v+sg}, {32*sg}, v{v}\n"
        return t
    def rowmajor24(self, v, t0):
        return (f"v_and_b32 v{v}, 15, v0\nv_lshlrev_b32 v{v}, 11, v{v}\nv_bfe_u32 v{v+1}, v0, 4, 1\nv_lshlrev_b32 v{v+1}, 5, v{v+1}\nv_lshrrev_b32 v{t0}, 5, v0\nv_lshlrev_b32 v{t0}, 4, v{t0}\n"
                f"v_add3_u32 v{v}, v{v}, v{v+1}, v{t0}\nv_add_u32 v{v+1}, 32768, v{v}\ns_lshl_b32 s86, s82, 15\ns_lshl_b32 s27, s81, 7\ns_add_u32 s86, s86, s27")

    def phase1(self):
        a, t, o = self.a, self.tail, self.o.get("k1", {})
        NPH = o.get("NPH", 4)
        a("s_load_dwordx8 s[64:71], s[0:1], 0\ns_load_dwordx2 s[32:33], s[0:1], 80\ns_load_dwordx8 s[72:79], s[0:1], 40\ns_load_dwordx2 s[30:31], s[0:1], 72")
        a("v_lshrrev_b32 v1, 6, v0\nv_lshlrev_b32 v31, 2, v0\nv_and_b32 v0, 63, v0\nv_readfirstlane_b32 s20, v1")
        a("s_and_b32 s26, s2, 1\ns_lshl_b32 s26, s26, 3\ns_bfe_u32 s27, s2, 0x30003\ns_add_u32 s26, s26, s27")
        a("s_bfe_u32 s25, s2, 0x20001\ns_lshl_b32 s25, s25, 2\ns_lshr_b32 s27, s2, 6\ns_add_u32 s25, s25, s27")
        a("s_and_b32 s46, s20, 1\ns_lshr_b32 s47, s20, 1\nv_lshlrev_b32 v30, 4, v0")
        a("s_lshl_b32 s51, s26, 6\ns_lshl_b32 s27, s25, 2\ns_add_u32 s51, s51, s27\ns_add_u32 s51, s51, s20\ns_lshl_b32 s34, s51, 12")
        sh = {2: 3, 4: 2, 8: 1, 16: 0}[NPH]
        a(f"s_and_b32 s21, s26, {NPH-1}\ns_lshl_b32 s21, s21, {sh+7}\ns_mul_i32 s22, s21, 3072")
        a("s_lshl_b32 s35, s26, 18\ns_lshl_b32 s27, s20, 16\ns_add_u32 s35, s35, s27")
        a("v_lshrrev_b32 v16, 4, v0\nv_and_b32 v17, 7, v0\nv_xor_b32 v16, v16, v17\nv_lshl_add_u32 v16, v16, 4, s35\nv_lshrrev_b32 v18, 3, v0")
        a("v_lshl_add_u32 v2, v18, 11, v16\nv_xor_b32 v3, 64, v2")
        a(f"v_add_u32 v4, {16*2048 - 2048}, v2\nv_add_u32 v5, {24*2048 - 3072}, v3\nv_add_u32 v3, {8*2048 - 1024}, v3")
        a("s_lshl_b32 s27, s47, 5\ns_lshl_b32 s35, s46, 2\ns_add_u32 s35, s35, s27\ns_mul_i32 s35, s35, 6144\ns_lshl_b32 s27, s25, 7\ns_add_u32 s35, s35, s27")
        a("v_lshrrev_b32 v16, 4, v0\nv_lshlrev_b32 v16, 1, v16\nv_xor_b32 v16, v16, v17\nv_lshl_add_u32 v16, v16, 4, s35")
        a("v_lshrrev_b32 v18, 5, v0\nv_lshlrev_b32 v18, 3, v18\nv_bfe_u32 v19, v0, 3, 2\nv_add_u32 v18, v18, v19\nv_mul_u32_u24 v18, 6144, v18\nv_add_u32 v6, v18, v16")
        wimm = lambda part, i: (part*2048 + i*1024) % 4096
        for part in range(3):
            for i in range(2):
                if part or i: a(f"v_add_u32 v{6+2*part+i}, {16*i*6144 + part*2048 - wimm(part, i)}, v6")
        a("s_mul_i32 s45, s20, 10240\ns_mov_b32 s23, s45\ns_mov_b32 s44, 0")
        a("s_waitcnt lgkmcnt(0)")
        psrd(a, 8, P_X, 4<<20); psrd(a, 4, P_WQKV, 1024*6144); ws_srd(a, 16, WS_G, G_SIZE)
        a("s_cmp_ge_u32 s2, 8\ns_cbranch_scc1 L_nz")
        a(f"v_mov_b32 v24, 0\nv_mov_b32 v25, 0\nv_mov_b32 v26, 0\nv_mov_b32 v27, 0\ns_lshl_b32 s27, s20, 10\ns_lshl_b32 s35, s2, 12\ns_add_u32 s27, s27, s35\ns_add_u32 s27, s27, {G_FL}")
        a("buffer_store_dwordx4 v[24:27], v30, s[16:19], s27 offen sc1\nL_nz:")
        XR = 156
        c = gemm16.Cfg()
        c.TB, c.NB, c.SPS, c.NST, c.NDMA = 4, 6, 1, 16, 10
        c.tok_lds = True; c.drain_at_P = True; c.tok_early = 0
        c.BODY = 2; c.LA, c.WR = 2, 3; c.PBACK = 16; c.LDS2 = False
        c.acc = lambda j, tb: f"v[{32+4*(4*j+tb)}:{35+4*(4*j+tb)}]"
        c.tokreg = lambda sl, tb, s: f"a[{24+32*sl+8*tb+4*s}:{24+32*sl+8*tb+4*s+3}]"
        c.wreg = lambda sl, s: f"a[{8*sl+4*s}:{8*sl+4*s+3}]"
        c.swap = lambda j: j >= 4
        c.tokwait = {0: [0], 2: [1, 2, 3]}; c.first_zero = True
        def stat_loads(a):
            for i in range(4): a.vmem(f"buffer_load_dwordx4 v[{XR+4*i}:{XR+3+4*i}], v30, s[8:11], s34 offen offset:{1024*i}", ("xr",))
        c.prologue_00 = stat_loads
        def dma(a, st, i):
            f = []
            if i == 0:
                if st in (1, 2): f.append(lambda: a(f"s_add_u32 s23, s23, {SLOT}"))
                if st > 0: f.append(lambda: a("s_add_u32 s21, s21, 128")); f.append(lambda: a("s_and_b32 s21, s21, 0x7ff"))
                f.append(lambda: a("s_mov_b32 m0, s23"))
            if i == 4:
                if st > 0: f.append(lambda: a("s_mul_i32 s22, s21, 3072"))
                f.append(lambda: a("s_add_u32 m0, s23, 4096"))
            if i == 8: f.append(lambda: a("s_add_u32 m0, s23, 8192"))
            if i < 4: f.append(lambda: a.vmem(f"buffer_load_dwordx4 v{2+i}, s[8:11], s21 offen offset:{1024*i} lds", ("dma", st)))
            else: f.append(lambda: a.vmem(f"buffer_load_dwordx4 v{2+i}, s[4:7], s22 offen offset:{wimm((i-4)//2, i%2)} lds", ("dma", st)))
            return f
        c.dma = dma
        woff = lambda j, s, rd: (2*s+rd)*10240 + 4096 + (j//2)*2048
        def wread(a, st, sis, j, s, rd, sl, tag):
            lo = 8*sl + 4*s + 2*rd
            a.lds(f"ds_read_b64_tr_b16 a[{lo}:{lo+1}], v{14+j%2} offset:{woff(j, s, rd)}", tag)
        c.wread = wread
        c.tokread = lambda a, st, sis, tb, s, sl, tag: a.lds(f"ds_read_b128 {c.tokreg(sl, tb, s)}, v{12+s} offset:{(tb//2)*10240 + (tb%2)*2048}", tag)
        c.dmapos = lambda i: o.get("dmapos", [-15, -10, -6, -2, 2, 7, 12, 15, 19, 23])[i]
        WP, ONES, F, P, MX, MN, EF = 128, 136, 140, 156, 188, 192, 196
        CS = lambda j: (244 + 4*j) if j < 2 else (228 + 4*(j-2))
        V = lambda s, tag: (lambda: a.vmem(s, tag))
        X = lambda s: (lambda: a(s))
        def fixed(st):
            ex = []
            if st < c.NST - 1:
                def chk(s):
                    def f():
                        assert a.lg.count(("w", st*6+5, 1)) == 2 and ("w", st*6+6, 0) not in a.lg
                        a(s)
                    return f
                ex += [(22, X(f"s_cmp_eq_u32 s44, {2*SLOT}\ns_cselect_b32 s43, s42, s41"))]
                ex += [(28 + r, chk(f"v_add_u32 v{12+r}, s43, v{12+r}")) for r in range(4)]
            return ex
        c.fixed = fixed
        POSF = 8
        assert 16//NPH <= POSF - 1
        RG = o.get("pf_rows", 8)
        def extra(st):
            ex = []
            if 1 <= st < 12:
                ex += [(32, V("buffer_store_dwordx4 a[96:99], v28, s[36:39], 0 offen sc1", ("clr",))), (36, X("v_add_u32 v28, 1024, v28"))]
            if st == 12:
                ex += [(4, V("buffer_load_dword v20, v19, s[16:19], s40 offen sc1", ("rdy",)))]
            if st == 13:
                def check_ready():
                    a.wait(vm=[("rdy",)])
                    a("v_cmp_gt_u32 vcc, 1, v20\ns_nop 0\ns_cbranch_vccnz L_spin0\nL_rdy0:")
                seq = [check_ready]
                for u in range(4):
                    for x in range(2): seq.append(V(f"buffer_load_dwordx4 v[{P+8*u+4*x}:{P+3+8*u+4*x}], v21, s[16:19], s{52 + u//2} offen offset:{2048*(u%2)+16*x} sc1", ("cs",)))
                for tb in range(4): seq.append(V(f"buffer_load_dwordx2 v[{2+2*tb}:{3+2*tb}], v22, s[16:19], s55 offen offset:{128*tb} sc1", ("st",)))
                for tb in range(4):
                    for hf in range(2): seq.append(V(f"buffer_load_dwordx4 v[{EF+8*tb+4*hf}:{EF+3+8*tb+4*hf}], v23, s[16:19], s55 offen offset:{128*tb+16*hf} sc1", ("st",)))
                ex += [(26 + o.get("latestep", 3)*k, f) for k, f in enumerate(seq)]
            if st == 15:
                seq = [X(f"s_mov_b32 s4, s{P_WO}\ns_mov_b32 s5, s{P_WO+1}"), X(f"s_mov_b32 s6, {2<<20}\ns_lshl_b32 s27, s51, 11")]
                for i in range(2): seq.append(V(f"buffer_load_dwordx4 a[{88+4*i}:{91+4*i}], v30, s[4:7], s27 offen offset:{1024*i}", ("wo",)))
                if RG: seq.append(V("buffer_load_dword a251, v26, s[56:59], s60 offen", ("pf",)))
                ex += [(0, f) for f in seq]
                seq = [lambda: a.wait(vm=[("cs",)])]
                for j in range(6):
                    r = P + 4*(j%2) + j//2
                    seq += [X(f"v_add_f32 v{r}, v{r}, v{r+8}"), X(f"v_add_f32 v{r+16}, v{r+16}, v{r+24}"), X(f"v_add_f32 v{r}, v{r}, v{r+16}")]
                ex += [(20, f) for f in seq]
            return ex
        c.extra = extra
        def share_check(k):
            a(f"s_bitcmp1_b32 s50, s3\ns_cbranch_scc0 L_ns{k}\ns_getpc_b64 s[100:101]\ns_branch L_share\nL_ns{k}:\ns_add_u32 s3, s3, 1")
        def on_P(a, st):
            assert st + 2 >= c.NST or a.vm.count(("dma", st+2)) == 10
            a("s_add_u32 s23, s44, s45\ns_add_u32 s44, s44, s43")
            self.tr(f"1P{st}", 2)
            if st < 12: share_check(f"{st%2}{'p' if st < 2 else ''}")
        c.on_P = on_P
        def first_P(a):
            self.tr("1pro")
            a("s_lshr_b32 s27, s2, 3\ns_or_b32 s27, s27, s20\ns_cbranch_scc1 L_nl\nv_mov_b32 v16, 1\ns_lshl_b32 s27, s2, 2\ns_mov_b64 exec, 1\nbuffer_store_dword v16, v30, s[12:15], s27 offen sc1\ns_mov_b64 exec, -1\nL_nl:")
            share_check("f")
        c.first_P = first_P
        def pro0(a):
            psrd(a, 12, P_WPHI, 65536)
            a(f"s_lshl_b32 s27, s20, 10\ns_add_u32 m0, s27, {L_WPHI}\ns_lshl_b32 s35, s25, 12\ns_add_u32 s27, s27, s35")
            a.vmem("buffer_load_dwordx4 v30, s[12:15], s27 offen lds", ("wphi",))
            for fn in self.code_touch("a", "L_loop1", "L_code_end", 56, 24, 4): fn()
        c.prologue_0 = pro0
        def pro_work():
            srd(a, 12, "s30", "s31", 256)
            a(f"s_lshr_b32 s27, s26, {4-sh}\ns_lshl_b32 s50, 1, s27\ns_or_b32 s50, s50, {3 << (POSF-1)}\ns_mov_b32 s3, 0")
            a(f"s_mov_b32 s41, {SLOT}\ns_mov_b32 s42, {-2*SLOT & 0xffffffff}\ns_mov_b32 s40, {G_FL}")
            a("s_lshl_b32 s27, s25, 1\ns_add_u32 s48, s27, s47")
            a(f"s_mul_i32 s61, s25, {16*XS}\ns_add_u32 s61, s61, {G_XS}\ns_mul_i32 s27, s26, {XS}\ns_add_u32 s49, s61, s27")
            a(f"s_lshl_b32 s27, s20, 12\ns_add_u32 s62, s49, s27\ns_lshl_b32 s27, s47, 8\ns_lshl_b32 s35, s46, 3\ns_add_u32 s63, s27, s35\ns_add_u32 s63, s63, s49\ns_add_u32 s63, s63, {XS_Z}")
            a(f"s_mul_i32 s27, s20, 4608\ns_add_u32 s27, s27, s49\ns_add_u32 s36, s16, s27\ns_addc_u32 s37, s17, 0\ns_mov_b32 s38, 4608\ns_mov_b32 s39, 0x20000\ns_add_u32 s49, s49, {XS_T}")
            a("v_mov_b32 v28, v30")
            for r in range(96, 100): a(f"v_accvgpr_write_b32 a{r}, -1")
            a("v_and_b32 v16, 15, v0\nv_bfe_u32 v17, v0, 1, 3\nv_lshrrev_b32 v18, 4, v0\nv_xor_b32 v17, v17, v18\nv_lshlrev_b32 v17, 4, v17\nv_lshl_add_u32 v12, v16, 7, v17")
            a("s_mul_i32 s27, s46, 20480\nv_add_u32 v12, s27, v12\nv_xor_b32 v13, 64, v12")
            a(f"v_lshlrev_b32 v22, 3, v16\nv_lshlrev_b32 v23, 5, v18\nv_lshlrev_b32 v21, 5, v0\nv_mov_b32 v29, 1.0\nv_mul_u32_u24 v27, {XS}, v18\nv_lshl_add_u32 v27, v16, 4, v27")
            a("v_and_b32 v17, 3, v0\nv_lshlrev_b32 v17, 1, v17\nv_and_b32 v18, 12, v0\nv_lshl_or_b32 v17, v18, 4, v17\ns_and_b32 s27, s2, 0x39\nv_or_b32 v17, s27, v17")
            a("v_and_b32 v19, 1, v0\nv_and_b32 v18, 14, v0\nv_lshl_or_b32 v19, v18, 2, v19\ns_and_b32 s27, s2, 0xc6\nv_or_b32 v19, s27, v19")
            a("v_and_b32 v18, 16, v0\nv_cmp_eq_u32 vcc, 0, v18\nv_lshrrev_b32 v18, 2, v0\ns_nop 0\nv_cndmask_b32 v19, v19, v17, vcc\nv_lshlrev_b32 v19, 7, v19")
            a("v_lshlrev_b32 v16, 7, v18\nv_bfe_u32 v17, v0, 3, 2\nv_lshlrev_b32 v17, 5, v17\nv_and_b32 v18, 3, v0\nv_lshlrev_b32 v18, 3, v18\nv_add3_u32 v14, v16, v17, v18")
            a("s_lshl_b32 s27, s47, 6\nv_xor_b32 v14, s27, v14\nv_xor_b32 v15, 32, v14")
            a(f"s_lshl_b32 s52, s48, 13\ns_add_u32 s52, s52, {G_CS}\ns_add_u32 s53, s52, 4096")
            a(f"s_lshl_b32 s55, s26, 10\ns_lshl_b32 s27, s46, 9\ns_add_u32 s55, s55, s27\ns_add_u32 s55, s55, {G_ST1}")
            if RG:
                a(f"s_bitcmp1_b32 s20, 0\ns_cselect_b32 s56, s{P_WU}, s{P_WG}\ns_cselect_b32 s57, s{P_WU+1}, s{P_WG+1}\ns_mov_b32 s58, 7340032\ns_mov_b32 s59, 0x20000")
                a(f"s_lshr_b32 s60, s2, 3\ns_lshl_b32 s60, s60, 1\ns_add_u32 s60, s60, s47\ns_mul_i32 s60, s60, {RG*7168}\ns_and_b32 s27, s2, 7\ns_mul_i32 s27, s27, 896\ns_add_u32 s60, s60, s27")
                a(f"v_lshrrev_b32 v26, 3, v0\nv_min_u32 v26, {RG-1}, v26\nv_mul_u32_u24 v26, 7168, v26\nv_and_b32 v17, 7, v0\nv_min_u32 v17, 6, v17\nv_lshl_add_u32 v26, v17, 7, v26")
            for r in range(136, 140): a(f"v_mov_b32 v{r}, 0x3f803f80")
            a(self.ids24()); a(self.voff24(252, False))
        def stats():
            U = 196
            for q in range(2):
                for d in range(8): a(f"v_lshlrev_b32 v{U+16*q+2*d}, 16, v{XR+8*q+d}\nv_and_b32 v{U+1+16*q+2*d}, 0xffff0000, v{XR+8*q+d}")
            for q in range(2):
                a(f"v_add_f32 v{140+2*q}, v{U+16*q}, v{U+1+16*q}")
                for e in range(2, 16): a(f"v_add_f32 v{140+2*q}, v{140+2*q}, v{U+16*q+e}")
            allreduce64(a, [140, 142], [144, 145])
            for q in range(2):
                a(f"v_mul_f32 v{140+2*q}, 0x3a800000, v{140+2*q}")
                for e in range(16): a(f"v_sub_f32 v{U+16*q+e}, v{U+16*q+e}, v{140+2*q}")
                a(f"v_mul_f32 v{141+2*q}, v{U+16*q}, v{U+16*q}")
                for e in range(1, 16): a(f"v_fmac_f32 v{141+2*q}, v{U+16*q+e}, v{U+16*q+e}")
            allreduce64(a, [141, 143], [144, 145])
            for q in range(2): a(f"v_mov_b32 v144, 0x3727c5ac\nv_fmac_f32 v144, 0x3a800000, v{141+2*q}\nv_rsq_f32 v{141+2*q}, v144")
        def own1(a, dmas):
            pro_work(); a.wait(vm=[("xr",)]); self.weave(stats, dmas)
        c.own_stage1 = own1
        def pro_mid(a):
            a(f"s_lshl_b32 s27, s51, 4\ns_add_u32 s27, s27, {G_ST1}\ns_mov_b64 exec, 1")
            a.vmem("buffer_store_dwordx4 v[140:143], v30, s[16:19], s27 offen sc1", ("clr",))
            a("s_mov_b64 exec, -1")
        c.prologue_mid = pro_mid
        marks, stats_ = gemm16.mainloop(a, c)
        self.info.append(roll(a, marks, "L_loop1", "s24"))
        self.tr("1main")
        t(f"L_share:\ns_add_u32 s100, s100, 4\ns_addc_u32 s101, s101, 0\ns_cmp_lt_u32 s3, {POSF-1}\ns_cbranch_scc0 L_boot")
        t("s_lshl_b32 s27, s46, 5\nv_xor_b32 v16, s27, v14")
        for part in range(3):
            for s in range(2):
                for rd in range(2): t(f"ds_read_b64_tr_b16 v[{P+8*part+4*s+2*rd}:{P+8*part+4*s+2*rd+1}], v16 offset:{woff(2*part, s, rd)}")
        t(f"s_lshl_b32 s27, s46, 4\ns_lshl_b32 s35, s26, 9\ns_add_u32 s27, s27, s35\ns_add_u32 s27, s27, s52\ns_waitcnt lgkmcnt(0)")
        for part in range(3):
            for s in range(2): t(f"v_mfma_f32_16x16x32_bf16 v[{144+4*part}:{147+4*part}], v[{ONES}:{ONES+3}], v[{P+8*part+4*s}:{P+8*part+4*s+3}], {'0' if s == 0 else f'v[{144+4*part}:{147+4*part}]'}")
        t("s_nop 7\nv_mov_b32 v145, v148\nv_mov_b32 v146, v152\ns_mov_b64 exec, 0xffff")
        t("buffer_store_dwordx4 v[144:147], v21, s[16:19], s27 offen sc1\ns_mov_b64 exec, -1\ns_setpc_b64 s[100:101]")
        t(f"L_boot:\ns_cmp_eq_u32 s20, 0\ns_cbranch_scc0 L_ret\nv_and_b32 v16, 28, v31\ns_cmp_eq_u32 s3, {POSF-1}\ns_cbranch_scc0 L_flag")
        t("buffer_load_dword v20, v16, s[12:15], 0 offen sc1\ns_setpc_b64 s[100:101]")
        t(f"L_flag:\ns_mov_b32 s27, {SPIN}\nL_flagb:\nv_cmp_eq_u32 vcc, 0, v20\ns_sub_u32 s27, s27, 1\ns_cbranch_vccz L_flagc\ns_cmp_eq_u32 s27, 0\ns_cbranch_scc1 L_flagc")
        t("buffer_load_dword v20, v16, s[12:15], 0 offen sc1\ns_waitcnt vmcnt(0)\ns_branch L_flagb")
        t("L_flagc:\nv_mov_b32 v16, 1\ns_lshl_b32 s27, s2, 7\ns_add_u32 s27, s27, s40\ns_mov_b64 exec, 1\nbuffer_store_dword v16, v30, s[16:19], s27 offen sc1\ns_mov_b64 exec, -1")
        t("L_ret:\ns_setpc_b64 s[100:101]")
        t(f"L_spin0:\ns_mov_b32 s27, {SPIN}\nL_spin0b:\nbuffer_load_dword v20, v19, s[16:19], s40 offen sc1\ns_waitcnt vmcnt(0)\nv_cmp_gt_u32 vcc, 1, v20\ns_sub_u32 s27, s27, 1")
        t("s_cbranch_vccz L_rdy0\ns_cmp_lg_u32 s27, 0\ns_cbranch_scc1 L_spin0b\ns_branch L_rdy0")
        S = lambda sg, tb: (140 if sg == 0 else 228) + 4*tb
        mf = lambda d, A_, B_, C_: a(f"v_mfma_f32_16x16x32_bf16 v[{d}:{d+3}], v[{A_}:{A_+3}], v[{B_}:{B_+3}], {C_ if C_ == '0' else f'v[{C_}:{C_+3}]'}")
        pre2 = lambda sts: [self.pre24(st, i, B2[st], 252, 4) for st in sts for i in range(4)]
        for j in (2, 3, 4, 5, 0, 1):
            r = P + 4*(j%2) + j//2
            A_, B_ = (r, 29) if j < 4 else (29, r)
            a(f"v_mfma_f32_16x16x4_f32 v[{CS(j)}:{CS(j)+3}], v{A_}, v{B_}, 0")
        a(f"v_lshrrev_b32 v16, 2, v0\nv_lshlrev_b32 v16, 6, v16\nv_and_b32 v17, 3, v0\nv_lshl_add_u32 v16, v17, 3, v16\ns_lshl_b32 s27, s47, 11\ns_add_u32 s27, s27, {L_WPHI}\nv_add_u32 v16, s27, v16")
        for fb in range(2):
            for rd in range(2): a(f"ds_read_b64_tr_b16 v[{WP+4*fb+2*rd}:{WP+4*fb+2*rd+1}], v16 offset:{1024*rd + 32*fb}")
        a.wait(vm=[("st",)])
        for tb in range(4): a(f"v_mul_f32 v{3+2*tb}, {LOG2E}, v{3+2*tb}")
        pk = lambda r: f"v[{r}:{r+1}]"
        def feat1(j0, between=None):
            b = 32 + 16*j0
            for tb in range(4):
                for x in range(2):
                    for h in (0, 2): a(f"v_pk_fma_f32 {pk(b+16*x+4*tb+h)}, {pk(2+2*tb)}, {pk(CS(j0+x)+h)}, {pk(b+16*x+4*tb+h)} op_sel_hi:[0,1,1] neg_lo:[1,0,0] neg_hi:[1,0,0]")
                for d in range(4): a(f"v_cvt_pk_bf16_f32 v{F+4*tb+d}, v{b+16*(d//2)+4*tb+2*(d%2)}, v{b+16*(d//2)+4*tb+2*(d%2)+1}")
            a("s_waitcnt lgkmcnt(0)\ns_nop 0")
            for tb in range(4):
                for fb in range(2): mf(P + 8*tb + 4*fb, WP + 4*fb, F + 4*tb, "0")
            if between: between()
            else: a("s_nop 3")
            for tb in range(4):
                p = P + 8*tb
                for dst, op3, op2 in ((MX+tb, "v_max3_f32", "v_max_f32"), (MN+tb, "v_min3_f32", "v_min_f32")):
                    a(f"{op3} v{dst}, v{p}, v{p+1}, v{p+2}\n{op3} v{dst}, v{dst}, v{p+3}, v{p+4}\n{op3} v{dst}, v{dst}, v{p+5}, v{p+6}\n{op2} v{dst}, v{dst}, v{p+7}")
            rs4(a, MX, "v_max_f32"); rs4(a, MN, "v_min_f32")
            bc4(a, MX); bc4(a, MN)
            for tb in range(4): a(f"v_mul_f32 v{MX+tb}, v{MX+tb}, v{3+2*tb}\nv_mul_f32 v{MN+tb}, v{MN+tb}, v{3+2*tb}")
        def feat2(b):
            for tb in range(4):
                sel = tb % 2; mx, mn = pk(MX+tb-sel), pk(MN+tb-sel)
                for e in range(0, 8, 2): a(f"v_pk_fma_f32 {pk(b+8*tb+e)}, {pk(P+8*tb+e)}, {pk(2+2*tb)}, {mx} op_sel:[0,1,{sel}] op_sel_hi:[1,1,{sel}] neg_lo:[0,0,1] neg_hi:[0,0,1]")
                for e in range(0, 8, 2): a(f"v_pk_fma_f32 {pk(P+8*tb+e)}, {pk(P+8*tb+e)}, {pk(2+2*tb)}, {mn} op_sel:[0,1,{sel}] op_sel_hi:[1,1,{sel}] neg_lo:[1,0,0] neg_hi:[1,0,0]")
                for e in range(8): a(f"v_exp_f32 v{b+8*tb+e}, v{b+8*tb+e}")
                for e in range(8): a(f"v_exp_f32 v{P+8*tb+e}, v{P+8*tb+e}")
                for sg, src in ((0, b), (1, P)):
                    for d in range(4): a(f"v_cvt_pk_bf16_f32 v{EF+16*sg+4*tb+d}, v{src+8*tb+2*d}, v{src+8*tb+2*d+1}")
            a("s_nop 1")
            for tb in range(4):
                for sg in range(2): mf(S(sg, tb), ONES, EF + 16*sg + 4*tb, "0")
        def scale_pack(b, sc, after=None):
            for tb in range(4):
                for sg, src in ((0, b), (1, P)):
                    for e in range(0, 8, 2): a(f"v_pk_mul_f32 {pk(src+8*tb+e)}, {pk(src+8*tb+e)}, {pk(sc(sg, tb))} op_sel_hi:[1,0]")
                    for d in range(4): a(f"v_cvt_pk_bf16_f32 v{EF+16*sg+4*tb+d}, v{src+8*tb+2*d}, v{src+8*tb+2*d+1}")
                    if after: after(tb, sg)
        VF, VG, AF, KV, Z = 96, 80, 156, 112, 64
        def vside():
            for db in range(2):
                for tb in range(4):
                    for r in range(4):
                        x = 96 + 16*db + 4*tb + r
                        a(f"v_fma_f32 v{x}, -v{EF+8*tb+2*r}, v{CS(4+db)}, v{x}\nv_mul_f32 v{x}, v{x}, v{EF+8*tb+2*r+1}")
                for d in range(8): a(f"v_cvt_pk_bf16_f32 v{VF+8*db+d}, v{96+16*db+2*d}, v{97+16*db+2*d}")
            a(f"s_lshl_b32 s27, s20, 12\ns_add_u32 s27, s27, {L_VB}\nv_add_u32 v24, s27, v30\nv_xor_b32 v25, 4096, v24")
            for i in range(4): a(f"ds_write_b128 v24, v[{VF+4*i}:{VF+4*i+3}] offset:{1024*i}")
        def kside():
            feat1(2, vside); feat2(64)
            a("v_bfe_u32 v16, v0, 1, 2\nv_lshlrev_b32 v16, 2, v16\nv_and_b32 v17, 1, v0\nv_bfe_u32 v18, v0, 3, 1\nv_lshlrev_b32 v18, 1, v18\nv_or3_b32 v16, v16, v17, v18")
            a("v_lshrrev_b32 v17, 4, v0\nv_xor_b32 v16, v16, v17\nv_lshlrev_b32 v16, 3, v16\nv_and_b32 v17, 15, v0\nv_lshl_add_u32 v10, v17, 7, v16")
            a(f"s_lshl_b32 s27, s47, 14\ns_lshl_b32 s35, s46, 13\ns_add_u32 s27, s27, s35\ns_add_u32 s27, s27, {L_PH}\nv_add_u32 v10, s27, v10")
            for q in range(1, 4): a(f"v_xor_b32 v{10+q}, {32*q}, v10")
            for sg in range(2):
                for tb in range(4): a(f"v_rcp_f32 v{S(sg, tb)}, v{S(sg, tb)}")
            a("s_nop 0")
            def wr(tb, sg):
                for fb in range(2): a(f"ds_write_b64 v{10+2*sg+fb}, v[{EF+16*sg+4*tb+2*fb}:{EF+16*sg+4*tb+2*fb+1}] offset:{2048*tb}")
            scale_pack(64, S, wr)
            a("v_bfe_u32 v16, v0, 3, 2\nv_lshlrev_b32 v16, 2, v16\nv_bfe_u32 v17, v0, 2, 1\nv_lshrrev_b32 v18, 5, v0\nv_lshlrev_b32 v18, 1, v18\nv_or3_b32 v16, v16, v17, v18")
            a("v_and_b32 v17, 3, v0\nv_xor_b32 v16, v16, v17\nv_lshlrev_b32 v16, 3, v16\nv_lshrrev_b32 v17, 2, v0\nv_lshl_add_u32 v14, v17, 7, v16")
            a(f"s_lshl_b32 s27, s46, 6\nv_xor_b32 v14, s27, v14\ns_lshl_b32 s27, s47, 14\ns_add_u32 s27, s27, {L_PH}\ns_add_u32 s34, s27, s35\ns_xor_b32 s35, s35, 8192\ns_add_u32 s35, s27, s35")
            a("v_add_u32 v16, s35, v14\nv_add_u32 v14, s34, v14\nv_xor_b32 v15, 32, v14\nv_xor_b32 v17, 32, v16")
        self.weave(kside, pre2((4, 5, 6, 7)), o.get("skip", 120))
        self.tr("1kside", 2)
        a("s_waitcnt lgkmcnt(0)\ns_barrier")
        for who in range(2):
            for fb in range(2):
                for ks in range(2):
                    for rd in range(2):
                        r = AF + 16*who + 8*fb + 4*ks + 2*rd
                        a(f"ds_read_b64_tr_b16 v[{r}:{r+1}], v{14+2*who+fb} offset:{(32*ks + 16*rd)*128}")
            if who == 0:
                for i in range(4): a(f"ds_read_b128 v[{VG+4*i}:{VG+4*i+3}], v25 offset:{1024*i}")
        for who in range(2):
            a(f"s_waitcnt lgkmcnt({12 if who == 0 else 0})")
            for fb in range(2):
                for db in range(3):
                    for ks in range(2):
                        af = AF + 16*who + 8*fb + 4*ks
                        first = who == 0 and ks == 0
                        if db < 2: mf(KV + 8*fb + 4*db, af, (VF if who == 0 else VG) + 8*db + 4*ks, "0" if first else KV + 8*fb + 4*db)
                        else: mf(Z + 4*fb, ONES, af, "0" if first else Z + 4*fb)
        a(f"s_lshl_b32 s27, s26, 10\ns_add_u32 s52, s61, s27\ns_lshl_b32 s27, s47, 8\ns_add_u32 s53, s61, s27\ns_add_u32 s53, s53, {XS_Z}\ns_nop 2")
        for i in range(4): a.vmem(f"buffer_store_dwordx4 v[{KV+4*i}:{KV+4*i+3}], v30, s[16:19], s62 offen offset:{1024*i} sc1", ("pub",))
        a(f"v_mov_b32 v{Z+1}, v{Z+4}\ns_mov_b64 exec, 0xffff")
        a.vmem(f"buffer_store_dwordx2 v[{Z}:{Z+1}], v30, s[16:19], s63 offen sc1", ("pub",))
        a("s_mov_b64 exec, -1")
        self.tr("1pub")
        a.wait(vm=[("wo",)])
        a(f"v_mfma_f32_16x16x32_bf16 v[96:99], v[{ONES}:{ONES+3}], a[88:91], 0\nv_mfma_f32_16x16x32_bf16 v[96:99], v[{ONES}:{ONES+3}], a[92:95], v[96:99]")
        a("s_lshr_b32 s34, s51, 5\ns_lshl_b32 s34, s34, 7\ns_bfe_u32 s35, s51, 0x20002\ns_lshl_b32 s35, s35, 5\ns_add_u32 s34, s34, s35")
        a(f"s_and_b32 s35, s51, 3\ns_lshl_b32 s35, s35, 1\ns_add_u32 s34, s34, s35\ns_bfe_u32 s35, s51, 0x10004\ns_lshl_b32 s35, s35, 3\ns_add_u32 s34, s34, s35\ns_add_u32 s54, s34, {G_WB}")
        rowsum16(a, [96])
        a("v_mul_f32 v96, 0x3a800000, v96\nv_cvt_pk_bf16_f32 v97, v96, v96\nv_lshlrev_b32 v98, 16, v97\nv_sub_f32 v98, v96, v98\nv_cvt_pk_bf16_f32 v98, v98, v98\ns_mov_b64 exec, 1")
        a.vmem("buffer_store_short v97, v30, s[16:19], s54 offen sc1", ("wb",)); a.vmem("buffer_store_short v98, v30, s[16:19], s54 offen offset:16 sc1", ("wb",))
        a("s_mov_b64 exec, -1")
        def strided(n, first, stride, mk, tag):
            return [[X(f"s_mov_b32 s34, {first}" if i == 0 else f"s_add_u32 s34, s34, {stride}"), V(mk(i), tag)] for i in range(n)]
        kv_ops = lambda: strided(16, "s52", XS, lambda i: f"buffer_load_dword v{64+i}, v31, s[16:19], s34 offen sc1", ("kv",))
        z_ops = lambda: strided(4, "s53", 4*XS, lambda i: f"buffer_load_dwordx4 v[{80+4*i}:{83+4*i}], v27, s[16:19], s34 offen sc1", ("z",))
        tot_ops = lambda: strided(8, "s52", XS, lambda i: f"buffer_load_dwordx4 v[{64+4*i}:{67+4*i}], v30, s[16:19], s34 offen sc1", ("tot",))
        def retry(k, regs, ops):
            a(f"s_mov_b32 s27, {SPIN}\nL_chk{k}:")
            umax(a, 20, regs)
            a(f"v_cmp_eq_u32 vcc, -1, v20\ns_sub_u32 s27, s27, 1\ns_cbranch_vccnz L_again{k}\nL_ok{k}:")
            keep, a.lines, vm = a.lines, [], list(a.vm)
            a(f"L_again{k}:\ns_cmp_eq_u32 s27, 0\ns_cbranch_scc1 L_ok{k}")
            for g in ops(): self.group(g)
            a(f"s_waitcnt vmcnt(0)\ns_branch L_chk{k}")
            t.lines += a.lines; a.lines = keep; a.vm = vm
        self.weave(lambda: feat1(0), pre2((0, 1)))
        if o.get("early1", 1): self.weave(lambda: feat2(32), kv_ops() + z_ops(), o.get("skip1", 0))
        else:
            feat2(32)
            for g in kv_ops() + z_ops(): self.group(g)
        a(self.rowmajor24(24, 26))
        self.tr("1q", 2)
        a.wait(vm=[("kv",)])
        retry(1, range(64, 80), kv_ops)
        self.tr("1hop1")
        for st_ in (8, 4, 2):
            for i in range(0, st_, 2): a(f"v_pk_add_f32 {pk(64+i)}, {pk(64+i)}, {pk(64+i+st_)}")
        a("v_add_f32 v64, v64, v65")
        a.vmem("buffer_store_dword v64, v31, s[16:19], s49 offen sc1", ("tots",))
        a.wait(vm=[("z",)])
        retry(2, range(80, 96), z_ops)
        for q in range(8): a(f"v_add_f32 v{80+q}, v{80+q}, v{88+q}")
        for q in range(4): a(f"v_add_f32 v{80+q}, v{80+q}, v{84+q}")
        a("s_nop 1")
        for q in range(4): a(f"v_mfma_f32_16x16x4_f32 v[{100+4*q}:{103+4*q}], v{80+q}, v29, 0")
        a(f"s_mul_i32 s27, s47, {8*XS}\ns_add_u32 s52, s61, s27\ns_add_u32 s52, s52, {XS_T}")
        a("s_lshl_b32 s27, s26, 3\ns_lshl_b32 s34, s46, 2\ns_add_u32 s27, s27, s34\ns_lshl_b32 s54, s27, 15\ns_lshl_b32 s35, s48, 10\ns_add_u32 s54, s54, s35")
        ws_srd(a, 36, WS_O, 4<<20)
        ZF, ZQ = 120, 64
        for d in range(8): a(f"v_cvt_pk_bf16_f32 v{ZF+d}, v{100+2*d}, v{101+2*d}")
        a("s_nop 1")
        for tb in range(4):
            for sg in range(2): mf(ZQ + 16*sg + 4*tb, ZF + 4*sg, EF + 16*sg + 4*tb, "0")
        a("s_nop 7\ns_mov_b32 s27, 0x358637bd")
        for tb in range(4):
            a(f"v_fma_f32 v{ZQ+4*tb}, v{S(0,tb)}, s27, v{ZQ+4*tb}\nv_mul_f32 v{ZQ+4*tb}, v{ZQ+4*tb}, v{S(1,tb)}\nv_fmac_f32 v{ZQ+4*tb}, v{ZQ+16+4*tb}, v{S(0,tb)}")
            a(f"v_rcp_f32 v{ZQ+4*tb}, v{ZQ+4*tb}")
        a("s_nop 0")
        for tb in range(4): a(f"v_mul_f32 v{100+2*tb}, v{ZQ+4*tb}, v{S(1,tb)}\nv_mul_f32 v{108+2*tb}, v{ZQ+4*tb}, v{S(0,tb)}")
        self.weave(lambda: scale_pack(32, lambda sg, tb: 100 + 8*sg + 2*tb), tot_ops())
        for tb in range(2):
            for u in range(2): a.vmem(f"buffer_load_dwordx4 v[{P+8*tb+4*u}:{P+3+8*tb+4*u}], v{24+tb}, s[8:11], s86 offen offset:{64*u}", ("x2",))
        self.tr("1z", 2)
        a.wait(vm=[("tot",)])
        retry(3, range(64, 96), tot_ops)
        self.tr("1hop2")
        KF, O = 96, 32
        for sg in range(2):
            for db in range(2):
                for d in range(4):
                    r = 64 + 16*sg + 8*(d//2) + 4*db + 2*(d % 2)
                    a(f"v_cvt_pk_bf16_f32 v{KF+8*sg+4*db+d}, v{r}, v{r+1}")
        a("s_nop 1")
        for tb in range(4):
            for db in range(2):
                d = O + 8*tb + 4*db
                mf(d, KF + 4*db, EF + 4*tb, "0"); mf(d, KF + 8 + 4*db, EF + 16 + 4*tb, d)
        for tb in range(4):
            for d in range(4): a(f"v_cvt_pk_bf16_f32 v{64+4*tb+d}, v{O+8*tb+2*d}, v{O+8*tb+2*d+1}")
            a.vmem(f"buffer_store_dwordx4 v[{64+4*tb}:{67+4*tb}], v30, s[36:39], s54 offen sc1", ("o",))
            if tb < 3: a("s_add_u32 s54, s54, 32768")
        self.tr("1end")
        a.wait(vm=[("x2",)])
        for tb in range(2):
            for u in range(2):
                x = P + 8*tb + 4*u
                a(f"v_permlane16_swap_b32 v{x}, v{x+2}\nv_permlane16_swap_b32 v{x+1}, v{x+3}")
                for d in range(4):
                    r = 32 + 4*(2*(2*u + d//2) + tb) + 2*(d % 2)
                    a(f"v_lshlrev_b32 v{r}, 16, v{x+d}\nv_and_b32 v{r+1}, 0xffff0000, v{x+d}")
        self.signal(2)
        for g in pre2((2, 3)): self.group(g)

    def setup3(self):
        a = self.a
        a("s_and_b32 s25, s2, 7\ns_lshl_b32 s25, s25, 2\ns_bfe_u32 s27, s2, 0x20003\ns_add_u32 s25, s25, s27\ns_lshr_b32 s26, s2, 5")
        a("s_movk_i32 s27, 6944\nv_lshlrev_b32 v9, 4, v0")
        for i in range(7):
            a(f"v_add_u32 v14, {64*i}, v0\nv_mul_u32_u24 v14, 4682, v14\nv_lshrrev_b32 v14, 16, v14\nv_mad_u32_u24 v{2+i}, v14, s27, v9")
            if i >= 4: a(f"v_add_u32 v{2+i}, 4096, v{2+i}")
        a("s_lshl_b32 s87, s26, 4\ns_lshl_b32 s35, s20, 2\ns_add_u32 s87, s87, s35")
        a("v_add_u32 v10, 32768, v9\nv_add_u32 v11, 65536, v9\nv_add_u32 v12, 98304, v9")
        a("s_mul_i32 s22, s47, 229376\ns_mul_i32 s27, s25, 224\ns_add_u32 s22, s22, s27")
        a("s_mul_i32 s27, s46, 14336\ns_mul_i32 s23, s47, 7168\ns_add_u32 s23, s23, s27")
        a(f"s_bitcmp1_b32 s20, 0\ns_cselect_b32 s4, s{P_WU}, s{P_WG}\ns_cselect_b32 s5, s{P_WU+1}, s{P_WG+1}\ns_mov_b32 s6, 7340032")
        a("v_lshrrev_b32 v14, 2, v0\nv_mul_u32_u24 v14, 224, v14\nv_and_b32 v15, 3, v0\nv_lshl_add_u32 v13, v15, 3, v14")
    def dma3(self, a, st, i):
        f = []
        if i == 0 and st >= 2 and st % 2 == 0: f.append(lambda: a("s_xor_b32 s23, s23, 0x10000"))
        if i == 0 and st > 0: f.append(lambda: a(f"s_add_u32 s22, s22, {64*7168}"))
        if i % 4 == 0: f.append(lambda: a(f"s_add_u32 m0, s23, {(st%2)*32768 + i*1024}"))
        f.append(lambda: a.vmem(f"buffer_load_dwordx4 v{2+i}, s[4:7], s22 offen offset:{1024*(i%4)} lds", ("dma", st)))
        return f

    def phase2(self):
        a, o = self.a, self.o.get("k2", {})
        TR = o.get("TR", 8)
        self.setup3()
        a(self.rdaddr24(16))
        a(f"v_lshrrev_b32 v20, 4, v0\nv_lshlrev_b32 v20, 5, v20\nv_and_b32 v21, 1, v0\nv_lshl_add_u32 v20, v21, 4, v20\nv_add_u32 v20, {L_WB}, v20")
        a("v_and_b32 v22, 15, v0\nv_lshlrev_b32 v22, 3, v22\nv_and_b32 v23, 31, v0\nv_lshlrev_b32 v23, 2, v23")
        for r in range(64, 72): a(f"v_mov_b32 v{r}, 0")
        a("s_lshl_b32 s21, s82, 15")
        ws_srd(a, 8, WS_HC, 4<<20)
        for fn in self.code_touch("b", "L_ph3", "L_ph4", 56, 26, 2): fn()
        self.await_(2, "s_lshr_b32 s34, s80, 3\ns_and_b32 s35, s80, 7\ns_lshl_b32 s35, s35, 3\ns_or_b32 s34, s34, s35\n"
                       "v_and_b32 v31, 3, v0\nv_lshlrev_b32 v31, 1, v31\nv_and_b32 v30, 12, v0\nv_lshl_or_b32 v31, v30, 4, v31\nv_or_b32 v31, s34, v31")
        self.tr("2start")
        c = gemm16.Cfg()
        c.TB, c.NB, c.SPS, c.NST, c.NDMA = 2, 4, 2, 8, 4
        c.PRE = 8; c.TR = TR; c.BODY = 8; c.LA, c.WR = o.get("LA", 2), 4
        c.PBACK = 4*c.LA; c.LDS2 = False
        accr = lambda j, tb: 32 + 4*(2*j+tb)
        c.acc = lambda j, tb: f"v[{accr(j,tb)}:{accr(j,tb)+3}]"
        c.tokreg = lambda sl, tb, s: f"a[{40+16*sl+8*tb+4*s}:{40+16*sl+8*tb+4*s+3}]"
        c.wreg = lambda sl, s: f"a[{8*sl+4*s}:{8*sl+4*s+3}]"
        def tok(a, t, tb, s):
            f = []
            if t % 2 == 0 and tb == 0 and s == 0 and t > 0: f.append(lambda: a("s_add_u32 s21, s21, 4096"))
            f.append(lambda: a.vmem(f"buffer_load_dwordx4 {c.tokreg(t % c.TR, tb, s)}, v{9+tb}, s[36:39], s21 offen offset:{1024*((2*t+s)%4)} sc1", ("tok", t, tb, s)))
            return f
        c.tok = tok; c.tokpos = lambda i: 4*i
        def wread(a, st, sis, j, s, rd, sl, tag):
            lo = 8*sl + 4*s + 2*rd
            a.lds(f"ds_read_b64_tr_b16 a[{lo}:{lo+1}], v{16+j} offset:{(st%2)*16384 + (64*sis + 32*s + 16*rd)*128}", tag)
        c.wread = wread
        PB = 4
        c.barrier_at = lambda st: st == PB
        def on_P(a, st):
            if st % 2 == 1:
                for sg in range(4): a(f"v_add_u32 v{16+sg}, {B2[st+1] - B2[st-1]}, v{16+sg}")
        c.on_P = on_P
        def pro00(a):
            a(f"s_lshl_b32 s27, s20, 10\ns_add_u32 m0, s27, {L_WB}\ns_add_u32 s27, s27, {G_WB}")
            a.vmem("buffer_load_dwordx4 v9, s[16:19], s27 offen sc1 lds", ("wb",))
        c.prologue_00 = pro00
        c.first_tok = lambda a: a("s_barrier")
        def post_block(a, st, sis, j, sl):
            t = st*2 + sis
            if j == 0:
                for s_ in range(2): a.lds(f"ds_read_b128 a[{32+4*s_}:{35+4*s_}], v20 offset:{t*256 + s_*128}", ("wbf", t))
            if j == 3:
                a.wait(lg=[("wbf", t)])
                for tb in range(2):
                    for s_ in range(2): a(f"v_mfma_f32_16x16x32_bf16 v[{64+4*tb}:{67+4*tb}], a[{32+4*s_}:{35+4*s_}], {c.tokreg(t % c.TR, tb, s_)}, v[{64+4*tb}:{67+4*tb}]")
        c.post_block = post_block
        V = lambda s, tag: (lambda: a.vmem(s, tag))
        X = lambda s: (lambda: a(s))
        def extra(st):
            ex = []
            if st == PB + 1:
                ex += [(0, X("s_lshl_b32 s27, s82, 7")), (0, X(f"s_add_u32 s27, s27, {G_ST1}"))]
                ex += [(0, V(f"buffer_load_dword v{24+tb}, v22, s[16:19], s27 offen offset:{128*tb} sc1", ("m1",))) for tb in range(2)]
                k = 0
                for s3 in range(2):
                    for i in range(7):
                        for fn in self.dma3(a, s3, i): ex.append((6 + o.get("pstep", 5)*k, fn))
                        k += 1
            return ex
        c.extra = extra
        gemm16.mainloop(a, c)
        self.tr("2main")
        pk = lambda r: f"v[{r}:{r+1}]"
        a("s_lshl_b32 s34, s82, 15\ns_lshl_b32 s27, s81, 11\ns_add_u32 s34, s34, s27\ns_lshl_b32 s35, s81, 13\ns_lshl_b32 s27, s82, 6\ns_add_u32 s35, s35, s27")
        a.wait(vm=[("m1",)])
        a("s_nop 1")
        for tb in range(2): a(f"v_add_f32 v{64+4*tb}, v{64+4*tb}, v{65+4*tb}\nv_add_f32 v{24+tb}, v{24+tb}, v{64+4*tb}")
        for tb in range(2):
            for u in range(2):
                x = 72 + 8*tb + 4*u
                for d in range(4):
                    r = accr(2*u + d//2, tb) + 2*(d % 2)
                    a(f"v_pk_add_f32 {pk(r+64)}, {pk(r)}, v[24:25] op_sel:[0,{tb}] op_sel_hi:[1,{tb}] neg_lo:[0,1] neg_hi:[0,1]")
                for d in range(4):
                    r = accr(2*u + d//2, tb) + 2*(d % 2) + 64
                    a(f"v_cvt_pk_bf16_f32 v{x+d}, v{r}, v{r+1}")
                a.vmem(f"buffer_store_dwordx4 v[{x}:{x+3}], v{9+tb}, s[8:11], s34 offen offset:{1024*u} sc1", ("hc",))
        for tb in range(2):
            rs = [accr(nb, tb) + h + 64 for nb in range(4) for h in (0, 2)]
            a(f"v_pk_mul_f32 {pk(26+2*tb)}, {pk(rs[0])}, {pk(rs[0])}")
            for r in rs[1:]: a(f"v_pk_fma_f32 {pk(26+2*tb)}, {pk(r)}, {pk(r)}, {pk(26+2*tb)}")
        a("v_add_f32 v26, v26, v27\nv_add_f32 v28, v28, v29\ns_nop 1\nv_permlane16_swap_b32 v26, v28\ns_nop 0\nv_add_f32 v26, v26, v28\nv_mov_b32 v28, v26\ns_nop 1\nv_permlane32_swap_b32 v26, v28\ns_nop 0\nv_add_f32 v26, v26, v28")
        a.vmem("buffer_store_dword v26, v23, s[16:19], s35 offen sc1", ("ss",))
        self.tr("2end")
        for r in range(32): a(f"v_accvgpr_write_b32 a{HSAVE+r}, v{32+r}")
        self.signal(3)

    def phase3(self):
        a, o = self.a, self.o.get("k3", {})
        PKF, D, G0, PRE = o.get("pkf", 4), o.get("pfd", 8), o.get("g0", 1), o.get("pre", 2)
        a("L_ph3:")
        for s3 in range(2, PRE):
            for i in range(7): self.group(self.dma3(a, s3, i))
        a("s_lshl_b32 s21, s87, 15")
        ws_srd(a, 12, WS_HH, 2048*3584*2); psrd(a, 40, P_WD, 7340032)
        a("s_lshl_b32 s38, s87, 6\nv_lshlrev_b32 v14, 2, v0")
        a(f"s_lshr_b32 s36, s2, 3\ns_lshl_b32 s36, s36, 1\ns_add_u32 s36, s36, s47\ns_add_u32 s36, s36, {64*D}\ns_mul_i32 s36, s36, 7168\ns_and_b32 s37, s2, 7\ns_mul_i32 s37, s37, 896\ns_add_u32 s36, s36, s37")
        a("s_lshl_b32 s37, s2, 2\ns_add_u32 s37, s37, s20\ns_mul_i32 s37, s37, 896")
        W0 = o.get("w0", 4)
        a(f"s_add_u32 s48, s36, {(15-D)*64*7168}\ns_mov_b32 s49, s37\ns_add_u32 s50, s37, {7*917504}\ns_sub_u32 s37, s37, {W0*917504}")
        a("v_min_u32 v1, 6, v0\nv_lshlrev_b32 v1, 7, v1")
        self.await_(3, "s_lshr_b32 s34, s26, 1\ns_lshl_b32 s34, s34, 1\ns_and_b32 s35, s26, 1\ns_lshl_b32 s35, s35, 4\ns_or_b32 s34, s34, s35\n"
                       "v_and_b32 v31, 1, v0\nv_and_b32 v30, 2, v0\nv_lshl_or_b32 v31, v30, 2, v31\nv_and_b32 v30, 28, v0\nv_lshl_or_b32 v31, v30, 3, v31\nv_or_b32 v31, s34, v31")
        self.tr("3start")
        c = gemm16.Cfg()
        c.TB, c.NB, c.SPS, c.NST, c.NDMA = 4, 14, 1, 16, 7
        c.TR = 2; c.BODY = 2; c.LA, c.WR = 2, 4; c.PRE = PRE
        c.PBACK = 16; c.LDS2 = False; c.first_zero = True
        accr = lambda j, tb: 32 + 4*(4*j+tb)
        c.acc = lambda j, tb: f"v[{accr(j,tb)}:{accr(j,tb)+3}]"
        c.tokreg = lambda sl, tb, s: f"a[{32+32*sl+8*tb+4*s}:{32+32*sl+8*tb+4*s+3}]"
        c.wreg = lambda sl, s: f"a[{8*sl+4*s}:{8*sl+4*s+3}]"
        c.dma = self.dma3
        def tok(a, t, tb, s, sl=None):
            f = []
            if t % 2 == 0 and tb == 0 and s == 0 and t > 0: f.append(lambda: a("s_add_u32 s21, s21, 4096"))
            f.append(lambda: a.vmem(f"buffer_load_dwordx4 {c.tokreg(t % 2 if sl is None else sl, tb, s)}, v{9+tb}, s[8:11], s21 offen offset:{1024*((2*t+s)%4)} sc1", ("tok", t, tb, s)))
            return f
        c.tok = tok
        woff = lambda st, j, s, rd: (st%2)*32768 + (j%2)*14336 + (32*s + 16*rd)*224 + (j//2)*32
        def wread(a, st, sis, j, s, rd, sl, tag):
            lo = 8*sl + 4*s + 2*rd
            a.lds(f"ds_read_b64_tr_b16 a[{lo}:{lo+1}], v13 offset:{woff(st, j, s, rd)}", tag)
        c.wread = wread
        def on_P(a, st):
            if st % 2 == 1: a("v_xor_b32 v13, 0x10000, v13")
            self.tr(f"3P{st}", 3)
        c.on_P = on_P
        c.first_tok = lambda a: self.tr("3tok")
        c.pos_by_stage = True
        c.tokpos = lambda i, st: 30 + 3*i if st == 13 else 4 + 4*i
        c.dmapos = lambda i, st: 4*i if st == 13 else 36 + 8*i
        c.drain_at = lambda st: st == 13
        V = lambda s, tag: (lambda: a.vmem(s, tag))
        X = lambda s: (lambda: a(s))
        def extra(st):
            ex = []; g = o.get("pfgap", 90)
            if D < 16 and G0 <= st < 12:
                ex += [(g, V("buffer_load_dword a250, v1, s[4:7], s36 offen", ("pf",))), (g+2, X(f"s_add_u32 s36, s36, {64*7168}")), (g+2, X("s_min_u32 s36, s36, s48"))]
            if 1 <= st < 12:
                ex += [(g-4, X("s_add_u32 s37, s37, 917504")), (g-4, X("s_max_i32 s39, s37, s49")), (g-4, X("s_min_u32 s39, s39, s50")), (g, V("buffer_load_dword a251, v1, s[40:43], s39 offen", ("pf",)))]
            if st == 0:
                for i in range(16):
                    ex.append((34 + 3*i, V(f"buffer_load_dword v{16+i}, v14, s[16:19], s38 offen sc1", ("ss",))))
                    if i < 15: ex.append((34 + 3*i, X("s_add_u32 s38, s38, 8192")))
            if st == 12: ex += [(90, f) for f in self.code_touch("c", "L_ph4", "L_code_end", 56, 14, 1)]
            if st == 13:
                for i in range(8):
                    for fn in tok(a, 15, i//2, i%2, 2): ex.append((56 + 3*i, fn))
            return ex
        c.extra = extra
        pre = Asm()
        for st_ in (8, 4, 2, 1):
            for i in range(st_): pre(f"v_add_f32 v{16+i}, v{16+i}, v{16+i+st_}")
        pre("v_mov_b32 v17, 0x3727c5ac\nv_fmac_f32 v17, 0x3a800000, v16\nv_sqrt_f32 v24, v17\nv_rsq_f32 v16, v17\nv_mul_f32 v16, 0xbfb8aa3b, v16")
        for b in (16, 24):
            pre(f"v_mov_b32 v{b+4}, v{b}\nv_permlane32_swap_b32 v{b}, v{b+4}\nv_mov_b32 v{b+2}, v{b}\nv_mov_b32 v{b+6}, v{b+4}")
            pre(f"v_permlane16_swap_b32 v{b}, v{b+2}\nv_permlane16_swap_b32 v{b+4}, v{b+6}")
        late = Asm()
        late("v_and_b32 v2, 15, v0\nv_lshlrev_b32 v2, 4, v2\nv_bfe_u32 v3, v0, 4, 1\nv_mul_u32_u24 v3, 114688, v3\nv_lshrrev_b32 v4, 5, v0\nv_lshlrev_b32 v4, 8, v4\nv_add3_u32 v2, v2, v3, v4")
        late("v_add_u32 v3, 229376, v2\ns_mul_i32 s35, s87, 114688\ns_mul_i32 s38, s25, 3584\ns_add_u32 s35, s35, s38")
        late(self.voff24(4, True))
        def idle(st):
            if st != 12: return []
            pairs = ["\n".join(late.lines[k:k+2]) for k in range(0, len(late.lines), 2)]
            return [(0, lambda: a.wait(vm=[("ss",)]))] + [(0, X(l + ("\ns_nop 0" if l.startswith("v_mov") else ""))) for l in pre.lines] + [(112 + 40, X(l)) for l in pairs]
        c.idle = idle
        def gate_ops(fb, tb):
            g = accr(2*fb, tb); L = []
            if fb >= PKF:
                L += [(f"v_pk_mul_f32 v[{g+2*h}:{g+2*h+1}], v[{g+2*h}:{g+2*h+1}], v[{16+2*tb}:{17+2*tb}] op_sel_hi:[1,0]", 4) for h in range(2)]
                L += [(f"v_exp_f32 v{g+r}, v{g+r}", 8) for r in range(4)]
                L += [(f"v_pk_fma_f32 v[{g+2*h}:{g+2*h+1}], v[{g+2*h}:{g+2*h+1}], v[{24+2*tb}:{25+2*tb}], v[{24+2*tb}:{25+2*tb}] op_sel_hi:[1,0,0]", 4) for h in range(2)]
            else:
                L += [(f"v_mul_f32 v{g+r}, v{16+2*tb}, v{g+r}", 4) for r in range(4)]
                L += [(f"v_exp_f32 v{g+r}, v{g+r}", 8) for r in range(4)]
                L += [(f"v_fma_f32 v{g+r}, v{g+r}, v{24+2*tb}, v{24+2*tb}", 4) for r in range(4)]
            return L + [(f"v_rcp_f32 v{g+r}, v{g+r}", 8) for r in range(4)]
        def fin_ops(fb, tp):
            gs = [accr(2*fb, 2*tp+x) for x in range(2)]; us = [accr(2*fb+1, 2*tp+x) for x in range(2)]; d = us[0]; L = []
            for x in range(2):
                if fb >= PKF: L += [(f"v_pk_mul_f32 v[{gs[x]+2*h}:{gs[x]+2*h+1}], v[{gs[x]+2*h}:{gs[x]+2*h+1}], v[{us[x]+2*h}:{us[x]+2*h+1}]", 4) for h in range(2)]
                else: L += [(f"v_mul_f32 v{gs[x]+r}, v{gs[x]+r}, v{us[x]+r}", 4) for r in range(4)]
            return L + [(f"v_cvt_pk_bf16_f32 v{d}, v{gs[0]}, v{gs[0]+1}", 4), (f"v_cvt_pk_bf16_f32 v{d+2}, v{gs[1]}, v{gs[1]+1}", 4),
                  (f"v_cvt_pk_bf16_f32 v{d+1}, v{gs[0]+2}, v{gs[0]+3}", 4), (f"v_cvt_pk_bf16_f32 v{d+3}, v{gs[1]+2}, v{gs[1]+3}", 4), ("s_nop 0", 4),
                  (f"v_permlane16_swap_b32 v{d}, v{d+2}", 8), (f"v_permlane16_swap_b32 v{d+1}, v{d+3}", 8),
                  (f"buffer_store_dwordx4 v[{d}:{d+3}], v{2+tp}, s[12:15], s35 offen offset:{512*fb} sc1", 4)]
        c.NRUN = 14
        twreg = lambda sl, s: 132 + 16*sl + 4*s
        def tread(j, s, rd):
            lo = twreg(j % 3, s) + 2*rd
            return lambda: a.lds(f"ds_read_b64_tr_b16 a[{lo}:{lo+1}], v13 offset:{woff(s//2, j, s%2, rd)}", ("tw", j))
        treads = lambda j: [tread(j, s, rd) for s in range(4) for rd in range(2)]
        c.tail_reads = treads(0)
        c.P_wait = lambda st: [("dma", 15)] if st == 13 else []
        marks, _ = gemm16.mainloop(a, c)
        self.info.append(roll(a, marks, "L_loop3", "s24"))
        q = []
        for fb in range(7):
            for tp in range(2):
                if fb > 0: q += [([(2*fb-1, 2*tp), (2*fb-1, 2*tp+1)], l, cst) for l, cst in fin_ops(fb-1, tp)]
            for tb in range(4): q += [([(2*fb, tb)], l, cst) for l, cst in gate_ops(fb, tb)]
        for tp in range(2): q += [([(13, 2*tp), (13, 2*tp+1)], l, cst) for l, cst in fin_ops(6, tp)]
        self.early4 = [st for st in (0, 1, 2, 3, 8, 9) if st < self.o.get("k4", {}).get("pre", 10)]
        dq = [fn for st in self.early4 for i in range(4) for fn in self.pre24(st, i, st*16384, 4, 40)]
        done = {}; rq = []
        for j in range(14):
            if j + 1 < 14: rq += treads(j + 1)
            for m in range(16):
                tb, s = divmod(m, 4); s = s if tb % 2 == 0 else 3 - s
                if m == 0: a.wait(vm=[("tok", t, x, y) for t in (14, 15) for x in range(4) for y in range(2)] if j == 0 else [], lg=[("tw", j)])
                a(f"v_mfma_f32_16x16x32_bf16 {c.acc(j, tb)}, a[{twreg(j%3, s)}:{twreg(j%3, s)+3}], {c.tokreg(2*(s//2), tb, s%2)}, {c.acc(j, tb)}")
                if m % 4 == 3: done[(j, tb)] = a.mark()
                credit = o.get("strict", 12) - (4 if m == 15 else 0)
                if rq and m < 12 and (m % 3 != 2): rq.pop(0)(); credit -= 4
                if dq and m in o.get("dslots", (2, 8, 13)): dq.pop(0)(); credit -= 4
                while q and credit >= q[0][2] and all(n in done and a.mark() - done[n] >= 8 for n in q[0][0]):
                    _, l, cst = q.pop(0); a(l); credit -= cst
            assert not rq
        assert not dq
        self.tr("3main")
        for need, l, cst in q:
            gap = min(a.mark() - done[n] for n in need)
            if gap < 8: a(f"s_nop {7 - gap}"); done = {k: -99 for k in done}
            a(l)
        self.tr("3end")
        for r in range(32): a(f"v_accvgpr_read_b32 v{32+r}, a{HSAVE+r}")
        self.signal(4)

    def phase4(self):
        a, o = self.a, self.o.get("k4", {})
        PRE = o.get("pre", 10); LEAD = min(PRE, 8)
        a("L_ph4:")
        for st in range(PRE):
            if st not in self.early4:
                for i in range(4): self.group(self.pre24(st, i, st*16384, 4, 40))
        a(self.rdaddr24(16)); a(self.rowmajor24(24, 26))
        a(f"v_add_u32 v10, 114688, v9\ns_mul_i32 s21, s82, 114688\ns_add_u32 s22, s83, {(PRE-1)*262144}")
        a(f"s_mov_b32 s44, 0\ns_mov_b32 s51, 32768\ns_mov_b32 s52, {-131072 & 0xffffffff}\ns_mov_b32 s45, {(((PRE+1)//2 - 1) % 5)*32768}")
        psrd(a, 8, P_OUT, 4<<20)
        self.await_(4, "s_lshr_b32 s34, s80, 1\ns_lshl_b32 s34, s34, 5\nv_and_b32 v31, 31, v0\nv_or_b32 v31, s34, v31")
        self.tr("4start")
        c = gemm16.Cfg()
        c.TB, c.NB, c.SPS, c.NST, c.NDMA = 2, 4, 2, 28, 4
        c.PRE, c.LEAD = PRE, LEAD; c.TR = o.get("TR", 4); c.BODY = c.TR//2; c.LA, c.WR = o.get("LA", 2), 4
        c.PBACK = 4*c.LA; c.LDS2 = False
        accr = lambda j, tb: 32 + 4*(2*j+tb)
        c.acc = lambda j, tb: f"v[{accr(j,tb)}:{accr(j,tb)+3}]"
        c.tokreg = lambda sl, tb, s: f"a[{32+16*sl+8*tb+4*s}:{32+16*sl+8*tb+4*s+3}]"
        c.wreg = lambda sl, s: f"a[{8*sl+4*s}:{8*sl+4*s+3}]"
        def dma(a, st, i):
            f = []
            if i == 0:
                if st % 2 == 0: f += [lambda: a("s_add_u32 s45, s45, 32768"), lambda: a("s_cmp_eq_u32 s45, 163840\ns_cselect_b32 s45, 0, s45"), lambda: a("s_add_u32 s23, s45, s84")]
                f += [lambda: a(f"s_add_u32 s22, s22, {128*2048}"), lambda: a(f"s_add_u32 m0, s23, {(st%2)*16384}")]
            f.append(lambda: a.vmem(f"buffer_load_dwordx4 v{4+i}, s[40:43], s22 offen offset:{1024*i} lds", ("dma", st)))
            return f
        assert PRE % 2 == 0
        c.dma = dma
        def tok(a, t, tb, s):
            f = []
            if t % 2 == 0 and tb == 0 and s == 0 and t > 0: f.append(lambda: a("s_add_u32 s21, s21, 4096"))
            f.append(lambda: a.vmem(f"buffer_load_dwordx4 {c.tokreg(t % c.TR, tb, s)}, v{9+tb}, s[12:15], s21 offen offset:{1024*((2*t+s)%4)} sc1", ("tok", t, tb, s)))
            return f
        c.tok = tok
        def wread(a, st, sis, j, s, rd, sl, tag):
            lo = 8*sl + 4*s + 2*rd
            a.lds(f"ds_read_b64_tr_b16 a[{lo}:{lo+1}], v{16+j} offset:{(st%2)*16384 + (64*sis + 32*s + 16*rd)*128}", tag)
        c.wread = wread
        def on_P(a, st):
            if st % 2 == 1:
                a("s_cmp_eq_u32 s44, 131072\ns_cselect_b32 s53, s52, s51\ns_add_u32 s44, s44, s53")
                for sg in range(4): a(f"v_add_u32 v{16+sg}, s53, v{16+sg}")
                self.tr(f"4P{st}", 4)
        c.on_P = on_P
        c.tokpos = lambda i: 4*i
        c.dmapos = lambda i: 1 + 5*i
        marks, _ = gemm16.mainloop(a, c)
        self.info.append(roll2(a, marks, "L_loop4", "s24"))
        self.tr("4main")
        for tb in range(2):
            for u in range(2):
                x = 64 + 8*tb + 4*u
                if tb == 0 and u == 0: a("s_nop 3")
                for d in range(4):
                    r = accr(2*u + d//2, tb) + 2*(d % 2)
                    a(f"v_cvt_pk_bf16_f32 v{x+d}, v{r}, v{r+1}")
                a(f"s_nop 1\nv_permlane16_swap_b32 v{x}, v{x+2}\nv_permlane16_swap_b32 v{x+1}, v{x+3}")
                a(f"buffer_store_dwordx4 v[{x}:{x+3}], v{24+tb}, s[8:11], s86 offen offset:{64*u} {o.get('stfl', 'sc1')}")
        self.tr("4end")

def roll2(a, marks, label, sreg):
    blocks = [a.lines[marks[i]:marks[i+1]] for i in range(len(marks)-1)]
    out = a.lines[:marks[0]]; i = 0; info = []
    while i < len(blocks):
        j = i
        while j + 1 < len(blocks) and blocks[j+1] == blocks[i]: j += 1
        n = j - i + 1
        if n > 1: out += [f"s_mov_b32 {sreg}, {n}", f"{label}_{i}:"] + blocks[i] + [f"s_sub_u32 {sreg}, {sreg}, 1", f"s_cmp_lg_u32 {sreg}, 0", f"s_cbranch_scc1 {label}_{i}"]
        else: out += blocks[i]
        info.append(n); i = j + 1
    a.lines = out + a.lines[marks[-1]:]
    return info

def gen(o={}, name=NAME + "_kernel", aslist=False):
    g = Gen(o); a = g.a
    a("s_cmp_ge_u32 s2, 256\ns_cbranch_scc1 L_done")
    if o.get("trace"): a("s_mov_b32 s29, 0\nv_accvgpr_write_b32 a252, 0\nv_accvgpr_write_b32 a253, 0"); g.tr("start")
    g.phase1(); g.phase2(); g.phase3(); g.phase4()
    if o.get("trace"):
        ws_srd(a, 56, WS_TRACE, 1<<20)
        a("s_lshl_b32 s60, s2, 11\ns_lshl_b32 s61, s20, 9\ns_add_u32 s60, s60, s61\nv_lshlrev_b32 v16, 3, v0\nbuffer_store_dwordx2 a[252:253], v16, s[56:59], s60 offen")
    a("L_done:\ns_endpgm")
    ll = f"; @launch {'kernel=' + name + ' ' if aslist else ''}grid=(256,1,1) block=(256,1,1) lds=163840\n"
    txt = ll + '.amdgcn_target "amdgcn-amd-amdhsa--gfx950"\n.text\n' + kernel_head(name) + a.text() + g.tail.text() + 'L_code_end:\n.section .rodata,"a"\n' + kernel_desc(name, 512, 256)
    return txt, g
def header():
    ref = open(f"cdna_kernels/{NAME}.s.ref").read().split("\n")
    return "\n".join(l for l in ref if l.startswith(";") and "@launch" not in l and "Override" not in l and "grid=ceil" not in l) + "\n"
if __name__ == "__main__":
    import sys
    txt, g = gen({"trace": int(sys.argv[2]) if len(sys.argv) > 2 else 0})
    open(sys.argv[1] if len(sys.argv) > 1 else "mega.s", "w").write(header() + txt)
    print(g.info, g.names)
```

```python
from asmlib import *

class Cfg:
    tok_lds = False
    drain_at_P = False
    CAP = 2
    first_zero = False
    def swap(self, j): return False
    def on_P(self, a, st): pass
    def prologue_mid(self, a): pass
    def extra(self, st): return []
    def fixed(self, st): return []
    def P_wait(self, st): return []
    def idle(self, st): return []
    def slots(self, st): return []
    def post_block(self, a, st, sis, j, sl): pass
    def prologue_00(self, a): pass
    def first_P(self, a): pass
    def prologue_0(self, a): pass
    own_stage1 = None
    own_stage0 = False
    idle_spill = False
    WPAIR = 0
    TLEAD = None
    TOKPRE = 0
    TOK0 = None
    LEAD = 2
    PRE = 0
    def barrier_at(self, st): return True
    def pre_P(self, a, st): pass
    def drain_at(self, st): return self.drain_at_P
    def first_tok(self, a): pass
    pos_by_stage = False
    lazy1 = None
    NRUN = None
    tail_reads = ()
    tokwait = None

def mainloop(a, c, last_stage=None):
    TB, NB, SPS, NST = c.TB, c.NB, c.SPS, c.NST
    G = 2 * TB
    gps = NB * G
    gpst = SPS * gps
    nsteps = SPS * NST
    NRUN = c.NRUN or NST
    nblk = SPS * NRUN * NB
    Pg = lambda st: (st + 1) * gpst - c.PBACK if st >= 0 else -10**9
    lq = []
    def mk_w(n, s, rd):
        step, j = divmod(n, NB); st, sis = divmod(step, SPS)
        return lambda: c.wread(a, st, sis, j, s, rd, n % c.WR, ("w", n, s))
    def mk_tl(t, tb, s):
        st, sis = divmod(t, SPS)
        return lambda: c.tokread(a, st, sis, tb, s, t % 2, ("tok", t, tb, s))
    for n in range(nblk):
        step, j = divmod(n, NB); st = step // SPS
        e = max((n - c.LA) * G, Pg(st - 1))
        ws = [(e, mk_w(n, s, rd)) for s in range(2) for rd in range(2)]
        if c.tok_lds and j == 0:
            et = max((step - 1) * gps + c.tok_early, Pg(st - 1))
            tl = [(et, mk_tl(step, tb, (s ^ (tb % 2)))) for tb in range(TB) for s in range(2)]
            lq += ws[:2] + tl[:1] + ws[2:] + tl[1:]
        else: lq += ws
    lq += [(Pg(NRUN - 1), fn) for fn in c.tail_reads]
    vq = []
    for st in range(NRUN):
        ops = []
        if st == 0 and c.lazy1:
            for i in range(c.NDMA):
                for fn in c.dma(a, 1, i): ops.append((c.lazy1(i), len(ops), fn))
        if c.PRE <= st + c.LEAD < NST:
            for i in range(c.NDMA):
                g = st * gpst + (c.dmapos(i, st) if c.pos_by_stage else c.dmapos(i))
                assert Pg(st - 1) <= g < Pg(st), (st, i, g)
                for k, fn in enumerate(c.dma(a, st + c.LEAD, i)): ops.append((g, len(ops), fn))
        if st == 0 and c.TOK0 is not None:
            for t in range(c.TOK0, c.TR - 1):
                for i in range(G):
                    for fn in c.tok(a, t, i // 2, i % 2): ops.append((-1, len(ops), fn))
        if not c.tok_lds:
            for sis in range(SPS):
                t0 = st * SPS + sis; t = t0 + (c.TLEAD or c.TR - 1)
                if c.TOKPRE <= t < nsteps:
                    for i in range(G):
                        tb, s = divmod(i, 2)
                        g = t0 * gps + (c.tokpos(i, st) if c.pos_by_stage else c.tokpos(i))
                        for fn in c.tok(a, t, tb, s): ops.append((g, len(ops), fn))
        for g, fn in c.extra(st): ops.append((st * gpst + g, len(ops), fn))
        vq += [(g, st, k, fn) for g, k, fn in ops]
    vq.sort(key=lambda x: x[:3])
    vq = [(g, fn) for g, _, _, fn in vq]
    iq = [(st * gpst + g, fn) for st in range(NRUN) for g, fn in c.idle(st)]
    sq = [(st * gpst + e[0],) + tuple(e[1:]) for st in range(NRUN) for e in c.slots(st)]; sq_last = -99
    fx = {}
    for st in range(NRUN):
        for g, fn in c.fixed(st): fx.setdefault(st * gpst + g, []).append(fn)
    def run(fns):
        for k, fn in enumerate(fns):
            fn()
    def dma_all(st):
        for i in range(c.NDMA):
            fns = c.dma(a, st, i)
            for k, fn in enumerate(fns):
                if k == len(fns) - 1 and k > 0 and "m0" in a.lines[-1]: a("s_nop 0")
                fn()
    T0 = 0 if c.tok_lds or c.TOKPRE else (c.TR - 1 if c.TOK0 is None else c.TOK0)
    c.prologue_00(a)
    assert c.PRE == 0 and c.LEAD == 2 or c.PRE >= c.LEAD
    if not c.PRE and not c.own_stage0: dma_all(0)
    if not c.tok_lds:
        for t in range(min(SPS, T0)):
            for tb in range(TB):
                for s in range(2): run(c.tok(a, t, tb, s))
    c.prologue_0(a)
    if c.own_stage1: c.own_stage1(a, [c.dma(a, 1, i) for i in range(c.NDMA)])
    elif not c.lazy1 and not c.PRE: dma_all(1)
    if not c.tok_lds:
        for t in range(SPS, T0):
            for tb in range(TB):
                for s in range(2): run(c.tok(a, t, tb, s))
    c.prologue_mid(a)
    if not c.PRE:
        a.wait(vm=[("dma", 0)])
        a("s_barrier")
    c.first_P(a)
    li = 0; vi = 0
    while li < len(lq) and lq[li][0] < 0: lq[li][1](); li += 1
    marks = []
    stats = {"over": 0}
    total = nblk * G
    for g in range(total):
        n, m = divmod(g, G); step, j = divmod(n, NB); st = step // SPS
        if g % (gpst * c.BODY) == 0: marks.append(a.mark())
        if g == Pg(st) and st + 1 < NST:
            c.pre_P(a, st)
            if c.barrier_at(st):
                nxt = st + 1
                while nxt + 1 < NST and not c.barrier_at(nxt): nxt += 1
                need = [("dma", x) for x in range(st + 1, nxt + 1) if x >= c.PRE]
                for t_ in need: assert a.vm.count(t_) == c.NDMA, t_
                if c.drain_at(st):
                    assert lq[li][0] >= g, "reads of the current stage still pending at P"
                    a.wait(vm=need + c.P_wait(st), lg=[a.lg[-1]])
                else: a.wait(vm=need + c.P_wait(st))
                a("s_barrier")
            c.on_P(a, st)
        tb = m // 2; s = (m % 2) ^ (tb % 2)
        need_w = [("w", n, 0), ("w", n, 1)] if m == 0 else []
        if c.WPAIR and m == 0 and n % 2 == 0 and n + 1 < nblk: need_w += [("w", n + 1, 0), ("w", n + 1, 1)]
        need_t = [("tok", step, tb, s)] if j == 0 else []
        if c.tok_lds and c.tokwait is not None and j == 0:
            need_t = [("tok", step, x, y) for x in c.tokwait.get(m, []) for y in range(2)]
        if not c.tok_lds and need_t: need_t = [("tok", step, x, y) for x in range(TB) for y in range(2)]
        for tag in need_w + (need_t if c.tok_lds else []):
            while tag not in a.lg or (tag[0] == "w" and a.lg.count(tag) < 2):
                assert lq[li][0] <= g, "deadline before earliest"
                lq[li][1](); li += 1; stats["over"] += 1
        if c.tok_lds: a.wait(lg=need_w + need_t)
        else: a.wait(vm=need_t, lg=need_w)
        if g == 0: c.first_tok(a)
        A_, B_ = c.wreg(n % c.WR, s), c.tokreg(step % (2 if c.tok_lds else c.TR), tb, s)
        if c.swap(j): A_, B_ = B_, A_
        C_ = "0" if (c.first_zero and step == 0 and m % 2 == 0) else c.acc(j, tb)
        a(f"v_mfma_f32_16x16x32_bf16 {c.acc(j, tb)}, {A_}, {B_}, {C_}")
        cap = c.CAP - (1 if (m == G - 1 and not (c.WPAIR and n % 2 == 0)) else 0)
        used = 0
        for fn in fx.get(g, []): fn(); used += 1
        if li < len(lq) and lq[li][0] <= g and used < cap:
            lq[li][1](); li += 1; used += 1
        if vi < len(vq) and vq[vi][0] <= g and used < cap:
            vq[vi][1](); vi += 1; used += 1
        if used == 0 and iq and iq[0][0] <= g: iq.pop(0)[1]()
        while sq and sq[0][0] <= g and used + sq[0][2] <= cap and a.mark() - sq_last >= sq[0][3]:
            e = sq.pop(0); e[1](); used += e[2]; sq_last = a.mark()
        if m == G - 1: c.post_block(a, st, step % SPS, j, n % c.WR)
        if c.LDS2 and li < len(lq) and lq[li][0] <= g and used < cap:
            lq[li][1](); li += 1; used += 1
    stats['spill'] = len(sq)
    for e in sq:
        if e[3]: a(f's_nop {e[3]-1}')
        e[1]()
    assert not iq, len(iq)
    assert li == len(lq) and vi == len(vq), (li, len(lq), vi, len(vq))
    marks.append(a.mark())
    return marks, stats
```

```python
from asmlib import *
import gemm16
from kk1 import rs4, bc4, rowsum16, allreduce64, umax
NAME = "sequential_preLN__linear_kernel_hedgehog__glu_gated_glu__prompt"
WS_O, WS_HC, WS_HH, WS_G = 0, 4<<20, 8<<20, 24<<20
G_SS, G_ST1, G_FL, G_CS, G_MD, G_XS, G_XB, G_SIZE = 0, 128<<10, 160<<10, 192<<10, 448<<10, 704<<10, 3<<20, 7<<20
XS, XS_Z, XS_W, XS_T = 9344, 8192, 8704, 8832
WS_TRACE = 44<<20
SPIN = 0x20000
LOG2E = "0x3fb8aa3b"
SLOT = 40960; L_WPHI = 3*SLOT; L_PH = 0; L_VB = 32768
B2 = [32768 + 16384*s_ for s_ in range(8)]
HSAVE = 184
P_X, P_WQKV, P_WPHI, P_WO, P_WG, P_WU, P_WD, P_OUT = 64, 66, 68, 70, 72, 74, 76, 78

def psrd(a, r, p, n): srd(a, r, f"s{p}", f"s{p+1}", n)
def ws_srd(a, r, off, n):
    a(f"s_add_u32 s{r}, s32, {off}\ns_addc_u32 s{r+1}, s33, 0\ns_mov_b32 s{r+2}, {n}\ns_mov_b32 s{r+3}, 0x20000")

class Gen:
    def __init__(self, o):
        self.o = o; self.a = Asm(); self.tail = Asm(); self.names = []; self.info = []; self.visits = []
    def tr(self, name, lvl=1):
        if not self.o.get("trace", 0) or (lvl > 1 and lvl != self.o["trace"]): return
        a = self.a; self.names.append(name)
        a("s_memrealtime s[88:89]\ns_memtime s[90:91]"); a.wait_all(vm=False)
        a("s_lshl_b64 exec, 1, s29\nv_accvgpr_write_b32 a252, s88\nv_accvgpr_write_b32 a253, s90\ns_mov_b64 exec, -1\ns_add_u32 s29, s29, 1")
    def weave(self, body, ops, skip=0):
        a = self.a; m = a.mark(); nv = len(a.vm); body(); assert len(a.vm) == nv
        work = a.lines[m:]; a.lines = a.lines[:m]; n = len(ops); k = 0
        for i, l in enumerate(work):
            while k < n and i >= skip + k*(len(work) - skip)//n:
                self.group(ops[k]); k += 1
            a.lines.append(l)
        assert k == n
    def splice(self, body, at):
        a = self.a; m = a.mark(); nv = len(a.vm); body(); assert len(a.vm) == nv
        work = a.lines[m:]; a.lines = a.lines[:m]; at = sorted(at, key=lambda x: x[0])
        for i, l in enumerate(work):
            while at and at[0][0] <= i: at.pop(0)[1]()
            a.lines.append(l)
        for _, fn in at: fn()
        return len(work)
    def group(self, fns):
        for k, fn in enumerate(fns):
            if k == len(fns) - 1 and k > 0 and "m0" in self.a.lines[-1]: self.a("s_nop 0")
            fn()
    def signal(self, val, tags=None):
        a = self.a
        if tags: a.wait(vm=tags)
        else: a.wait_all()
        a("s_barrier")
        a(f"s_cmp_lg_u32 s20, 0\ns_cbranch_scc1 L_sig{val}\nv_mov_b32 v30, {val}\nv_mov_b32 v31, 0\ns_lshl_b32 s27, s2, 7\ns_add_u32 s27, s27, {G_FL}")
        a(f"s_mov_b64 exec, 1\nbuffer_store_dword v30, v31, s[16:19], s27 offen sc1\ns_mov_b64 exec, -1\nL_sig{val}:")
    def await_(self, val, ids):
        a = self.a
        a(f"s_cmp_lg_u32 s20, 0\ns_cbranch_scc1 L_got{val}"); a(ids)
        a(f"v_lshlrev_b32 v31, 7, v31\ns_mov_b32 s34, {G_FL}\ns_mov_b32 s27, {SPIN}\nL_poll{val}:\nbuffer_load_dword v30, v31, s[16:19], s34 offen sc1\ns_waitcnt vmcnt(0)")
        a(f"v_cmp_gt_u32 vcc, {val}, v30\ns_sub_u32 s27, s27, 1\ns_cbranch_vccz L_got{val}\ns_cmp_lg_u32 s27, 0\ns_cbranch_scc1 L_poll{val}\nL_got{val}:")
        a.wait_all(); a.reset(); a("s_barrier")
    def visit(self, first, last, waves):
        if not self.o.get("visit", 1): return
        k = len(self.visits); self.visits.append((first, last, waves))
        self.a(f"s_call_b64 s[96:97], L_visit{k}")
    def code_touch(self, uid, first, last, sr, vr, per):
        c = Asm()
        c(f"s_getpc_b64 s[{sr}:{sr+1}]\nL_pc_{uid}:\ns_add_u32 s{sr}, s{sr}, {first}-L_pc_{uid}\ns_addc_u32 s{sr+1}, s{sr+1}, 0")
        c(f"s_lshr_b32 s{sr+2}, s2, 3\ns_lshl_b32 s{sr+2}, s{sr+2}, 2\ns_add_u32 s{sr+2}, s{sr+2}, s20\ns_mul_i32 s{sr+2}, s{sr+2}, {per}")
        c(f"v_min_u32 v{vr}, {per-1}, v0\nv_add_u32 v{vr}, s{sr+2}, v{vr}\nv_lshlrev_b32 v{vr}, 7, v{vr}\nv_min_u32 v{vr}, {last}-{first}-4, v{vr}")
        c(f"v_mov_b32 v{vr+1}, s{sr+1}\nv_add_co_u32 v{vr}, vcc, s{sr}, v{vr}\ns_nop 1\nv_addc_co_u32 v{vr+1}, vcc, 0, v{vr+1}, vcc")
        a = self.a; X = lambda s: (lambda: a(s))
        return [X("\n".join(c.lines[:4]))] + [X(l) for l in c.lines[4:-3]] + [X("\n".join(c.lines[-3:])), lambda: a.vmem(f"global_load_dword a250, v[{vr}:{vr+1}], off", ("ct",))]

    def ids24(self):
        return ("s_bfe_u32 s80, s2, 0x20001\ns_lshl_b32 s80, s80, 2\ns_bfe_u32 s27, s2, 0x20003\ns_add_u32 s80, s80, s27\n"
                "s_and_b32 s81, s2, 1\ns_lshr_b32 s27, s2, 5\ns_lshl_b32 s27, s27, 1\ns_add_u32 s81, s81, s27\n"
                "s_lshl_b32 s82, s80, 3\ns_lshl_b32 s27, s20, 1\ns_add_u32 s82, s82, s27\n"
                "s_lshl_b32 s83, s20, 16\ns_lshl_b32 s27, s81, 7\ns_add_u32 s83, s83, s27\ns_lshl_b32 s84, s20, 12")
    def voff24(self, v, natural):
        t = f"v_bfe_u32 v{v+1}, v0, 4, 2\nv_lshlrev_b32 v{v+1}, 1, v{v+1}\nv_and_b32 v{v+2}, 7, v0\nv_xor_b32 v{v+1}, v{v+1}, v{v+2}\nv_lshlrev_b32 v{v+1}, 4, v{v+1}\n"
        if natural: t += f"v_lshrrev_b32 v{v+2}, 5, v0\nv_lshlrev_b32 v{v+2}, 3, v{v+2}\nv_bfe_u32 v{v+3}, v0, 3, 2\nv_add_u32 v{v+2}, v{v+2}, v{v+3}\n"
        else: t += f"v_lshrrev_b32 v{v+2}, 3, v0\n"
        t += f"v_lshl_add_u32 v{v}, v{v+2}, 11, v{v+1}\n"
        for i in range(1, 4): t += f"v_add_u32 v{v+i}, {((16*(i & 1) + 4*(i >> 1)) if natural else 8*i)*2048 - 1024*i}, v{v}\n"
        return t
    def pre24(self, st, i, base, v, sr):
        a = self.a; f = []
        if i == 0: f += [lambda: a(f"s_add_u32 s85, s83, {st*262144}"), lambda: a(f"s_add_u32 m0, s84, {base}")]
        f.append(lambda: a.vmem(f"buffer_load_dwordx4 v{v+i}, s[{sr}:{sr+3}], s85 offen offset:{1024*i} lds", ("pre",)))
        return f
    def rdaddr24(self, v):
        t = f"v_lshrrev_b32 v{v+1}, 2, v0\nv_lshlrev_b32 v{v+1}, 7, v{v+1}\nv_bfe_u32 v{v+2}, v0, 3, 2\nv_lshlrev_b32 v{v+2}, 5, v{v+2}\nv_and_b32 v{v+3}, 3, v0\nv_lshlrev_b32 v{v+3}, 3, v{v+3}\nv_add3_u32 v{v}, v{v+1}, v{v+2}, v{v+3}\n"
        for sg in range(1, 4): t += f"v_xor_b32 v{v+sg}, {32*sg}, v{v}\n"
        return t
    def rowmajor24(self, v, t0):
        return (f"v_and_b32 v{v}, 15, v0\nv_lshlrev_b32 v{v}, 11, v{v}\nv_bfe_u32 v{v+1}, v0, 4, 1\nv_lshlrev_b32 v{v+1}, 5, v{v+1}\nv_lshrrev_b32 v{t0}, 5, v0\nv_lshlrev_b32 v{t0}, 4, v{t0}\n"
                f"v_add3_u32 v{v}, v{v}, v{v+1}, v{t0}\nv_add_u32 v{v+1}, 32768, v{v}\ns_lshl_b32 s86, s82, 15\ns_lshl_b32 s27, s81, 7\ns_add_u32 s86, s86, s27")

    def phase1(self):
        a, t, o = self.a, self.tail, self.o.get("k1", {})
        NPH = o.get("NPH", 4)
        a("s_load_dwordx8 s[64:71], s[0:1], 0\ns_load_dwordx2 s[32:33], s[0:1], 80\ns_load_dwordx8 s[72:79], s[0:1], 40\ns_load_dwordx2 s[30:31], s[0:1], 72")
        if o.get("ct0", 1):
            a("s_getpc_b64 s[56:57]\nL_pc0:\nv_lshlrev_b32 v24, 4, v0\nv_mov_b32 v25, s57\nv_add_co_u32 v24, vcc, s56, v24\ns_lshr_b32 s58, s2, 3\ns_lshl_b32 s58, s58, 11\nv_addc_co_u32 v25, vcc, 0, v25, vcc")
            a.vmem("global_load_dword a250, v[24:25], off", ("ct0",))
            a("v_lshl_add_u32 v24, v0, 3, s58\nv_min_u32 v24, L_code_end-L_go-4, v24\nv_add_u32 v24, L_go-L_pc0, v24\nv_mov_b32 v25, s57\nv_add_co_u32 v24, vcc, s56, v24\ns_nop 1\nv_addc_co_u32 v25, vcc, 0, v25, vcc")
            a.vmem("global_load_dword a249, v[24:25], off", ("ct0",))
        a("v_lshrrev_b32 v1, 6, v0\nv_lshlrev_b32 v31, 2, v0\nv_and_b32 v0, 63, v0\nv_readfirstlane_b32 s20, v1")
        a("s_and_b32 s26, s2, 1\ns_lshl_b32 s26, s26, 3\ns_bfe_u32 s27, s2, 0x30003\ns_add_u32 s26, s26, s27")
        a("s_bfe_u32 s25, s2, 0x20001\ns_lshl_b32 s25, s25, 2\ns_lshr_b32 s27, s2, 6\ns_add_u32 s25, s25, s27")
        a("s_and_b32 s46, s20, 1\ns_lshr_b32 s47, s20, 1\nv_lshlrev_b32 v30, 4, v0")
        a("s_lshl_b32 s51, s26, 6\ns_lshl_b32 s27, s25, 2\ns_add_u32 s51, s51, s27\ns_add_u32 s51, s51, s20\ns_lshl_b32 s34, s51, 12")
        sh = {2: 3, 4: 2, 8: 1, 16: 0}[NPH]
        a(f"s_and_b32 s21, s26, {NPH-1}\ns_lshl_b32 s21, s21, {sh+7}\ns_mul_i32 s22, s21, 3072")
        a("s_lshl_b32 s35, s26, 18\ns_lshl_b32 s27, s20, 16\ns_add_u32 s35, s35, s27")
        a("v_lshrrev_b32 v16, 4, v0\nv_and_b32 v17, 7, v0\nv_xor_b32 v16, v16, v17\nv_lshl_add_u32 v16, v16, 4, s35\nv_lshrrev_b32 v18, 3, v0")
        a("v_lshl_add_u32 v2, v18, 11, v16\nv_xor_b32 v3, 64, v2")
        a(f"v_add_u32 v4, {16*2048 - 2048}, v2\nv_add_u32 v5, {24*2048 - 3072}, v3\nv_add_u32 v3, {8*2048 - 1024}, v3")
        a("s_lshl_b32 s27, s47, 5\ns_lshl_b32 s35, s46, 2\ns_add_u32 s35, s35, s27\ns_mul_i32 s35, s35, 6144\ns_lshl_b32 s27, s25, 7\ns_add_u32 s35, s35, s27")
        a("v_lshrrev_b32 v16, 4, v0\nv_lshlrev_b32 v16, 1, v16\nv_xor_b32 v16, v16, v17\nv_lshl_add_u32 v16, v16, 4, s35")
        a("v_lshrrev_b32 v18, 5, v0\nv_lshlrev_b32 v18, 3, v18\nv_bfe_u32 v19, v0, 3, 2\nv_add_u32 v18, v18, v19\nv_mul_u32_u24 v18, 6144, v18\nv_add_u32 v6, v18, v16")
        wimm = lambda part, i: (part*2048 + i*1024) % 4096
        for part in range(3):
            for i in range(2):
                if part or i: a(f"v_add_u32 v{6+2*part+i}, {16*i*6144 + part*2048 - wimm(part, i)}, v6")
        a("s_mul_i32 s45, s20, 10240\ns_mov_b32 s23, s45\ns_mov_b32 s44, 0")
        a("s_waitcnt lgkmcnt(0)")
        if self.o.get("trace1"): self.tr("karg")
        psrd(a, 8, P_X, 4<<20); psrd(a, 4, P_WQKV, 1024*6144); ws_srd(a, 16, WS_G, G_SIZE)
        a("s_cmp_ge_u32 s2, 8\ns_cbranch_scc1 L_nz")
        a(f"v_mov_b32 v24, 0\nv_mov_b32 v25, 0\nv_mov_b32 v26, 0\nv_mov_b32 v27, 0\ns_lshl_b32 s27, s20, 10\ns_lshl_b32 s35, s2, 12\ns_add_u32 s27, s27, s35\ns_add_u32 s27, s27, {G_FL}")
        a("buffer_store_dwordx4 v[24:27], v30, s[16:19], s27 offen sc1\nL_nz:")
        XR = 156
        c = gemm16.Cfg()
        c.TB, c.NB, c.SPS, c.NST, c.NDMA = 4, 6, 1, 16, 10
        c.tok_lds = True; c.drain_at_P = True; c.tok_early = 0
        c.BODY = 2; c.LA, c.WR = 2, 3; c.PBACK = 16; c.LDS2 = False
        c.acc = lambda j, tb: f"v[{32+4*(4*j+tb)}:{35+4*(4*j+tb)}]"
        c.tokreg = lambda sl, tb, s: f"a[{24+32*sl+8*tb+4*s}:{24+32*sl+8*tb+4*s+3}]"
        c.wreg = lambda sl, s: f"a[{8*sl+4*s}:{8*sl+4*s+3}]"
        c.swap = lambda j: j >= 4
        c.tokwait = {0: [0], 2: [1, 2, 3]}; c.first_zero = True
        def stat_loads(a):
            for i in range(4): a.vmem(f"buffer_load_dwordx4 v[{XR+4*i}:{XR+3+4*i}], v30, s[8:11], s34 offen offset:{1024*i}", ("xr",))
        c.prologue_00 = stat_loads
        def dma(a, st, i):
            f = []
            if i == 0:
                if st in (1, 2): f.append(lambda: a(f"s_add_u32 s23, s23, {SLOT}"))
                if st > 0: f.append(lambda: a("s_add_u32 s21, s21, 128")); f.append(lambda: a("s_and_b32 s21, s21, 0x7ff"))
                f.append(lambda: a("s_mov_b32 m0, s23"))
            if i == 4:
                if st > 0: f.append(lambda: a("s_mul_i32 s22, s21, 3072"))
                f.append(lambda: a("s_add_u32 m0, s23, 4096"))
            if i == 8: f.append(lambda: a("s_add_u32 m0, s23, 8192"))
            if o.get("x_nodma") and st >= 3: f.append(lambda: a.vmem("s_nop 0", ("dma", st)))
            elif i < 4: f.append(lambda: a.vmem(f"buffer_load_dwordx4 v{2+i}, s[8:11], s21 offen offset:{1024*i} lds", ("dma", st)))
            else: f.append(lambda: a.vmem(f"buffer_load_dwordx4 v{2+i}, s[4:7], s22 offen offset:{wimm((i-4)//2, i%2)} lds", ("dma", st)))
            return f
        c.dma = dma
        woff = lambda j, s, rd: (2*s+rd)*10240 + 4096 + (j//2)*2048
        def wread(a, st, sis, j, s, rd, sl, tag):
            lo = 8*sl + 4*s + 2*rd
            a.lds(f"ds_read_b64_tr_b16 a[{lo}:{lo+1}], v{14+j%2} offset:{woff(j, s, rd)}", tag)
        c.wread = wread
        c.tokread = lambda a, st, sis, tb, s, sl, tag: a.lds(f"ds_read_b128 {c.tokreg(sl, tb, s)}, v{12+s} offset:{(tb//2)*10240 + (tb%2)*2048}", tag)
        c.dmapos = lambda i: o.get("dmapos", [-15, -10, -6, -2, 2, 7, 12, 15, 19, 23])[i]
        WP, ONES, F, P, MX, MN, EF = 128, 136, 140, 156, 188, 192, 196
        CS = lambda j: (244 + 4*j) if j < 2 else (228 + 4*(j-2))
        V = lambda s, tag: (lambda: a.vmem(s, tag))
        X = lambda s: (lambda: a(s))
        def fixed(st):
            ex = []
            if st < c.NST - 1:
                def chk(s):
                    def f():
                        assert a.lg.count(("w", st*6+5, 1)) == 2 and ("w", st*6+6, 0) not in a.lg
                        a(s)
                    return f
                ex += [(22, X(f"s_cmp_eq_u32 s44, {2*SLOT}\ns_cselect_b32 s43, s42, s41"))]
                ex += [(28 + r, chk(f"v_add_u32 v{12+r}, s43, v{12+r}")) for r in range(4)]
            return ex
        c.fixed = fixed
        sgl = [[V("buffer_load_dword a249, v1, s[4:7], s94 offen", ("sg",))]] if o.get("sgl", 1) else []
        NSH = 16//NPH; assert NSH <= 4
        ct2 = self.code_touch("a2", "L_tail1", "L_ph3", 92, 24, 1)
        RG = o.get("pf_rows", 4)
        def extra(st):
            ex = []
            if 1 <= st < 4:
                ex += [(32, V(f"buffer_store_dwordx4 a[96:99], v30, s[36:39], 0 offen offset:{1024*(st-1)} sc1", ("clr",)))]
            if st == 3: ex += [(32, V("buffer_load_dword v20, v28, s[12:15], 0 offen sc1", ("boot",)))]
            if st == 12:
                ex += [(4, V("buffer_load_dword v20, v19, s[16:19], s40 offen sc1", ("rdy",)))]
            if st == 4:
                ex += [(5, X(f"s_mov_b32 s36, s{P_WO}\ns_mov_b32 s37, s{P_WO+1}")), (13, X(f"s_mov_b32 s38, {2<<20}"))]
            if st == 12: ex += [(9, ct2[-1])]
            if st == 13:
                def check_ready():
                    a.wait(vm=[("rdy",)])
                    a("v_cmp_gt_u32 vcc, 1, v20\ns_nop 0\ns_cbranch_vccnz L_spin0\nL_rdy0:")
                seq = [check_ready, V("buffer_load_dwordx2 v[172:173], v22, s[16:19], s55 offen sc1", ("st",))]
                for u in range(4): seq.append(V(f"buffer_load_dwordx4 v[{P+4*u}:{P+3+4*u}], v30, s[16:19], s53 offen offset:{1024*u} sc1", ("cs",)))
                seq += [V(f"buffer_load_dwordx4 a[{88+4*i}:{91+4*i}], v30, s[36:39], s95 offen offset:{1024*i}", ("wo",)) for i in range(2)]
                ex += [(o.get('lp', (5, 6, 10, 17, 26, 30, 36, 40))[k], f) for k, f in enumerate(seq)]
            if st == 14:
                k = 0
                for hs in H14:
                    for i in range(4):
                        g_ = o.get("h0", 44) + o.get("hstep", 4)*k; k += 1
                        assert hs in (1, 2, 6, 7) or g_ >= 32
                        ex += [(g_, f) for f in self.pre24(hs, i, B2[hs], 252, 36)]
                if RG: ex += [(o.get("pfg", 94), V("buffer_load_dword a251, v26, s[56:59], s60 offen", ("pf",)))]
            return ex
        H14 = o.get("h14", (6, 7, 1)); HQ = o.get("hq", ())
        STASH = (10, 11, 16, 17, 21, 24, 25, 28, 31, 12, 13, 22, 14, 15)
        L_ST, L_CX = 40960, 45056
        def slots(st):
            rd = lambda r, g_=-16: (g_, X(f"v_accvgpr_read_b32 v{r}, a{100+STASH.index(r)}"), 1, 0)
            one = lambda l, cost=1, dist=0: (0, X(l), cost, dist)
            D = lambda l, tag, g_=0: (g_, (lambda: a.lds(l, tag)), 1, 0)
            if st == 14:
                L = [one(l) for l in (f"s_lshl_b32 s27, s20, 9", f"s_add_u32 s27, s27, {L_ST}", "v_lshl_add_u32 v174, v0, 2, s27", "v_and_b32 v175, 0xffffff3f, v174", "v_and_b32 v176, 48, v0", "v_add_u32 v176, s27, v176",
                                      "s_lshl_b32 s27, s20, 10", f"s_add_u32 s27, s27, {L_CX}", "v_add_u32 v177, s27, v30", "v_and_b32 v178, 0xfffffbff, v177")]
                L += [(o.get("csw", 14), lambda: a.wait(vm=[("cs",)]), 1, 0), D("ds_write2st64_b32 v174, v172, v173 offset0:0 offset1:1", ("sw",))]
                for e in range(3): L += [one(l) for l in (f"v_add_f32 v{P+e}, v{P+e}, v{P+4+e}", f"v_add_f32 v{P+8+e}, v{P+8+e}, v{P+12+e}", f"v_add_f32 v{P+e}, v{P+e}, v{P+8+e}")]
                def cw():
                    assert ("w", 90, 0) not in a.lg
                    a.lds(f"ds_write_b128 v177, v[{P}:{P+3}]", ("sw",))
                return L + [(0, cw, 1, 0)]
            if st != 15: return []
            L = [rd(r) for r in (10, 11, 16, 17, 21, 24, 25, 28, 31, 22)]
            L += [D(f"ds_read_b128 v[{P+4*x}:{P+3+4*x}], v178 offset:{1024*x}", ("cs",), 4) for x in range(2)]
            L += [D(f"ds_read2_b32 v[{2+2*tb}:{3+2*tb}], v175 offset0:{16*tb} offset1:{64+16*tb}", ("st",)) for tb in range(4)]
            L += [D(f"ds_read_b128 v[{EF+4*q}:{EF+4*q+3}], v176 offset:{64*(q//2) + 256*(q%2)}", ("st",)) for q in range(8)]
            L += [(0, lambda: a.wait(lg=[("cs",)]), 1, 0)]
            L += [one(f"v_mfma_f32_16x16x4_f32 v[{CS(j)}:{CS(j)+3}], v{P + 4*(j%2) + 1}, v29, 0") for j in (2, 3)]
            L += [one(l) for l in (f"v_mov_b32 v{CS(4)}, v{P+2}", f"v_mov_b32 v{CS(5)}, v{P+6}", f"v_mov_b32 v18, v{P}", f"v_mov_b32 v19, v{P+4}")]
            A_, B_ = CS(4), CS(5)
            L += [one(f"v_permlane16_swap_b32 v{A_}, v{B_}", 2), one(f"v_add_f32 v{A_+1}, v{A_}, v{B_}"), one(f"v_add_f32 v{B_+1}, v{A_}, v{B_}"), rd(12, 0), rd(13, 0),
                  one(f"v_permlane32_swap_b32 v{A_+1}, v{B_+1}", 2), one(f"v_add_f32 v{A_}, v{A_+1}, v{B_+1}"), one(f"v_add_f32 v{B_}, v{A_+1}, v{B_+1}"),
                  (0, lambda: a.wait(lg=[("st",)]), 1, 0)]
            L += [one(f"v_mul_f32 v{3+2*tb}, {LOG2E}, v{3+2*tb}") for tb in range(4)] + [one(f"v_permlane16_swap_b32 v{A_}, v{B_}", 2)]
            def last(r):
                def f():
                    assert a.lg.count(("w", 95, 1)) == 2
                    rd(r)[1]()
                return (28, f, 1, 0)
            return L + [last(14), last(15)]
        c.slots = slots
        c.extra = extra
        def share_check(k):
            if k >= NSH: return
            a(f"s_cmp_eq_u32 s50, {k}\ns_cbranch_scc1 L_sh{k}\nL_ns{k}:")
            t(f"L_sh{k}:\ns_call_b64 s[100:101], L_share\ns_branch L_ns{k}")
        def on_P(a, st):
            assert st + 2 >= c.NST or a.vm.count(("dma", st+2)) == 10
            a("s_add_u32 s23, s44, s45\ns_add_u32 s44, s44, s43")
            self.tr(f"1P{st}", 2)
            share_check(st + 1)
            if st == 5:
                assert a.vm_done > max(i for i, x in enumerate(a.vm) if x in (("clr",), ("boot",)))
                a("s_cmp_eq_u32 s20, 0\ns_cbranch_scc1 L_flag\nL_ret:")
        c.on_P = on_P
        def pre_P(a, st):
            if st == 1:
                a(f"v_lshrrev_b32 v16, 2, v0\nv_lshlrev_b32 v16, 6, v16\nv_and_b32 v17, 3, v0\nv_lshl_add_u32 v16, v17, 3, v16\ns_lshl_b32 s27, s47, 11\ns_add_u32 s27, s27, {L_WPHI}\nv_add_u32 v16, s27, v16")
                for fb in range(2):
                    for rd in range(2): a.lds(f"ds_read_b64_tr_b16 v[{WP+4*fb+2*rd}:{WP+4*fb+2*rd+1}], v16 offset:{1024*rd + 32*fb}", ("wp",))
            if st == o.get("vst", 1): self.visit("L_ns0", "L_ph2", (0, 1, 2, 3))
        c.pre_P = pre_P
        def first_P(a):
            self.tr("1pro")
            a("s_lshr_b32 s27, s2, 3\ns_or_b32 s27, s27, s20\ns_cbranch_scc1 L_nl\nv_mov_b32 v16, 1\ns_lshl_b32 s27, s2, 2\ns_mov_b64 exec, 1\nbuffer_store_dword v16, v30, s[12:15], s27 offen sc1\ns_mov_b64 exec, -1\nL_nl:")
            share_check(0)
        c.first_P = first_P
        def pro_work():
            a(f"s_lshr_b32 s50, s26, {4-sh}")
            a(f"s_mov_b32 s41, {SLOT}\ns_mov_b32 s42, {-2*SLOT & 0xffffffff}\ns_mov_b32 s40, {G_FL}")
            a("s_lshl_b32 s27, s25, 1\ns_add_u32 s48, s27, s47")
            a(f"s_lshl_b32 s27, s20, 11\ns_add_u32 s62, s49, s27\ns_lshl_b32 s27, s47, 8\ns_lshl_b32 s35, s46, 3\ns_add_u32 s63, s27, s35\ns_add_u32 s63, s63, s49\ns_add_u32 s63, s63, {XS_Z}")
            a(f"s_add_u32 s49, s49, {XS_T}\nv_and_b32 v28, 28, v31")
            a("v_and_b32 v16, 15, v0\nv_bfe_u32 v17, v0, 1, 3\nv_lshrrev_b32 v18, 4, v0\nv_xor_b32 v17, v17, v18\nv_lshlrev_b32 v17, 4, v17\nv_lshl_add_u32 v12, v16, 7, v17")
            a("s_mul_i32 s27, s46, 20480\nv_add_u32 v12, s27, v12\nv_xor_b32 v13, 64, v12")
            a(f"v_lshlrev_b32 v22, 3, v0\nv_mov_b32 v29, 1.0\nv_mul_u32_u24 v27, {XS}, v18\nv_lshl_add_u32 v27, v16, 4, v27")
            a("v_and_b32 v17, 3, v0\nv_lshlrev_b32 v17, 1, v17\nv_and_b32 v18, 12, v0\nv_lshl_or_b32 v17, v18, 4, v17\ns_and_b32 s27, s2, 0x39\nv_or_b32 v17, s27, v17")
            a("v_and_b32 v19, 1, v0\nv_and_b32 v18, 14, v0\nv_lshl_or_b32 v19, v18, 2, v19\ns_and_b32 s27, s2, 0xc6\nv_or_b32 v19, s27, v19")
            a("v_and_b32 v18, 16, v0\nv_cmp_eq_u32 vcc, 0, v18\nv_lshrrev_b32 v18, 2, v0\ns_nop 0\nv_cndmask_b32 v19, v19, v17, vcc\nv_lshlrev_b32 v19, 7, v19")
            a("v_lshlrev_b32 v16, 7, v18\nv_bfe_u32 v17, v0, 3, 2\nv_lshlrev_b32 v17, 5, v17\nv_and_b32 v18, 3, v0\nv_lshlrev_b32 v18, 3, v18\nv_add3_u32 v14, v16, v17, v18")
            a("s_lshl_b32 s27, s47, 6\nv_xor_b32 v14, s27, v14\nv_xor_b32 v15, 32, v14")
            a(f"s_lshl_b32 s52, s48, 13\ns_add_u32 s52, s52, {G_CS}\ns_lshl_b32 s27, s46, 12\ns_add_u32 s53, s52, s27")
            a(f"s_lshl_b32 s55, s26, 10\ns_lshl_b32 s27, s46, 9\ns_add_u32 s55, s55, s27\ns_add_u32 s55, s55, {G_ST1}")
            if RG:
                a(f"s_bitcmp1_b32 s20, 0\ns_cselect_b32 s56, s{P_WU}, s{P_WG}\ns_cselect_b32 s57, s{P_WU+1}, s{P_WG+1}\ns_mov_b32 s58, 7340032\ns_mov_b32 s59, 0x20000")
                a(f"s_lshr_b32 s60, s2, 3\ns_lshl_b32 s60, s60, 1\ns_add_u32 s60, s60, s47\ns_mul_i32 s60, s60, {RG*7168}\ns_and_b32 s27, s2, 7\ns_mul_i32 s27, s27, 896\ns_add_u32 s60, s60, s27")
                a(f"v_lshrrev_b32 v26, 3, v0\nv_min_u32 v26, {RG-1}, v26\nv_mul_u32_u24 v26, 7168, v26\nv_and_b32 v17, 7, v0\nv_min_u32 v17, 6, v17\nv_lshl_add_u32 v26, v17, 7, v26")
            if sgl:
                a(f"s_lshr_b32 s27, s{P_WQKV}, 7\ns_sub_u32 s27, 3, s27\ns_and_b32 s27, s27, 7\ns_lshl_b32 s27, s27, 7\ns_mul_i32 s94, s51, 6144\ns_add_u32 s94, s94, s27")
                a("v_min_u32 v1, 5, v0\nv_lshlrev_b32 v1, 10, v1")
            for r in range(136, 140): a(f"v_mov_b32 v{r}, 0x3f803f80")
            a(self.ids24()); a(self.voff24(252, False))
        def tail_addr():
            T = 228; st_ = lambda r, x: a(f"v_accvgpr_write_b32 a{100+STASH.index(r)}, v{x}")
            a(f"v_bfe_u32 v{T}, v0, 1, 2\nv_lshlrev_b32 v{T}, 2, v{T}\nv_and_b32 v{T+1}, 1, v0\nv_bfe_u32 v{T+2}, v0, 3, 1\nv_lshlrev_b32 v{T+2}, 1, v{T+2}\nv_or3_b32 v{T}, v{T}, v{T+1}, v{T+2}")
            a(f"v_lshrrev_b32 v{T+1}, 4, v0\nv_xor_b32 v{T}, v{T}, v{T+1}\nv_lshlrev_b32 v{T}, 3, v{T}\nv_and_b32 v{T+1}, 15, v0\nv_lshl_add_u32 v{T}, v{T+1}, 7, v{T}")
            a(f"s_lshl_b32 s27, s20, 13\nv_add_u32 v{T}, s27, v{T}"); st_(10, T)
            for q in range(1, 4): a(f"v_xor_b32 v{T+1}, {32*q}, v{T}"); st_(10+q, T+1)
            a(f"v_bfe_u32 v{T}, v0, 3, 2\nv_lshlrev_b32 v{T}, 2, v{T}\nv_bfe_u32 v{T+1}, v0, 2, 1\nv_lshrrev_b32 v{T+2}, 5, v0\nv_lshlrev_b32 v{T+2}, 1, v{T+2}\nv_or3_b32 v{T}, v{T}, v{T+1}, v{T+2}")
            a(f"v_and_b32 v{T+1}, 3, v0\nv_xor_b32 v{T}, v{T}, v{T+1}\nv_lshlrev_b32 v{T}, 3, v{T}\nv_lshrrev_b32 v{T+1}, 2, v0\nv_lshl_add_u32 v{T}, v{T+1}, 7, v{T}")
            a(f"s_lshl_b32 s35, s46, 6\ns_or_b32 s27, s27, s35\nv_xor_b32 v{T}, s27, v{T}"); st_(14, T)
            for r, x in ((15, 32), (16, 8192), (17, 8224)): a(f"v_xor_b32 v{T+1}, {x}, v{T}"); st_(r, T+1)
            a(f"s_lshl_b32 s27, s20, 12\ns_add_u32 s27, s27, {L_VB}\nv_add_u32 v{T}, s27, v30\nv_xor_b32 v{T+1}, 4096, v{T}"); st_(24, T); st_(25, T+1)
            a(f"v_lshrrev_b32 v{T}, 4, v0\nv_mul_u32_u24 v{T+1}, {XS}, v{T}\nv_and_b32 v{T+2}, 0x70, v30\nv_lshl_add_u32 v{T}, v{T}, 2, v{T+2}"); st_(28, T+1); st_(31, T)
            a(f"v_lshrrev_b32 v{T}, 3, v0\nv_mul_u32_u24 v{T}, {XS}, v{T}\nv_add_u32 v{T}, v{T}, v{T+2}\nv_lshrrev_b32 v{T+1}, 5, v0\nv_mul_u32_u24 v{T+1}, {XS - 512}, v{T+1}\nv_add_u32 v{T+1}, v{T+1}, v30"); st_(21, T); st_(22, T+1)
            a("s_lshl_b32 s95, s25, 4\ns_add_u32 s95, s95, s26\ns_lshl_b32 s95, s95, 2\ns_add_u32 s95, s95, s20\ns_lshl_b32 s95, s95, 11")
            a(f"s_lshl_b32 s3, s2, 2\ns_add_u32 s3, s3, s20\ns_lshl_b32 s3, s3, 10\ns_add_u32 s3, s3, {G_XB}")
        def stats():
            U = 196
            for q in range(2):
                for d in range(8): a(f"v_lshlrev_b32 v{U+16*q+2*d}, 16, v{XR+8*q+d}\nv_and_b32 v{U+1+16*q+2*d}, 0xffff0000, v{XR+8*q+d}")
            for q in range(2):
                a(f"v_add_f32 v{140+2*q}, v{U+16*q}, v{U+1+16*q}")
                for e in range(2, 16): a(f"v_add_f32 v{140+2*q}, v{140+2*q}, v{U+16*q+e}")
            allreduce64(a, [140, 142], [144, 145])
            for q in range(2):
                a(f"v_mul_f32 v{140+2*q}, 0x3a800000, v{140+2*q}")
                for e in range(16): a(f"v_sub_f32 v{U+16*q+e}, v{U+16*q+e}, v{140+2*q}")
                a(f"v_mul_f32 v{141+2*q}, v{U+16*q}, v{U+16*q}")
                for e in range(1, 16): a(f"v_fmac_f32 v{141+2*q}, v{U+16*q+e}, v{U+16*q+e}")
            allreduce64(a, [141, 143], [144, 145])
            for q in range(2): a(f"v_mov_b32 v144, 0x3727c5ac\nv_fmac_f32 v144, 0x3a800000, v{141+2*q}\nv_rsq_f32 v{141+2*q}, v144")
        def own1(a, d1):
            T1 = (lambda n: self.tr(n)) if self.o.get("trace1") else (lambda n: None)
            d0 = [dma(a, 0, i) for i in range(10)]; n0 = o.get("n0", 4)
            for g in d0[:n0]: self.group(g)
            T1("iss0")
            a(f"s_mul_i32 s61, s25, {16*XS}\ns_add_u32 s61, s61, {G_XS}\ns_mul_i32 s27, s26, {XS}\ns_add_u32 s49, s61, s27")
            a(f"s_mul_i32 s27, s20, {XS//4}\ns_add_u32 s27, s27, s49\ns_add_u32 s36, s16, s27\ns_addc_u32 s37, s17, 0\ns_mov_b32 s38, {XS//4}\ns_mov_b32 s39, 0x20000")
            for r in range(96, 100): a(f"v_accvgpr_write_b32 a{r}, -1")
            psrd(a, 12, P_WPHI, 65536)
            a("s_lshl_b32 s92, s20, 10\ns_lshl_b32 s93, s25, 12\ns_add_u32 s93, s93, s92")
            wphi = [X(f"s_add_u32 m0, s92, {L_WPHI}"), V("buffer_load_dwordx4 v30, s[12:15], s93 offen lds", ("wphi",))]
            pro_work(); T1("work"); a.wait(vm=[("xr",)]); T1("xr")
            self.weave(lambda: (stats(), tail_addr()), d0[n0:] + [wphi] + sgl + d1); T1("stats")
            srd(a, 12, "s30", "s31", 256)
            for fn in ct2[:-1]: fn()
        c.own_stage0 = True
        c.own_stage1 = own1
        def pro_mid(a):
            a(f"s_lshl_b32 s27, s51, 4\ns_add_u32 s27, s27, {G_ST1}\ns_mov_b64 exec, 1")
            a.vmem("buffer_store_dwordx4 v[140:143], v30, s[16:19], s27 offen sc1", ("clr",))
            a("s_mov_b64 exec, -1\ns_branch L_go\n@near\n.p2align 12\nL_go:")
        c.prologue_mid = pro_mid
        marks, stats_ = gemm16.mainloop(a, c)
        self.info.append((roll2(a, marks, "L_loop1", "s24"), stats_))
        self.tr("1main")
        a("L_tail1:")
        t("L_share:")
        t("s_lshl_b32 s27, s46, 5\nv_xor_b32 v16, s27, v14")
        for part in range(3):
            for s in range(2):
                for rd in range(2): t(f"ds_read_b64_tr_b16 v[{P+8*part+4*s+2*rd}:{P+8*part+4*s+2*rd+1}], v16 offset:{woff(2*part, s, rd)}")
        t(f"s_lshl_b32 s27, s46, 12\ns_lshl_b32 s35, s26, 8\ns_add_u32 s27, s27, s35\ns_add_u32 s27, s27, s52\ns_waitcnt lgkmcnt(0)")
        for part in range(3):
            for s in range(2): t(f"v_mfma_f32_16x16x32_bf16 v[{144+4*part}:{147+4*part}], v[{ONES}:{ONES+3}], v[{P+8*part+4*s}:{P+8*part+4*s+3}], {'0' if s == 0 else f'v[{144+4*part}:{147+4*part}]'}")
        t("s_nop 7\nv_mov_b32 v145, v148\nv_mov_b32 v146, v152\ns_mov_b64 exec, 0xffff")
        t("buffer_store_dwordx4 v[144:147], v30, s[16:19], s27 offen sc1\ns_mov_b64 exec, -1\ns_setpc_b64 s[100:101]")
        t(f"L_flag:\ns_mov_b32 s27, {SPIN}\nL_flagb:\nv_cmp_eq_u32 vcc, 0, v20\ns_sub_u32 s27, s27, 1\ns_cbranch_vccz L_flagc\ns_cmp_eq_u32 s27, 0\ns_cbranch_scc1 L_flagc")
        t("buffer_load_dword v20, v28, s[12:15], 0 offen sc1\ns_waitcnt vmcnt(0)\ns_branch L_flagb")
        t("L_flagc:\nv_mov_b32 v16, 1\ns_lshl_b32 s27, s2, 7\ns_add_u32 s27, s27, s40\ns_mov_b64 exec, 1\nbuffer_store_dword v16, v30, s[16:19], s27 offen sc1\ns_mov_b64 exec, -1\ns_branch L_ret")
        k = a.lines.index("@near"); a.lines[k:k+1] = t.lines; t.lines = []
        t(f"L_spin0:\ns_mov_b32 s27, {SPIN}\nL_spin0b:\nbuffer_load_dword v20, v19, s[16:19], s40 offen sc1\ns_waitcnt vmcnt(0)\nv_cmp_gt_u32 vcc, 1, v20\ns_sub_u32 s27, s27, 1")
        t("s_cbranch_vccz L_rdy0\ns_cmp_lg_u32 s27, 0\ns_cbranch_scc1 L_spin0b\ns_branch L_rdy0")
        S = lambda sg, tb: (140 if sg == 0 else 228) + 4*tb
        mf = lambda d, A_, B_, C_: a(f"v_mfma_f32_16x16x32_bf16 v[{d}:{d+3}], v[{A_}:{A_+3}], v[{B_}:{B_+3}], {C_ if C_ == '0' else f'v[{C_}:{C_+3}]'}")
        pre2 = lambda sts: [self.pre24(st, i, B2[st], 252, 36) for st in sts for i in range(4)]
        pk = lambda r: f"v[{r}:{r+1}]"
        def feat1(j0, between=None):
            b = 32 + 16*j0
            def partA():
                for tb in range(4):
                    for x in range(2):
                        for h in (0, 2): a(f"v_pk_fma_f32 {pk(b+16*x+4*tb+h)}, {pk(2+2*tb)}, {pk(CS(j0+x)+h)}, {pk(b+16*x+4*tb+h)} op_sel_hi:[0,1,1] neg_lo:[1,0,0] neg_hi:[1,0,0]")
                        if tb > 0: mf(P + 8*(tb-1) + 4*x, WP + 4*x, F + 4*(tb-1), "0")
                    for d in range(4): a(f"v_cvt_pk_bf16_f32 v{F+4*tb+d}, v{b+16*(d//2)+4*tb+2*(d%2)}, v{b+16*(d//2)+4*tb+2*(d%2)+1}")
            def partB():
                for tb in range(4):
                    p = P + 8*tb
                    for dst, op3, op2 in ((MX+tb, "v_max3_f32", "v_max_f32"), (MN+tb, "v_min3_f32", "v_min_f32")):
                        a(f"{op3} v{dst}, v{p}, v{p+1}, v{p+2}\n{op3} v{dst}, v{dst}, v{p+3}, v{p+4}\n{op3} v{dst}, v{dst}, v{p+5}, v{p+6}\n{op2} v{dst}, v{dst}, v{p+7}")
                two = ((MX, "v_max_f32"), (MN, "v_min_f32"))
                a("s_nop 0")
                for r, op in two: a(f"v_permlane16_swap_b32 v{r}, v{r+1}\nv_permlane16_swap_b32 v{r+2}, v{r+3}")
                for r, op in two: a(f"{op} v{r}, v{r}, v{r+1}\n{op} v{r+2}, v{r+2}, v{r+3}")
                a("s_nop 0")
                for r, op in two: a(f"v_permlane32_swap_b32 v{r}, v{r+2}")
                for r, op in two: a(f"{op} v{r+1}, v{r}, v{r+2}\n{op} v{r+2}, v{r}, v{r+2}")
                a("s_nop 0")
                for r, op in two: a(f"v_permlane32_swap_b32 v{r+1}, v{r+2}")
                for r, op in two: a(f"v_mov_b32 v{r}, v{r+1}\nv_mov_b32 v{r+3}, v{r+2}")
                for r, op in two: a(f"v_permlane16_swap_b32 v{r}, v{r+1}\nv_permlane16_swap_b32 v{r+2}, v{r+3}")
            partA()
            a("s_nop 1")
            for fb in range(2): mf(P + 24 + 4*fb, WP + 4*fb, F + 12, "0")
            if between: between()
            partB()
            for tb in range(4): a(f"v_mul_f32 v{MX+tb}, v{MX+tb}, v{3+2*tb}\nv_mul_f32 v{MN+tb}, v{MN+tb}, v{3+2*tb}")
        def feat2(b):
            for tb in range(4):
                sel = tb % 2; mx, mn = pk(MX+tb-sel), pk(MN+tb-sel)
                for e in range(0, 8, 2): a(f"v_pk_fma_f32 {pk(b+8*tb+e)}, {pk(P+8*tb+e)}, {pk(2+2*tb)}, {mx} op_sel:[0,1,{sel}] op_sel_hi:[1,1,{sel}] neg_lo:[0,0,1] neg_hi:[0,0,1]")
                for e in range(0, 8, 2): a(f"v_pk_fma_f32 {pk(P+8*tb+e)}, {pk(P+8*tb+e)}, {pk(2+2*tb)}, {mn} op_sel:[0,1,{sel}] op_sel_hi:[1,1,{sel}] neg_lo:[1,0,0] neg_hi:[1,0,0]")
                for e in range(8):
                    a(f"v_exp_f32 v{b+8*tb+e}, v{b+8*tb+e}")
                    if tb > 0 and e in (0, 2): mf(S(e//2, tb-1), ONES, EF + 8*e + 4*(tb-1), "0")
                for e in range(8): a(f"v_exp_f32 v{P+8*tb+e}, v{P+8*tb+e}")
                for sg, src in ((0, b), (1, P)):
                    for d in range(4): a(f"v_cvt_pk_bf16_f32 v{EF+16*sg+4*tb+d}, v{src+8*tb+2*d}, v{src+8*tb+2*d+1}")
            mf(S(0, 3), ONES, EF + 12, "0"); a("s_nop 0"); mf(S(1, 3), ONES, EF + 28, "0")
        def scale_pack(b, sc, after=None):
            for tb in range(4):
                for sg, src in ((0, b), (1, P)):
                    for e in range(0, 8, 2): a(f"v_pk_mul_f32 {pk(src+8*tb+e)}, {pk(src+8*tb+e)}, {pk(sc(sg, tb))} op_sel_hi:[1,0]")
                    for d in range(4): a(f"v_cvt_pk_bf16_f32 v{EF+16*sg+4*tb+d}, v{src+8*tb+2*d}, v{src+8*tb+2*d+1}")
                    if after: after(tb, sg)
        VF, KV, Z = 96, 112, 244
        def vside():
            for db in range(2):
                for tb in range(4):
                    for h in (0, 2):
                        x = 96 + 16*db + 4*tb + h
                        a(f"v_pk_fma_f32 {pk(x)}, {pk(EF+8*tb+h)}, {pk(CS(4+db))}, {pk(x)} op_sel_hi:[1,0,1] neg_lo:[1,0,0] neg_hi:[1,0,0]\nv_pk_mul_f32 {pk(x)}, {pk(x)}, {pk(EF+8*tb+4+h)}")
                for d in range(8): a(f"v_cvt_pk_bf16_f32 v{VF+8*db+d}, v{96+16*db+2*d}, v{97+16*db+2*d}")
                if db == 0: a("s_barrier")
                for i in range(2): a.lds(f"ds_write_b128 v24, v[{VF+8*db+4*i}:{VF+8*db+4*i+3}] offset:{2048*db + 1024*i}", ("vw",))
        def afr(who, ks):
            for fb in range(2):
                for rd in range(2):
                    r = 16*who + 8*fb + 4*ks + 2*rd
                    a.lds(f"ds_read_b64_tr_b16 a[{r}:{r+1}], v{14+2*who+fb} offset:{(32*ks + 16*rd)*128}", ("af", who, ks))
        def kvm(who, ks, db, fb):
            af = 16*who + 8*fb + 4*ks; A_ = f"a[{af}:{af+3}]"
            d = KV + 8*fb + 4*db if db < 2 else Z + 4*fb
            C_ = "0" if who == 0 and ks == 0 else f"v[{d}:{d+3}]"
            if db == 2: return f"v_mfma_f32_16x16x32_bf16 v[{d}:{d+3}], v[{ONES}:{ONES+3}], {A_}, {C_}"
            B_ = f"v[{VF+8*db+4*ks}:{VF+8*db+4*ks+3}]" if who == 0 else f"a[{32+8*db+4*ks}:{35+8*db+4*ks}]"
            return f"v_mfma_f32_16x16x32_bf16 v[{d}:{d+3}], {A_}, {B_}, {C_}"
        TK = (lambda n: self.tr(n)) if o.get('x_tk') else (lambda n: None)
        marker = [[X("s_nop 0" if k == 0 else f"s_add_u32 s3, s3, {1<<20}"), V("buffer_store_dwordx4 a[96:99], v30, s[16:19], s3 offen sc1", ("xclr",))] for k in range(4)]
        self.weave(lambda: feat1(2, vside), marker); TK("kB")
        feat2(64); TK("kf2")
        for tb in range(3):
            for sg in range(2): a(f"v_rcp_f32 v{S(sg, tb)}, v{S(sg, tb)}")
        def wr(tb, sg):
            for fb in range(2): a.lds(f"ds_write_b64 v{10+2*sg+fb}, v[{EF+16*sg+4*tb+2*fb}:{EF+16*sg+4*tb+2*fb+1}] offset:{2048*tb}", ("pw",))
            if (tb, sg) == (0, 0): a(f"v_rcp_f32 v{S(0, 3)}, v{S(0, 3)}\nv_rcp_f32 v{S(1, 3)}, v{S(1, 3)}")
            if (tb, sg) == (1, 1): afr(0, 0)
            if (tb, sg) == (2, 0): a.wait(lg=[("af", 0, 0)])
            if (tb, sg) in ((2, 0), (2, 1), (3, 0)):
                for fb in range(2): a(kvm(0, 0, 2*(tb-2) + sg, fb))
        scale_pack(64, S, wr); TK("kscl")
        afr(0, 1)
        a(f"s_lshl_b32 s27, s26, 9\ns_add_u32 s52, s61, s27\ns_lshl_b32 s27, s47, 8\ns_add_u32 s53, s61, s27\ns_add_u32 s53, s53, {XS_Z}")
        self.tr("1kside", 2)
        a.wait(lg=[("pw",)]); a("s_barrier")
        afr(1, 0)
        for i in (0, 1): a.lds(f"ds_read_b128 a[{32+4*i}:{35+4*i}], v25 offset:{1024*i}", ("vg", 0))
        afr(1, 1)
        for i in (2, 3): a.lds(f"ds_read_b128 a[{32+4*i}:{35+4*i}], v25 offset:{1024*i}", ("vg", 1))
        a.wait(lg=[("af", 0, 1)])
        for db in range(3):
            for fb in range(2): a(kvm(0, 1, db, fb))
        def pub(db):
            for d in range(4): a(f"v_cvt_pk_bf16_f32 v{72+4*db+d}, v{KV+8*(d//2)+4*db+2*(d%2)}, v{KV+8*(d//2)+4*db+2*(d%2)+1}")
            a.vmem(f"buffer_store_dwordx4 v[{72+4*db}:{75+4*db}], v30, s[16:19], s62 offen offset:{1024*db} sc1", ("pub",))
        for db in range(3):
            a.wait(lg=[("af", 1, 1), ("vg", min(db, 1))])
            for fb in range(2):
                for ks in range(2): a(kvm(1, ks, db, fb))
        pub(0); pub(1)
        a(f"v_mov_b32 v{Z+1}, v{Z+4}\ns_mov_b64 exec, 0xffff")
        a.vmem(f"buffer_store_dwordx2 v[{Z}:{Z+1}], v30, s[16:19], s63 offen sc1", ("pub",))
        a("s_mov_b64 exec, -1")
        self.tr("1pub")
        a.wait(vm=[("wo",)])
        a(f"v_mfma_f32_16x16x32_bf16 v[96:99], v[{ONES}:{ONES+3}], a[88:91], 0\nv_mfma_f32_16x16x32_bf16 v[96:99], v[{ONES}:{ONES+3}], a[92:95], v[96:99]")
        a(f"s_lshl_b32 s27, s20, 2\ns_add_u32 s54, s49, s27\ns_sub_u32 s54, s54, {XS_T - XS_W}\ns_lshl_b32 s27, s20, 7\ns_add_u32 s52, s52, s27\ns_add_u32 s49, s49, s27")
        for j in range(2): a(f"v_mfma_f32_16x16x4_f32 v[{CS(j)}:{CS(j)+3}], v{18+j}, v29, 0")
        rowsum16(a, [96])
        a("v_mul_f32 v96, 0x3a800000, v96\ns_mov_b64 exec, 1")
        a.vmem("buffer_store_dword v96, v30, s[16:19], s54 offen sc1", ("wb",))
        a("s_mov_b64 exec, -1")
        def strided(n, first, stride, mk, tag):
            return [[X(f"s_mov_b32 s34, {first}" if i == 0 else f"s_add_u32 s34, s34, {stride}"), V(mk(i), tag)] for i in range(n)]
        kv_ops = lambda: strided(2, "s52", 8*XS, lambda i: f"buffer_load_dwordx4 v[{64+4*i}:{67+4*i}], v21, s[16:19], s34 offen sc1", ("kv",))
        z_ops = lambda: strided(4, "s53", 4*XS, lambda i: f"buffer_load_dwordx4 v[{80+4*i}:{83+4*i}], v27, s[16:19], s34 offen sc1", ("z",))
        KF = (128, 132, 10, 14)
        tot_ops = lambda: strided(4, "s92", 2*XS, lambda i: f"buffer_load_dwordx4 v[{KF[i]}:{KF[i]+3}], v22, s[16:19], s34 offen sc1", ("tot",)) + \
                          strided(2, "s93", 4*XS, lambda i: f"buffer_load_dwordx4 v[{244+4*i}:{247+4*i}], v28, s[16:19], s34 offen sc1", ("tot",))
        def retry(k, regs, ops):
            a(f"s_mov_b32 s27, {SPIN}\nL_chk{k}:")
            umax(a, 20, regs)
            a(f"v_cmp_eq_u32 vcc, -1, v20\ns_sub_u32 s27, s27, 1\ns_cbranch_vccz L_ok{k}\ns_cmp_eq_u32 s27, 0\ns_cbranch_scc1 L_ok{k}")
            vm = list(a.vm)
            for g in ops(): self.group(g)
            a.vm = vm
            a(f"s_waitcnt vmcnt(0)\ns_branch L_chk{k}\nL_ok{k}:")
        a(f"s_mul_i32 s27, s47, {8*XS}\ns_add_u32 s92, s61, s27\ns_add_u32 s93, s92, {XS_W}\ns_add_u32 s92, s92, {XS_T}")
        a("s_lshl_b32 s27, s26, 3\ns_lshl_b32 s34, s46, 2\ns_add_u32 s27, s27, s34\ns_lshl_b32 s54, s27, 15\ns_lshl_b32 s35, s48, 10\ns_add_u32 s54, s54, s35")
        ws_srd(a, 56, WS_O, 4<<20); a(self.rowmajor24(24, 26)); a("s_mov_b32 s94, 0x358637bd")
        G = lambda ops, i0, step: [(i0 + step*k, (lambda g=g: self.group(g))) for k, g in enumerate(ops)]
        def reduce_():
            self.tr("1q", 2)
            a.wait(vm=[("kv",)])
            retry(1, range(64, 72), kv_ops)
            self.tr("1hop1")
            for e in range(8): a(f"v_lshlrev_b32 v{96+e}, 16, v{64+e}\nv_and_b32 v{104+e}, 0xffff0000, v{64+e}")
            for b in (96, 104):
                for h in (0, 2): a(f"v_pk_add_f32 {pk(b+h)}, {pk(b+h)}, {pk(b+4+h)}")
            a("s_nop 0")
            for b in (96, 104): a(f"v_permlane16_swap_b32 v{b}, v{b+1}\nv_permlane16_swap_b32 v{b+2}, v{b+3}")
            for b in (96, 104): a(f"v_add_f32 v{b}, v{b}, v{b+1}\nv_add_f32 v{b+2}, v{b+2}, v{b+3}")
            a("s_nop 0\nv_permlane32_swap_b32 v96, v98\nv_permlane32_swap_b32 v104, v106\nv_add_f32 v96, v96, v98\nv_add_f32 v104, v104, v106\ns_nop 0")
            a("v_add_f32_dpp v96, v96, v96 row_ror:8 row_mask:0xf bank_mask:0xf\nv_add_f32_dpp v104, v104, v104 row_ror:8 row_mask:0xf bank_mask:0xf\nv_cvt_pk_bf16_f32 v72, v96, v104")
            a.vmem("buffer_store_dword v72, v31, s[16:19], s49 offen sc1", ("tots",))
        I1, I2, I3 = o.get("i1", 60), o.get("i2", 190), o.get("i3", 60)
        n = self.splice(lambda: (feat1(0), feat2(32)), G(pre2(HQ), 0, 8) + G(kv_ops() + z_ops(), I1, 6) + [(I2, reduce_)])
        a.wait(vm=[("z",)])
        retry(2, range(80, 96), z_ops)
        ZF, ZQ = 120, 64
        def zmath():
            for q in range(0, 8, 2): a(f"v_pk_add_f32 {pk(80+q)}, {pk(80+q)}, {pk(88+q)}")
            for q in range(0, 4, 2): a(f"v_pk_add_f32 {pk(80+q)}, {pk(80+q)}, {pk(84+q)}")
            a("s_nop 0")
            for q in range(4): a(f"v_mfma_f32_16x16x4_f32 v[{100+4*q}:{103+4*q}], v{80+q}, v29, 0")
            a("s_nop 6")
            for d in range(8): a(f"v_cvt_pk_bf16_f32 v{ZF+d}, v{100+2*d}, v{101+2*d}")
            a("s_nop 0")
            for tb in range(4):
                for sg in range(2): mf(ZQ + 16*sg + 4*tb, ZF + 4*sg, EF + 16*sg + 4*tb, "0")
            a("s_nop 1")
            for tb in range(4):
                a(f"v_fma_f32 v{ZQ+4*tb}, v{S(0,tb)}, s94, v{ZQ+4*tb}\nv_mul_f32 v{ZQ+4*tb}, v{ZQ+4*tb}, v{S(1,tb)}\nv_fmac_f32 v{ZQ+4*tb}, v{ZQ+16+4*tb}, v{S(0,tb)}")
                a(f"v_rcp_f32 v{ZQ+4*tb}, v{ZQ+4*tb}")
            for tb in range(4): a(f"v_mul_f32 v{100+2*tb}, v{ZQ+4*tb}, v{S(1,tb)}\nv_mul_f32 v{108+2*tb}, v{ZQ+4*tb}, v{S(0,tb)}")
            scale_pack(32, lambda sg, tb: 100 + 8*sg + 2*tb)
        n2 = self.splice(zmath, G(tot_ops(), I3, 5))
        self.info.append((n, n2))
        for tb in range(2):
            for u in range(2): a.vmem(f"buffer_load_dwordx4 v[{P+8*tb+4*u}:{P+3+8*tb+4*u}], v{24+tb}, s[8:11], s86 offen offset:{64*u}", ("x2",))
        self.tr("1z", 2)
        a.wait(vm=[("tot",)])
        retry(3, [r + k for r in KF for k in range(4)] + list(range(244, 252)), tot_ops)
        self.tr("1hop2")
        O = 32
        def ostore(tb):
            for d in range(4): a(f"v_cvt_pk_bf16_f32 v{64+4*tb+d}, v{O+8*tb+2*d}, v{O+8*tb+2*d+1}")
            a.vmem(f"buffer_store_dwordx4 v[{64+4*tb}:{67+4*tb}], v30, s[56:59], s54 offen sc1", ("o",))
            if tb < 3: a("s_add_u32 s54, s54, 32768")
        for tb in range(4):
            for db in range(2):
                d = O + 8*tb + 4*db
                mf(d, KF[db], EF + 4*tb, "0"); mf(d, KF[2+db], EF + 16 + 4*tb, d)
            if tb >= 2: ostore(tb - 2)
        ostore(2); ostore(3)
        for tb in range(4):
            a(f"v_pk_mul_f32 {pk(100+2*tb)}, {pk(O+8*tb)}, {pk(244)}")
            for e in range(2, 8, 2): a(f"v_pk_fma_f32 {pk(100+2*tb)}, {pk(O+8*tb+e)}, {pk(244+e)}, {pk(100+2*tb)}")
        for tb in range(4): a(f"v_add_f32 v{96+tb}, v{100+2*tb}, v{101+2*tb}")
        rs4(a, 96, "v_add_f32")
        a(f"s_lshl_b32 s27, s26, 1\ns_add_u32 s27, s27, s46\ns_lshl_b32 s27, s27, 5\ns_add_u32 s27, s27, s48\ns_lshl_b32 s27, s27, 8\ns_add_u32 s27, s27, {G_MD}\nv_lshlrev_b32 v16, 2, v0")
        a.vmem("buffer_store_dword v96, v16, s[16:19], s27 offen sc1", ("md",))
        self.tr("1end")
        a.wait(vm=[("x2",)])
        def xinit():
            for tb in range(2):
                for u in range(2):
                    x = P + 8*tb + 4*u
                    a(f"v_permlane16_swap_b32 v{x}, v{x+2}\nv_permlane16_swap_b32 v{x+1}, v{x+3}")
                    for d in range(4):
                        r = 32 + 4*(2*(2*u + d//2) + tb) + 2*(d % 2)
                        a(f"v_lshlrev_b32 v{r}, 16, v{x+d}\nv_and_b32 v{r+1}, 0xffff0000, v{x+d}")
        HE = o.get("he", (3, 4))
        if HE: self.weave(xinit, pre2(HE))
        else: xinit()
        self.signal(2, [("md",)])
        for g in pre2([x for x in range(8) if x not in H14 + HQ + HE]): self.group(g)

    def setup3(self):
        a = self.a
        a("s_and_b32 s25, s2, 7\ns_lshl_b32 s25, s25, 2\ns_bfe_u32 s27, s2, 0x20003\ns_add_u32 s25, s25, s27\ns_lshr_b32 s26, s2, 5")
        a("s_movk_i32 s27, 6944\nv_lshlrev_b32 v9, 4, v0")
        for i in range(7):
            a(f"v_add_u32 v14, {64*i}, v0\nv_mul_u32_u24 v14, 4682, v14\nv_lshrrev_b32 v14, 16, v14\nv_mad_u32_u24 v{2+i}, v14, s27, v9")
            if i >= 4: a(f"v_add_u32 v{2+i}, 4096, v{2+i}")
        a("s_lshl_b32 s87, s26, 4\ns_lshl_b32 s35, s20, 2\ns_add_u32 s87, s87, s35")
        a("v_add_u32 v10, 32768, v9\nv_add_u32 v11, 65536, v9\nv_add_u32 v12, 98304, v9")
        a("s_mul_i32 s22, s47, 229376\ns_mul_i32 s27, s25, 224\ns_add_u32 s22, s22, s27")
        a("s_mul_i32 s27, s46, 14336\ns_mul_i32 s23, s47, 7168\ns_add_u32 s23, s23, s27")
        a(f"s_bitcmp1_b32 s20, 0\ns_cselect_b32 s4, s{P_WU}, s{P_WG}\ns_cselect_b32 s5, s{P_WU+1}, s{P_WG+1}\ns_mov_b32 s6, 7340032")
        a("v_lshrrev_b32 v14, 2, v0\nv_mul_u32_u24 v14, 224, v14\nv_and_b32 v15, 3, v0\nv_lshl_add_u32 v13, v15, 3, v14")
    def dma3(self, a, st, i):
        f = []
        if i == 0 and st >= 2 and st % 2 == 0: f.append(lambda: a("s_xor_b32 s23, s23, 0x10000"))
        if i == 0 and st > 0: f.append(lambda: a(f"s_add_u32 s22, s22, {64*7168}"))
        if i % 4 == 0: f.append(lambda: a(f"s_add_u32 m0, s23, {(st%2)*32768 + i*1024}"))
        f.append(lambda: a.vmem(f"buffer_load_dwordx4 v{2+i}, s[4:7], s22 offen offset:{1024*(i%4)} lds", ("dma", st)))
        return f

    def phase2(self):
        a, o = self.a, self.o.get("k2", {})
        TR = o.get("TR", 4)
        a("L_ph2:")
        self.visit("L_ph2", "L_loop3", (1, 2, 3))
        self.setup3()
        E3 = o.get("e3", 0)
        for i in range(7*E3): self.group(self.dma3(a, 0, i))
        a(self.rdaddr24(16))
        for sg in range(4): a(f"v_add_u32 v{16+sg}, {B2[0]}, v{16+sg}")
        a("v_and_b32 v23, 31, v0\nv_lshlrev_b32 v22, 3, v23\nv_lshlrev_b32 v23, 2, v23\nv_lshrrev_b32 v20, 5, v0\nv_lshl_add_u32 v20, v20, 8, v23")
        a(f"s_lshr_b32 s92, s82, 2\ns_lshl_b32 s92, s92, 13\ns_lshl_b32 s27, s46, 7\ns_add_u32 s92, s92, s27\ns_add_u32 s92, s92, {G_MD}\ns_add_u32 s93, s92, 4096")
        a(f"s_lshl_b32 s94, s82, 7\ns_add_u32 s94, s94, {G_ST1}")
        a("s_lshl_b32 s21, s82, 15")
        ws_srd(a, 8, WS_HC, 4<<20)
        for fn in self.code_touch("b", "L_ph3", "L_ph4", 52, 26, 2): fn()
        self.await_(2, "s_lshr_b32 s34, s80, 3\ns_and_b32 s35, s80, 7\ns_lshl_b32 s35, s35, 3\ns_or_b32 s34, s34, s35\n"
                       "v_and_b32 v31, 3, v0\nv_lshlrev_b32 v31, 1, v31\nv_and_b32 v30, 12, v0\nv_lshl_or_b32 v31, v30, 4, v31\nv_or_b32 v31, s34, v31")
        self.tr("2start")
        c = gemm16.Cfg()
        c.TB, c.NB, c.SPS, c.NST, c.NDMA = 2, 4, 2, 8, 4
        c.PRE = 8; c.TR = TR; c.BODY = 8; c.LA, c.WR = o.get("LA", 3), 4; c.TOK0 = o.get("tok0", 2)
        c.PBACK = 4*c.LA; c.LDS2 = False
        accr = lambda j, tb: 32 + 4*(2*j+tb)
        c.acc = lambda j, tb: f"v[{accr(j,tb)}:{accr(j,tb)+3}]"
        c.tokreg = lambda sl, tb, s: f"a[{40+16*sl+8*tb+4*s}:{40+16*sl+8*tb+4*s+3}]"
        c.wreg = lambda sl, s: f"a[{8*sl+4*s}:{8*sl+4*s+3}]"
        def tok(a, t, tb, s):
            f = []
            if t % 2 == 0 and tb == 0 and s == 0 and t > 0: f.append(lambda: a("s_add_u32 s21, s21, 4096"))
            f.append(lambda: a.vmem(f"buffer_load_dwordx4 {c.tokreg(t % c.TR, tb, s)}, v{9+tb}, s[56:59], s21 offen offset:{1024*((2*t+s)%4)} {self.o.get('tokfl', 'sc1')}", ("tok", t, tb, s)))
            return f
        c.tok = tok; c.tokpos = lambda i: 4*i
        def wread(a, st, sis, j, s, rd, sl, tag):
            lo = 8*sl + 4*s + 2*rd
            a.lds(f"ds_read_b64_tr_b16 a[{lo}:{lo+1}], v{16+j} offset:{(st%2)*16384 + (64*sis + 32*s + 16*rd)*128}", tag)
        c.wread = wread
        PB = 4
        c.barrier_at = lambda st: st == PB
        def on_P(a, st):
            if st % 2 == 1:
                for sg in range(4): a(f"v_add_u32 v{16+sg}, {B2[st+1] - B2[st-1]}, v{16+sg}")
            if self.o.get("trace2"): self.tr(f"2P{st}")
        c.on_P = on_P
        if self.o.get("trace2"): c.first_tok = lambda a: self.tr("2tok")
        V = lambda s, tag: (lambda: a.vmem(s, tag))
        X = lambda s: (lambda: a(s))
        self.pre3 = o.get("pre3", 1 + E3)
        def extra(st):
            ex = []
            if st >= 1 and st < 5:
                ex += [(2 + 8*k, V(f"buffer_load_dword v{64+i}, v20, s[16:19], s{92+i//8} offen offset:{512*(i%8)} sc1", ("md",))) for k, i in enumerate(range(4*st-4, 4*st))]
            if st == 5: ex += [(2, V("buffer_load_dword v24, v22, s[16:19], s94 offen sc1", ("md",)))]
            if st == 6:
                k = 0
                for s3 in range(E3, self.pre3):
                    for i in range(7):
                        for fn in self.dma3(a, s3, i): ex.append((o.get("p0", 18) + o.get("pstep", 5)*k, fn))
                        k += 1
            return ex
        def fixed(st):
            if st != 7: return []
            L = [lambda: a.wait(vm=[("md",)])] + [X(f"v_add_f32 v{64+i}, v{64+i}, v{64+i+n}") for n in (8, 4, 2, 1) for i in range(n)]
            L += [X("v_mov_b32 v65, v64\ns_nop 0"), X("v_permlane32_swap_b32 v64, v65"), X("v_add_f32 v64, v64, v65"), X("v_add_f32 v24, v24, v64"), X("v_mov_b32 v25, v24\ns_nop 0"), X("v_permlane16_swap_b32 v24, v25")]
            return [(8 + k, f) for k, f in enumerate(L)]
        c.fixed = fixed
        c.extra = extra
        gemm16.mainloop(a, c)
        self.tr("2main")
        pk = lambda r: f"v[{r}:{r+1}]"
        a("s_lshl_b32 s34, s82, 15\ns_lshl_b32 s27, s81, 11\ns_add_u32 s34, s34, s27\ns_lshl_b32 s35, s81, 13\ns_lshl_b32 s27, s82, 6\ns_add_u32 s35, s35, s27")
        for tb in range(2):
            for u in range(2):
                x = 72 + 8*tb + 4*u
                for d in range(4):
                    r = accr(2*u + d//2, tb) + 2*(d % 2)
                    a(f"v_pk_add_f32 {pk(r+64)}, {pk(r)}, v[24:25] op_sel:[0,{tb}] op_sel_hi:[1,{tb}] neg_lo:[0,1] neg_hi:[0,1]")
                for d in range(4):
                    r = accr(2*u + d//2, tb) + 2*(d % 2) + 64
                    a(f"v_cvt_pk_bf16_f32 v{x+d}, v{r}, v{r+1}")
                a.vmem(f"buffer_store_dwordx4 v[{x}:{x+3}], v{9+tb}, s[8:11], s34 offen offset:{1024*u} sc1", ("hc",))
        for tb in range(2):
            rs = [accr(nb, tb) + h + 64 for nb in range(4) for h in (0, 2)]
            a(f"v_pk_mul_f32 {pk(26+2*tb)}, {pk(rs[0])}, {pk(rs[0])}")
            for r in rs[1:]: a(f"v_pk_fma_f32 {pk(26+2*tb)}, {pk(r)}, {pk(r)}, {pk(26+2*tb)}")
        a("v_add_f32 v26, v26, v27\nv_add_f32 v28, v28, v29\ns_nop 1\nv_permlane16_swap_b32 v26, v28\ns_nop 0\nv_add_f32 v26, v26, v28\nv_mov_b32 v28, v26\ns_nop 1\nv_permlane32_swap_b32 v26, v28\ns_nop 0\nv_add_f32 v26, v26, v28")
        a.vmem("buffer_store_dword v26, v23, s[16:19], s35 offen sc1", ("ss",))
        self.tr("2end")
        for r in range(32): a(f"v_accvgpr_write_b32 a{HSAVE+r}, v{32+r}")
        self.signal(3)

    def phase3(self):
        a, o = self.a, self.o.get("k3", {})
        PKF, D, G0, PRE = o.get("pkf", 5), o.get("pfd", 4), o.get("g0", 0), o.get("pre", 2)
        a("L_ph3:")
        for s3 in range(self.pre3, PRE):
            for i in range(7): self.group(self.dma3(a, s3, i))
        self.visit("L_loop3", "L_done", (1, 2, 3))
        a("s_lshl_b32 s21, s87, 15")
        ws_srd(a, 12, WS_HH, 2048*3584*2); psrd(a, 40, P_WD, 7340032)
        a("s_lshl_b32 s38, s87, 6\nv_lshlrev_b32 v14, 2, v0")
        a(f"s_lshr_b32 s36, s2, 3\ns_lshl_b32 s36, s36, 1\ns_add_u32 s36, s36, s47\ns_add_u32 s36, s36, {64*D}\ns_mul_i32 s36, s36, 7168\ns_and_b32 s37, s2, 7\ns_mul_i32 s37, s37, 896\ns_add_u32 s36, s36, s37")
        a("s_lshl_b32 s37, s2, 2\ns_add_u32 s37, s37, s20\ns_mul_i32 s37, s37, 896")
        W0 = o.get("w0", 4)
        a(f"s_add_u32 s48, s36, {(15-D)*64*7168}\ns_mov_b32 s49, s37\ns_add_u32 s50, s37, {7*917504}\ns_sub_u32 s37, s37, {W0*917504}")
        a("v_min_u32 v1, 6, v0\nv_lshlrev_b32 v1, 7, v1")
        a("s_mul_i32 s99, s87, 114688\ns_lshr_b32 s27, s25, 4\ns_mul_i32 s27, s27, 57344\ns_add_u32 s99, s99, s27\ns_and_b32 s27, s25, 15\ns_lshl_b32 s27, s27, 9\ns_add_u32 s99, s99, s27")
        a("s_add_u32 s96, s99, s27\ns_add_u32 s97, s96, 16384\ns_add_u32 s98, s96, 32768\ns_add_u32 s99, s99, 49152")
        a(f"s_lshl_b32 s100, s2, 7\ns_lshl_b32 s27, s20, 2\ns_add_u32 s100, s100, s27\ns_add_u32 s100, s100, {G_FL + 16}")
        a(f"s_and_b32 s35, s2, 1\ns_mul_i32 s92, s35, {1792*2048}\ns_lshl_b32 s27, s81, 7\ns_add_u32 s92, s92, s27\ns_mul_i32 s27, s20, {112*2048}\ns_add_u32 s92, s92, s27\ns_add_u32 s93, s92, s27")
        a("s_lshl_b32 s95, s20, 13\ns_mul_i32 s28, s82, 114688\ns_mul_i32 s27, s35, 57344\ns_add_u32 s28, s28, s27")
        a(f"s_lshr_b32 s101, s80, 1\ns_lshl_b32 s101, s101, 3\ns_add_u32 s101, s101, s35\ns_lshl_b32 s101, s101, 9\ns_bfe_u32 s27, s82, 0x20002\ns_lshl_b32 s27, s27, 2\ns_add_u32 s101, s101, s27")
        a(f"v_and_b32 v20, 3, v0\nv_and_b32 v21, 12, v0\nv_lshl_or_b32 v20, v21, 1, v20\nv_lshl_add_u32 v20, v20, 7, s101\ns_mov_b32 s101, {G_FL + 16}\ns_xor_b32 s27, s100, 128\ns_sub_u32 s27, s27, s101")
        a("v_mov_b32 v21, s27\nv_cmp_gt_u32 vcc, 16, v0\ns_lshl_b32 s3, s2, 2\ns_add_u32 s3, s3, s20\nv_cndmask_b32 v20, v21, v20, vcc\nv_accvgpr_write_b32 a222, v20")
        a(f"s_lshl_b32 s3, s3, 10\ns_add_u32 s60, s3, {G_XB}\ns_add_u32 s61, s60, {1<<20}\ns_add_u32 s62, s60, {2<<20}\ns_add_u32 s63, s60, {3<<20}")
        for r in range(4): a(f"v_accvgpr_write_b32 a{224+r}, -1")
        if True:
            sg = a
            sg(f"s_lshr_b32 s27, s{P_WD}, 7\ns_sub_u32 s27, 3, s27\ns_and_b32 s27, s27, 7\ns_lshl_b32 s55, s27, 7\ns_and_b32 s35, s2, 1\ns_mul_i32 s35, s35, {1792*2048}\ns_add_u32 s55, s55, s35")
            sg("s_lshr_b32 s27, s27, 1\ns_lshr_b32 s35, s81, 1\ns_sub_u32 s27, s35, s27\ns_sub_u32 s27, s27, 1\ns_and_b32 s27, s27, 3\ns_lshl_b32 s27, s27, 1\ns_lshr_b32 s35, s35, 2\ns_add_u32 s27, s27, s35")
            sg("s_lshl_b32 s27, s27, 2\ns_and_b32 s35, s80, 3\ns_add_u32 s27, s27, s35\ns_lshl_b32 s27, s27, 2\ns_add_u32 s27, s27, s20")
            sg("s_cmp_ge_u32 s27, 96\ns_cselect_b32 s27, 256, s27\nv_mul_u32_u24 v28, 96, v0\nv_add_u32 v28, s27, v28\nv_cmp_gt_u32 vcc, 256, v28")
            sg("v_bfe_u32 v29, v28, 5, 2\nv_mul_u32_u24 v29, 112, v29\nv_and_b32 v30, 31, v28\nv_add_u32 v29, v29, v30\nv_lshlrev_b32 v29, 11, v29")
            sg("v_bfe_u32 v30, v28, 4, 3\nv_mul_u32_u24 v30, 112, v30\nv_and_b32 v31, 15, v28\nv_add_u32 v30, v30, v31\nv_lshlrev_b32 v30, 11, v30")
            sg("v_bfe_u32 v28, v28, 7, 1\nv_lshl_add_u32 v29, v28, 10, v29\nv_lshl_add_u32 v30, v28, 10, v30\nv_mov_b32 v31, 0x7ffffff0\nv_cndmask_b32 v28, v31, v29, vcc\nv_cndmask_b32 v29, v31, v30, vcc")
            a(self.rdaddr24(16))
            for k, r in enumerate((16, 17, 18, 19, 28, 29)): a(f"v_accvgpr_write_b32 a{216+k}, v{r}")
        self.await_(3, "s_lshr_b32 s34, s26, 1\ns_lshl_b32 s34, s34, 1\ns_and_b32 s35, s26, 1\ns_lshl_b32 s35, s35, 4\ns_or_b32 s34, s34, s35\n"
                       "v_and_b32 v31, 1, v0\nv_and_b32 v30, 2, v0\nv_lshl_or_b32 v31, v30, 2, v31\nv_and_b32 v30, 28, v0\nv_lshl_or_b32 v31, v30, 3, v31\nv_or_b32 v31, s34, v31")
        self.tr("3start")
        c = gemm16.Cfg()
        c.TB, c.NB, c.SPS, c.NST, c.NDMA = 4, 14, 1, 16, 7
        c.TR = 2; c.BODY = 2; c.LA, c.WR = 2, 4; c.PRE = PRE
        c.PBACK = 16; c.LDS2 = False; c.first_zero = True
        accr = lambda j, tb: 32 + 4*(4*j+tb)
        c.acc = lambda j, tb: f"v[{accr(j,tb)}:{accr(j,tb)+3}]"
        c.tokreg = lambda sl, tb, s: f"a[{32+32*sl+8*tb+4*s}:{32+32*sl+8*tb+4*s+3}]"
        c.wreg = lambda sl, s: f"a[{8*sl+4*s}:{8*sl+4*s+3}]"
        c.dma = self.dma3
        def tok(a, t, tb, s, sl=None):
            f = []
            if t % 2 == 0 and tb == 0 and s == 0 and t > 0: f.append(lambda: a("s_add_u32 s21, s21, 4096"))
            f.append(lambda: a.vmem(f"buffer_load_dwordx4 {c.tokreg(t % 2 if sl is None else sl, tb, s)}, v{9+tb}, s[8:11], s21 offen offset:{1024*((2*t+s)%4)} {self.o.get('tokfl', 'sc1')}", ("tok", t, tb, s)))
            return f
        c.tok = tok
        woff = lambda st, j, s, rd: (st%2)*32768 + (j%2)*14336 + (32*s + 16*rd)*224 + (j//2)*32
        def wread(a, st, sis, j, s, rd, sl, tag):
            lo = 8*sl + 4*s + 2*rd
            a.lds(f"ds_read_b64_tr_b16 a[{lo}:{lo+1}], v13 offset:{woff(st, j, s, rd)}", tag)
        c.wread = wread
        def on_P(a, st):
            if st % 2 == 1: a("v_xor_b32 v13, 0x10000, v13")
            self.tr(f"3P{st}", 3)
        c.on_P = on_P
        c.first_tok = lambda a: self.tr("3tok")
        def marker(a):
            for k in range(4): a.vmem(f"buffer_store_dwordx4 a[224:227], v9, s[16:19], s{60+k} offen sc1", ("xclr",))
        MK = o.get('mk', 'p1')
        if MK == 'p3s': c.prologue_mid = marker
        c.pos_by_stage = True
        c.tokpos = lambda i, st: 30 + 3*i if st == 13 else 4 + 4*i
        c.dmapos = lambda i, st: 4*i if st == 13 else 36 + 8*i
        c.drain_at = lambda st: st == 13
        V = lambda s, tag: (lambda: a.vmem(s, tag))
        X = lambda s: (lambda: a(s))
        def extra(st):
            ex = []; g = o.get("pfgap", 90)
            if D < 16 and G0 <= st < 12:
                ex += [(g, V("buffer_load_dword a250, v1, s[4:7], s36 offen", ("pf",))), (g+2, X(f"s_add_u32 s36, s36, {64*7168}")), (g+2, X("s_min_u32 s36, s36, s48"))]
            if 1 <= st < 12:
                ex += [(g-4, X("s_add_u32 s37, s37, 917504")), (g-4, X("s_max_i32 s39, s37, s49")), (g-4, X("s_min_u32 s39, s39, s50")), (g, V("buffer_load_dword a251, v1, s[40:43], s39 offen", ("pf",)))]
            if MK == 'p3m' and st in (1, 12):
                ex += [(g_, V(f"buffer_store_dwordx4 a[224:227], v9, s[16:19], s{60 + k + (2 if st == 12 else 0)} offen sc1", ("xclr",))) for k, g_ in enumerate((33, 41))]
            if st == 0:
                for i in range(16):
                    ex.append((34 + 3*i, V(f"buffer_load_dword v{16+i}, v14, s[16:19], s38 offen sc1", ("ss",))))
                    if i < 15: ex.append((34 + 3*i, X("s_add_u32 s38, s38, 8192")))
            if st == 12: ex += [(90, f) for f in self.code_touch("c", "L_ph4", "L_code_end", 56, 14, 2)]
            if st == 13:
                for i in range(8):
                    for fn in tok(a, 15, i//2, i%2, 2): ex.append((56 + 3*i, fn))
            return ex
        c.extra = extra
        pre = Asm()
        for st_ in (8, 4, 2, 1):
            for i in range(st_): pre(f"v_add_f32 v{16+i}, v{16+i}, v{16+i+st_}")
        pre("v_mov_b32 v17, 0x3727c5ac\nv_fmac_f32 v17, 0x3a800000, v16\nv_sqrt_f32 v24, v17\nv_rsq_f32 v16, v17\nv_mul_f32 v16, 0xbfb8aa3b, v16")
        for b in (16, 24):
            pre(f"v_mov_b32 v{b+4}, v{b}\nv_permlane32_swap_b32 v{b}, v{b+4}\nv_mov_b32 v{b+2}, v{b}\nv_mov_b32 v{b+6}, v{b+4}")
            pre(f"v_permlane16_swap_b32 v{b}, v{b+2}\nv_permlane16_swap_b32 v{b+4}, v{b+6}")
        late = Asm()
        late("v_and_b32 v2, 15, v0\nv_lshlrev_b32 v2, 4, v2\nv_bfe_u32 v3, v0, 4, 1\nv_mul_u32_u24 v3, 114688, v3\nv_lshrrev_b32 v4, 5, v0\nv_lshlrev_b32 v4, 8, v4\nv_add3_u32 v2, v2, v3, v4")
        late("v_add_u32 v3, 229376, v2\nv_accvgpr_read_b32 v8, a222\nv_add_u32 v15, 114688, v9")
        late(self.voff24(4, True))
        def idle(st):
            if st != 12: return []
            pairs = ["\n".join(late.lines[k:k+2]) for k in range(0, len(late.lines), 2)]
            return [(0, lambda: a.wait(vm=[("ss",)]))] + [(0, X(l + ("\ns_nop 0" if l.startswith("v_mov") else ""))) for l in pre.lines] + [(112 + 40, X(l)) for l in pairs]
        c.idle = idle
        def gate_ops(fb, tb):
            g = accr(2*fb, tb); L = []
            if fb >= PKF:
                L += [(f"v_pk_mul_f32 v[{g+2*h}:{g+2*h+1}], v[{g+2*h}:{g+2*h+1}], v[{16+2*tb}:{17+2*tb}] op_sel_hi:[1,0]", 4) for h in range(2)]
                L += [(f"v_exp_f32 v{g+r}, v{g+r}", 8) for r in range(4)]
                L += [(f"v_pk_fma_f32 v[{g+2*h}:{g+2*h+1}], v[{g+2*h}:{g+2*h+1}], v[{24+2*tb}:{25+2*tb}], v[{24+2*tb}:{25+2*tb}] op_sel_hi:[1,0,0]", 4) for h in range(2)]
            else:
                L += [(f"v_mul_f32 v{g+r}, v{16+2*tb}, v{g+r}", 4) for r in range(4)]
                L += [(f"v_exp_f32 v{g+r}, v{g+r}", 8) for r in range(4)]
                L += [(f"v_fma_f32 v{g+r}, v{g+r}, v{24+2*tb}, v{24+2*tb}", 4) for r in range(4)]
            return L + [(f"v_rcp_f32 v{g+r}, v{g+r}", 8) for r in range(4)]
        def fin_ops(fb, tp):
            gs = [accr(2*fb, 2*tp+x) for x in range(2)]; us = [accr(2*fb+1, 2*tp+x) for x in range(2)]; d = us[0]; L = []
            for x in range(2):
                if fb >= PKF: L += [(f"v_pk_mul_f32 v[{gs[x]+2*h}:{gs[x]+2*h+1}], v[{gs[x]+2*h}:{gs[x]+2*h+1}], v[{us[x]+2*h}:{us[x]+2*h+1}]", 4) for h in range(2)]
                else: L += [(f"v_mul_f32 v{gs[x]+r}, v{gs[x]+r}, v{us[x]+r}", 4) for r in range(4)]
            return L + [(f"v_cvt_pk_bf16_f32 v{d}, v{gs[0]}, v{gs[0]+1}", 4), (f"v_cvt_pk_bf16_f32 v{d+2}, v{gs[1]}, v{gs[1]+1}", 4),
                  (f"v_cvt_pk_bf16_f32 v{d+1}, v{gs[0]+2}, v{gs[0]+3}", 4), (f"v_cvt_pk_bf16_f32 v{d+3}, v{gs[1]+2}, v{gs[1]+3}", 4), ("s_nop 0", 4),
                  (f"v_permlane16_swap_b32 v{d}, v{d+2}", 8), (f"v_permlane16_swap_b32 v{d+1}, v{d+3}", 8),
                  (f"buffer_store_dwordx4 v[{d}:{d+3}], v{2+tp}, s[12:15], s{96 + fb//2} offen offset:{512*(fb%2)} sc1", 4)]
        c.NRUN = 14
        twreg = lambda sl, s: 132 + 16*sl + 4*s
        def tread(j, s, rd):
            lo = twreg(j % 3, s) + 2*rd
            return lambda: a.lds(f"ds_read_b64_tr_b16 a[{lo}:{lo+1}], v13 offset:{woff(s//2, j, s%2, rd)}", ("tw", j))
        treads = lambda j: [tread(j, s, rd) for s in range(4) for rd in range(2)]
        c.tail_reads = treads(0)
        c.P_wait = lambda st: [("dma", 15)] if st == 13 else []
        marks, _ = gemm16.mainloop(a, c)
        self.info.append(roll(a, marks, "L_loop3", "s24"))
        q = []
        for fb in range(7):
            for tp in range(2):
                if fb > 0: q += [([(2*fb-1, 2*tp), (2*fb-1, 2*tp+1)], l, cst) for l, cst in fin_ops(fb-1, tp)]
            for tb in range(4): q += [([(2*fb, tb)], l, cst) for l, cst in gate_ops(fb, tb)]
        for tp in range(2): q += [([(13, 2*tp), (13, 2*tp+1)], l, cst) for l, cst in fin_ops(6, tp)]
        dq = [fn for st in range(3) for i in range(8) for fn in self.dma4(a, st, i, "p4")]
        def emit(l):
            if l.startswith("buffer_store"): a.vmem(l, ("hh", self.nhh//2)); self.nhh += 1
            else: a(l)
        self.nhh = 0
        done = {}; rq = []
        for j in range(14):
            if j + 1 < 14: rq += treads(j + 1)
            for m in range(16):
                tb, s = divmod(m, 4); s = s if tb % 2 == 0 else 3 - s
                if m == 0: a.wait(vm=[("tok", t, x, y) for t in (14, 15) for x in range(4) for y in range(2)] if j == 0 else [], lg=[("tw", j)])
                a(f"v_mfma_f32_16x16x32_bf16 {c.acc(j, tb)}, a[{twreg(j%3, s)}:{twreg(j%3, s)+3}], {c.tokreg(2*(s//2), tb, s%2)}, {c.acc(j, tb)}")
                if m % 4 == 3: done[(j, tb)] = a.mark()
                credit = o.get("strict", 16) - (4 if m == 15 else 0)
                if rq and m < 12 and (m % 3 != 2): rq.pop(0)(); credit -= 4
                if dq and m in o.get("dslots", (2, 5, 8, 13)): dq.pop(0)(); credit -= 4
                if (j, m) == (o.get("f4", 9), 12): self.progress(4, ("hh", 1)); credit = 0
                if (j, m) == (13, 12): a.vmem("buffer_load_dword v12, v8, s[16:19], s101 offen sc1", ("poll",)); credit -= 4
                while q and credit >= q[0][2] and all(n in done and a.mark() - done[n] >= 8 for n in q[0][0]):
                    _, l, cst = q.pop(0); emit(l); credit -= cst
            assert not rq
        assert not dq
        self.tr("3main")
        self.tok0 = self.o.get("k4", {}).get("tok0", 4)
        tq = [self.tok4(a, t, i//2, i%2, "p4") for t in range(self.tok0) for i in range(4)]
        k0 = int(len(q)*o.get("chk", 0.2)); nq = len(q); nt_ = len(tq)
        for k, (need, l, cst) in enumerate(q):
            gap = min(a.mark() - done[n] for n in need)
            if gap < 8: a(f"s_nop {7 - gap}"); done = {k_: -99 for k_ in done}
            if k == k0: self.check(4, ("poll",))
            while tq and k >= k0 and (nt_ - len(tq)) * (nq - k0 - 12) <= (k - k0) * nt_: self.group(tq.pop(0))
            emit(l)
        assert not tq
        self.progress(5, ("hh", 3))
        self.tr("3end")
        a.vm = [x[1:] if x[0] == "p4" else ("old", x) for x in a.vm]; a.lg = [("old", x) for x in a.lg]

    def progress(self, val, tag):
        a = self.a; assert a.vm.count(tag) == 2
        a.wait(vm=[tag] + [x for x in (("prog",), ("old", ("prog",))) if x in a.vm]); a(f"v_mov_b32 v14, {val}")
        a.vmem("buffer_store_dword v14, off, s[16:19], s100 sc1", ("prog",))
    def check(self, val, tag):
        a, t = self.a, self.tail
        a.wait(vm=[tag])
        a(f"v_cmp_gt_u32 vcc, {val}, v12\ns_nop 0\ns_cbranch_vccnz L_spin{val}\nL_rdy{val}:")
        t(f"L_spin{val}:\ns_mov_b32 s27, {SPIN}\nL_spin{val}b:\nbuffer_load_dword v12, v8, s[16:19], s101 offen sc1\ns_waitcnt vmcnt(0)\nv_cmp_gt_u32 vcc, {val}, v12\ns_sub_u32 s27, s27, 1")
        t(f"s_cbranch_vccz L_rdy{val}\ns_cmp_lg_u32 s27, 0\ns_cbranch_scc1 L_spin{val}b\ns_branch L_rdy{val}")
    R4 = [0, 32768, 131072, 65536, 98304]
    def dma4(self, a, st, i, pfx=None):
        f = []; tag = (pfx, "dma", st) if pfx else ("dma", st)
        if i == 0:
            if st == 12: f += [lambda: a(f"v_add_u32 v5, {96*2048}, v5"), lambda: a(f"v_add_u32 v7, {96*2048}, v7")]
            f += [lambda: a(f"s_add_u32 s94, s92, {((st%4)*448 + (st//4)*32)*2048}" if st < 12 else f"s_add_u32 s94, s93, {((st-12)*896 + 96)*2048}"), lambda: a("s_xor_b32 s85, s94, 128")]
        if i % 4 == 0: f.append(lambda: a(f"s_add_u32 m0, s95, {self.R4[st%5] + 1024*i}"))
        f.append(lambda: a.vmem(f"buffer_load_dwordx4 v{4+i%4}, s[40:43], {'s85' if i < 4 else 's94'} offen offset:{1024*(i%4)} lds", tag))
        return f
    def tok4(self, a, t, tb, s, pfx=None):
        f = []; tag = (pfx, "tok", t, tb, s) if pfx else ("tok", t, tb, s); r = 32 + 16*(t % 6) + 8*tb + 4*s
        if t % 2 == 0 and tb == 0 and s == 0 and t > 0: f.append(lambda: a("s_add_u32 s28, s28, 4096"))
        f.append(lambda: a.vmem(f"buffer_load_dwordx4 a[{r}:{r+3}], v{9 if tb == 0 else 15}, s[12:15], s28 offen offset:{1024*((2*t+s)%4)} sc1", tag))
        return f

    def phase4(self):
        a, t, o = self.a, self.tail, self.o.get("k4", {})
        a("L_ph4:")
        for k, r in enumerate((16, 17, 18, 19, 28, 29)): a(f"v_accvgpr_read_b32 v{r}, a{216+k}")
        a.wait(vm=[("dma", 2)]); a("s_barrier")
        c = gemm16.Cfg()
        c.TB, c.NB, c.SPS, c.NST, c.NDMA = 2, 8, 2, 14, 8
        c.PRE = c.LEAD = 3; c.TR = 6; c.TLEAD = o.get("tlead", 3); c.TOKPRE = self.tok0; c.BODY = 14
        c.LA = o.get("LA", 3); c.WR = 4; c.WPAIR = o.get("wpair", 0); c.PBACK = 4*c.LA; c.LDS2 = False; c.first_zero = True
        assert c.TLEAD <= c.TOKPRE <= c.TR
        accr = lambda j, tb: 32 + 4*(2*j+tb)
        c.acc = lambda j, tb: f"v[{accr(j,tb)}:{accr(j,tb)+3}]"
        c.tokreg = lambda sl, tb, s: f"a[{32+16*sl+8*tb+4*s}:{32+16*sl+8*tb+4*s+3}]"
        c.wreg = lambda sl, s: f"a[{8*sl+4*s}:{8*sl+4*s+3}]"
        c.dma, c.tok = self.dma4, self.tok4
        def wread(a, st, sis, j, s, rd, sl, tag):
            lo = 8*sl + 4*s + 2*rd
            a.lds(f"ds_read_b64_tr_b16 a[{lo}:{lo+1}], v{16+j%4} offset:{(self.R4[st%5] & 32768) + (2*sis + s)*8192 + (j//4)*4096 + rd*2048}", tag)
        c.wread = wread
        def on_P(a, st):
            d = (self.R4[(st+1)%5] & ~32768) - (self.R4[st%5] & ~32768)
            if d:
                for sg in range(4): a(f"v_add_u32 v{16+sg}, {d & 0xffffffff}, v{16+sg}")
            self.tr(f"4P{st}", 4)
        c.on_P = on_P
        c.first_tok = lambda a: self.tr("4start")
        c.tokpos = lambda i: 1 + 8*i
        c.pos_by_stage = True
        c.tokpos = lambda i, st: 1 + 8*i
        c.dmapos = lambda i, st: 6*i if st == 0 else o.get('dp', (-8, 7))[0] + o.get('dp', (-8, 7))[1]*i
        V = lambda s, tag: (lambda: a.vmem(s, tag))
        X = lambda s: (lambda: a(s))
        SG = o.get("sgl", 1)
        setup = Asm(); setup(self.rowmajor24(24, 26)); psrd(setup, 8, P_OUT, 4<<20); setup("s_xor_b32 s48, s60, 4096\ns_xor_b32 s49, s61, 4096\ns_xor_b32 s50, s62, 4096\ns_xor_b32 s51, s63, 4096")
        def extra(st):
            ex = []; u = st + 3 + SG
            if SG and u < 14:
                off = ((u%4)*448 + (u//4)*32)*2048 if u < 12 else ((u-12)*896 + 96)*2048
                ex += [(46, X(f"s_add_u32 s53, s55, {off}")), (46, V(f"buffer_load_dword a250, v{28 if u < 12 else 29}, s[40:43], s53 offen", ("sg",)))]
            if st == o.get("f6", 2): ex += [(40, lambda: self.progress(6, ("old", ("hh", 6))))]
            for val, t1 in ((5, 8), (6, 16)):
                g = (t1 - c.TLEAD)*32
                pl = o.get("pl", (60, 90))[val - 5]
                if st == (g - pl)//64: ex += [((g - pl) % 64, V("buffer_load_dword v12, v8, s[16:19], s101 offen sc1", ("poll", val)))]
                if st == g//64: ex += [(g % 64, lambda val=val: self.check(val, ("poll", val)))]
            if st == 11: ex += [(k, X(l)) for k, l in enumerate(setup.lines)]
            return ex
        c.extra = extra
        c.NRUN = 13
        order = [(sis, j) for h in range(2) for j in range(4*h, 4*h+4) for sis in range(2)]
        nb0 = 13*16
        treads = lambda k: [(lambda s=s, rd=rd: wread(a, 13, order[k][0], order[k][1], s, rd, (nb0 + k) % 4, ("tw", k))) for s in range(2) for rd in range(2)]
        c.tail_reads = [f for k in range(c.LA) for f in treads(k)]
        gemm16.mainloop(a, c)
        SX, RX = 96, 112
        sq = []
        for j in range(4):
            for d in range(4): sq.append((j, f"v_cvt_pk_bf16_f32 v{SX+4*j+d}, v{32+8*j+2*d}, v{33+8*j+2*d}"))
            sq.append((j, f"buffer_store_dwordx4 v[{SX+4*j}:{SX+4*j+3}], v9, s[16:19], s{60+j} offen sc1"))
        done = {}
        for k, (sis, j) in enumerate(order):
            rq = treads(k + c.LA) if k + c.LA < 16 else []
            for m in range(4):
                tb = m // 2; s = (m % 2) ^ tb
                if m == 0: a.wait(vm=[("tok", 26 + sis, x, y) for x in range(2) for y in range(2)], lg=[("tw", k)])
                a(f"v_mfma_f32_16x16x32_bf16 {c.acc(j, tb)}, {c.wreg((nb0 + k) % 4, s)}, {c.tokreg((26 + sis) % 6, tb, s)}, {c.acc(j, tb)}")
                if sis == 1 and m == 3: done[j] = a.mark()
                if rq: rq.pop(0)()
                if sq and sq[0][0] in done and a.mark() - done[sq[0][0]] >= 8: a(sq.pop(0)[1])
        assert not sq
        self.tr("4main")
        recv = lambda: [a(f"buffer_load_dwordx4 v[{RX+4*j}:{RX+4*j+3}], v9, s[16:19], s{48+j} offen sc1") for j in range(4)]
        pk = lambda r: f"v[{r}:{r+1}]"
        R0 = o.get("r0", 16)
        for r in range(0, 32, 2):
            if r == R0: recv()
            a(f"v_accvgpr_read_b32 v20, a{HSAVE+r}\nv_accvgpr_read_b32 v21, a{HSAVE+r+1}\nv_pk_add_f32 {pk(64+r)}, {pk(64+r)}, v[20:21]")
        if R0 >= 32: recv()
        a(f"s_waitcnt vmcnt(0)\ns_mov_b32 s27, {SPIN}\nL_chk4:")
        umax(a, 20, range(RX, RX + 16))
        a("v_cmp_eq_u32 vcc, -1, v20\ns_sub_u32 s27, s27, 1\ns_cbranch_vccnz L_again4\nL_ok4:")
        keep, a.lines = a.lines, []
        a("L_again4:\ns_cmp_eq_u32 s27, 0\ns_cbranch_scc1 L_ok4"); recv(); a("s_waitcnt vmcnt(0)\ns_branch L_chk4")
        t.lines += a.lines; a.lines = keep
        self.tr("4got")
        for tb in range(2):
            for u in range(2):
                x = SX + 8*tb + 4*u
                for d in range(4):
                    r = accr(4 + 2*u + d//2, tb) + 2*(d % 2); p = RX + (r - 64)//2
                    a(f"v_lshlrev_b32 v20, 16, v{p}\nv_and_b32 v21, 0xffff0000, v{p}\nv_pk_add_f32 {pk(r)}, {pk(r)}, v[20:21]\nv_cvt_pk_bf16_f32 v{x+d}, v{r}, v{r+1}")
                a(f"s_nop 1\nv_permlane16_swap_b32 v{x}, v{x+2}\nv_permlane16_swap_b32 v{x+1}, v{x+3}")
                a(f"buffer_store_dwordx4 v[{x}:{x+3}], v{24+tb}, s[8:11], s86 offen offset:{64*u} {o.get('stfl', 'sc1')}")
        self.tr("4end")

def roll2(a, marks, label, sreg):
    blocks = [a.lines[marks[i]:marks[i+1]] for i in range(len(marks)-1)]
    out = a.lines[:marks[0]]; i = 0; info = []
    while i < len(blocks):
        j = i
        while j + 1 < len(blocks) and blocks[j+1] == blocks[i]: j += 1
        n = j - i + 1
        if n > 1: out += [f"s_mov_b32 {sreg}, {n}", f"{label}_{i}:"] + blocks[i] + [f"s_sub_u32 {sreg}, {sreg}, 1", f"s_cmp_lg_u32 {sreg}, 0", f"s_cbranch_scc1 {label}_{i}"]
        else: out += blocks[i]
        info.append(n); i = j + 1
    a.lines = out + a.lines[marks[-1]:]
    return info

def sizes(lines):
    import subprocess, re, tempfile, os
    stub = sorted({m for l in lines for m in re.findall(r"L_visit\d+", l)})
    d = tempfile.mkdtemp()
    open(d + "/x.s", "w").write('.amdgcn_target "amdgcn-amd-amdhsa--gfx950"\n.text\n' + "\n".join(l for l in lines if not l.startswith(".p2align")) + "\n" + "".join(x + ":\n" for x in stub) + "L_code_end:\n")
    subprocess.run(["clang", "-x", "assembler", "-target", "amdgcn-amd-amdhsa", "-mcpu=gfx950", "-c", d + "/x.s", "-o", d + "/x.o"], check=True)
    dis = subprocess.run(["llvm-objdump", "-d", "-z", "--mcpu=gfx950", d + "/x.o"], capture_output=True, text=True).stdout
    sz = [4*len(m.group(1).split()) for m in re.finditer(r"// [0-9A-F]{12}: ([0-9A-F ]+)", dis)]
    out = []; k = 0
    for l in lines:
        if l.endswith(":") or l.startswith("."): out.append(0)
        else: out.append(sz[k]); k += 1
    assert k == len(sz)
    return out
def page_stubs(g):
    a, t = g.a, g.tail
    sz = sizes(a.lines + t.lines)
    out = []; off = None; page = 0; pos = {}; stubs = []
    for i, l in enumerate(a.lines):
        if l == "L_go:": off = 0
        if l.endswith(":"): pos[l[:-1]] = len(out)
        if off is not None and off >= 4096*page and sz[i] and l != "s_endpgm" and not a.lines[i-1].startswith("L_pc"):
            assert off < 4096*page + 56
            stubs.append(len(out)); out += [f"L_pg{page}:", "s_cbranch_execz L_vret"]; off += 4; page += 1
        out.append(l)
        if off is not None: off += sz[i]
    a.lines = out
    near = Asm(); near("L_vret:\ns_setpc_b64 s[98:99]")
    for k, (first, last, waves) in enumerate(g.visits):
        w = near if k == 0 else t
        pgs = [p for p, x in enumerate(stubs) if pos[first] <= x < pos[last]]
        w(f"L_visit{k}:\ns_mov_b64 exec, 0")
        for n, wv in enumerate(waves):
            w(f"s_cmp_lg_u32 s20, {wv}\ns_cbranch_scc1 L_visit{k}_{n}")
            for p in pgs[n::len(waves)]: w(f"s_call_b64 s[98:99], L_pg{p}")
            w(f"L_visit{k}_{n}:")
        w("s_mov_b64 exec, -1\ns_setpc_b64 s[96:97]")
        g.info.append(pgs)
    k = a.lines.index(".p2align 12"); a.lines[k:k] = near.lines

def gen(o={}, name=NAME + "_kernel", aslist=False):
    g = Gen(o); a = g.a
    a("s_cmp_ge_u32 s2, 256\ns_cbranch_scc1 L_done")
    if o.get("trace"): a("s_mov_b32 s29, 0\nv_accvgpr_write_b32 a252, 0\nv_accvgpr_write_b32 a253, 0"); g.tr("start")
    g.phase1(); g.phase2(); g.phase3(); g.phase4()
    if o.get("trace"):
        ws_srd(a, 56, WS_TRACE, 1<<20)
        a("s_lshl_b32 s60, s2, 11\ns_lshl_b32 s61, s20, 9\ns_add_u32 s60, s60, s61\nv_lshlrev_b32 v16, 3, v0\nbuffer_store_dwordx2 a[252:253], v16, s[56:59], s60 offen")
    a("L_done:\ns_endpgm")
    if g.visits: page_stubs(g)
    ll = f"; @launch {'kernel=' + name + ' ' if aslist else ''}grid=(256,1,1) block=(256,1,1) lds=163840\n"
    txt = ll + '.amdgcn_target "amdgcn-amd-amdhsa--gfx950"\n.text\n' + kernel_head(name) + a.text() + g.tail.text() + 'L_code_end:\n.section .rodata,"a"\n' + kernel_desc(name, 512, 256)
    return txt, g
def header():
    ref = open(f"cdna_kernels/{NAME}.s.ref").read().split("\n")
    return "\n".join(l for l in ref if l.startswith(";") and "@launch" not in l and "Override" not in l and "grid=ceil" not in l) + "\n"
if __name__ == "__main__":
    import sys
    txt, g = gen({"trace": int(sys.argv[2]) if len(sys.argv) > 2 else 0})
    open(sys.argv[1] if len(sys.argv) > 1 else "mega.s", "w").write(header() + txt)
    print(g.info, g.names)
```

```python
from asmlib import *

class Cfg:
    tok_lds = False
    drain_at_P = False
    CAP = 2
    first_zero = False
    def swap(self, j): return False
    def on_P(self, a, st): pass
    def prologue_mid(self, a): pass
    def extra(self, st): return []
    def fixed(self, st): return []
    def P_wait(self, st): return []
    def idle(self, st): return []
    def slots(self, st): return []
    def post_block(self, a, st, sis, j, sl): pass
    def prologue_00(self, a): pass
    def first_P(self, a): pass
    def prologue_0(self, a): pass
    own_stage1 = None
    own_stage0 = False
    unchain0 = False
    fine0 = False
    acc_at = None
    zero_steps = (0,)
    RR = False
    lds_first = False
    zero_to = 99
    late_vq = False
    def first_use(self, a, j, tb): pass
    skip_dma = ()
    dma_at = None
    post = None
    idle_spill = False
    WPAIR = 0
    TLEAD = None
    TOKPRE = 0
    TOK0 = None
    LEAD = 2
    PRE = 0
    def barrier_at(self, st): return True
    def pre_P(self, a, st): pass
    def slack(self, st): return 0
    def early(self, j): return 0
    def drain_at(self, st): return self.drain_at_P
    def first_tok(self, a): pass
    pos_by_stage = False
    lazy1 = None
    NRUN = None
    tail_reads = ()
    tokwait = None

def mainloop(a, c, last_stage=None):
    TB, NB, SPS, NST = c.TB, c.NB, c.SPS, c.NST
    G = 2 * TB
    gps = NB * G
    gpst = SPS * gps
    nsteps = SPS * NST
    NRUN = c.NRUN or NST
    nblk = SPS * NRUN * NB
    Pg = lambda st: (st + 1) * gpst - c.PBACK if st >= 0 else -10**9
    lq = []
    def mk_w(n, s, rd):
        step, j = divmod(n, NB); st, sis = divmod(step, SPS)
        return lambda: c.wread(a, st, sis, j, s, rd, n % c.WR, ("w", n, s))
    def mk_tl(t, tb, s):
        st, sis = divmod(t, SPS)
        return lambda: c.tokread(a, st, sis, tb, s, t % 2, ("tok", t, tb, s))
    for n in range(nblk):
        step, j = divmod(n, NB); st = step // SPS
        e = max((n - c.LA) * G - c.early(j), Pg(st - 1))
        assert (n - c.LA) * G - c.early(j) >= (n - c.WR + 1) * G
        ws = [(e, mk_w(n, s, rd)) for s in range(2) for rd in range(2)]
        if c.tok_lds and j == 0:
            et = max((step - 1) * gps + c.tok_early, Pg(st - 1))
            tl = [(et, mk_tl(step, tb, (s ^ (tb % 2)))) for tb in range(TB) for s in range(2)]
            if c.post: held = (ws, tl)
            else: lq += ws[:2] + tl[:1] + ws[2:] + tl[1:]
        elif c.tok_lds and j == 1 and c.post:
            w_, t_ = held[0] + ws, list(held[1])
            for d, kind in c.post: lq.append((Pg(st - 1) + d, (w_ if kind == 'w' else t_).pop(0)[1]))
            assert not w_ and not t_
        else: lq += ws
    lq += [(Pg(NRUN - 1), fn) for fn in c.tail_reads]
    vq = []
    for st in range(NRUN):
        ops = []
        if st == 0 and c.lazy1:
            for i in range(c.NDMA):
                for fn in c.dma(a, 1, i): ops.append((c.lazy1(i), len(ops), fn))
        if c.PRE <= st + c.LEAD < NST and st + c.LEAD not in c.skip_dma:
            for i in range(c.NDMA):
                g = st * gpst + (c.dmapos(i, st) if c.pos_by_stage else c.dmapos(i))
                if c.dma_at:
                    g = c.dma_at(st + c.LEAD, i); assert Pg(st - 1) <= g < Pg(st + c.LEAD - 1), (st, i, g)
                else: assert Pg(st - 1) <= g < Pg(st), (st, i, g)
                for k, fn in enumerate(c.dma(a, st + c.LEAD, i)): ops.append((g, len(ops), fn))
        if st == 0 and c.TOK0 is not None:
            for t in range(c.TOK0, c.TLEAD or c.TR - 1):
                for i in range(G):
                    for fn in c.tok(a, t, i // 2, i % 2): ops.append((-1, len(ops), fn))
        if not c.tok_lds:
            for sis in range(SPS):
                t0 = st * SPS + sis; t = t0 + (c.TLEAD or c.TR - 1)
                if c.TOKPRE <= t < nsteps:
                    for i in range(G):
                        tb, s = divmod(i, 2)
                        g = t0 * gps + (c.tokpos(i, st) if c.pos_by_stage else c.tokpos(i))
                        for fn in c.tok(a, t, tb, s): ops.append((g, len(ops), fn))
        for g, fn in c.extra(st): ops.append((st * gpst + g, len(ops), fn))
        vq += [(g, st, k, fn) for g, k, fn in ops]
    vq.sort(key=lambda x: x[:3])
    vq = [(g, fn) for g, _, _, fn in vq]
    iq = [(st * gpst + g, fn) for st in range(NRUN) for g, fn in c.idle(st)]
    sq = [(st * gpst + e[0],) + tuple(e[1:]) for st in range(NRUN) for e in c.slots(st)]; sq_last = -99
    fx = {}
    for st in range(NRUN):
        for g, fn in c.fixed(st): fx.setdefault(st * gpst + g, []).append(fn)
    def run(fns):
        for k, fn in enumerate(fns):
            fn()
    def dma_all(st):
        for i in range(c.NDMA):
            fns = c.dma(a, st, i)
            for k, fn in enumerate(fns):
                if k == len(fns) - 1 and k > 0 and "m0" in a.lines[-1]: a("s_nop 0")
                fn()
    T0 = 0 if c.tok_lds or c.TOKPRE else (c.TR - 1 if c.TOK0 is None else c.TOK0)
    c.prologue_00(a)
    assert c.PRE == 0 and c.LEAD == 2 or c.PRE >= c.LEAD or (c.PRE == 1 and c.lazy1)
    if not c.PRE and not c.own_stage0: dma_all(0)
    if not c.tok_lds:
        for t in range(min(SPS, T0)):
            for tb in range(TB):
                for s in range(2): run(c.tok(a, t, tb, s))
    c.prologue_0(a)
    if c.own_stage1: c.own_stage1(a, [c.dma(a, 1, i) for i in range(c.NDMA)])
    elif not c.lazy1 and not c.PRE: dma_all(1)
    if not c.tok_lds:
        for t in range(SPS, T0):
            for tb in range(TB):
                for s in range(2): run(c.tok(a, t, tb, s))
    c.prologue_mid(a)
    if not c.PRE:
        a.wait(vm=[("dma", 0)])
        a("s_barrier")
    c.first_P(a)
    li = 0; vi = 0
    while li < len(lq) and lq[li][0] < 0: lq[li][1](); li += 1
    marks = []
    stats = {"over": 0}
    total = nblk * G
    for g in range(total):
        n, m = divmod(g, G); step, j = divmod(n, NB); st = step // SPS
        if g % (gpst * c.BODY) == 0: marks.append(a.mark())
        if g == Pg(st) and st + 1 < NST:
            assert li == len(lq) or lq[li][0] >= g, 'reads of the current stage still pending at P'
            c.pre_P(a, st)
            if c.barrier_at(st):
                nxt = st + 1
                while nxt + 1 < NST and not c.barrier_at(nxt): nxt += 1
                need = [("dma", x) for x in range(st + 1, nxt + 1) if x >= c.PRE]
                for t_ in need: assert a.vm.count(t_) == c.NDMA, t_
                if c.drain_at(st):
                    assert lq[li][0] >= g, "reads of the current stage still pending at P"
                    a.wait(vm=need + c.P_wait(st), lg=[a.lg[-1]])
                else: a.wait(vm=need + c.P_wait(st))
                a("s_barrier")
            c.on_P(a, st)
        tb = m // 2; s = (m % 2) ^ (tb % 2); first = m % 2 == 0
        if c.unchain0 and step == 0 and j > 0: tb = m % TB; s = m // TB; first = s == 0
        need_w = [("w", n, 0), ("w", n, 1)] if m == 0 else []
        if c.WPAIR and m == 0 and n % 2 == 0 and n + 1 < nblk: need_w += [("w", n + 1, 0), ("w", n + 1, 1)]
        need_t = [("tok", step, tb, s)] if j == 0 else []
        if c.tok_lds and c.tokwait is not None and j == 0:
            need_t = [("tok", step, x, y) for x in c.tokwait.get(m, []) for y in range(2)]
        if not c.tok_lds and need_t: need_t = [("tok", step, x, y) for x in (range(TB) if step or not c.fine0 else [tb]) for y in range(2)]
        for tag in need_w + (need_t if c.tok_lds else []):
            while tag not in a.lg or (tag[0] == "w" and a.lg.count(tag) < 2):
                assert lq[li][0] <= g, "deadline before earliest"
                lq[li][1](); li += 1; stats["over"] += 1
        if c.tok_lds: a.wait(lg=need_w + need_t)
        else: a.wait(vm=need_t, lg=need_w)
        if g == 0: c.first_tok(a)
        A_, B_ = c.wreg(n % c.WR, s), c.tokreg(step % (2 if c.tok_lds else c.TR), tb, s)
        if c.swap(j): A_, B_ = B_, A_
        D_ = c.acc_at(st, j, tb) if c.acc_at else c.acc(j, tb)
        C_ = "0" if (c.first_zero and step in c.zero_steps and first and j < c.zero_to) else D_
        if step == 0: c.first_use(a, j, tb)
        a(f"v_mfma_f32_16x16x32_bf16 {D_}, {A_}, {B_}, {C_}")
        cap = c.CAP - (1 if (m == G - 1 and not (c.WPAIR and n % 2 == 0)) else 0)
        used = 0
        for fn in fx.get(g, []): fn(); used += 1
        if li < len(lq) and lq[li][0] <= g and (used < cap or c.lds_first):
            lq[li][1](); li += 1; used += 1
        if c.RR and li < len(lq) and lq[li][0] <= g and (used < cap or c.lds_first):
            lq[li][1](); li += 1; used += 1
        if vi < len(vq) and vq[vi][0] <= g and used < cap:
            vq[vi][1](); vi += 1; used += 1
        if used == 0 and iq and iq[0][0] <= g: iq.pop(0)[1]()
        while sq and sq[0][0] <= g and used + sq[0][2] <= cap + c.slack(st) and a.mark() - sq_last >= sq[0][3]:
            e = sq.pop(0); e[1](); used += e[2]; sq_last = a.mark()
        if m == G - 1: c.post_block(a, st, step % SPS, j, n % c.WR)
        if c.LDS2 and li < len(lq) and lq[li][0] <= g and used < cap:
            lq[li][1](); li += 1; used += 1
    stats['spill'] = len(sq)
    for e in sq:
        if e[3]: a(f's_nop {e[3]-1}')
        e[1]()
    assert not iq, len(iq)
    stats['vq'] = [(g - total, fn) for g, fn in vq[vi:]]
    assert li == len(lq) and (vi == len(vq) or c.late_vq), (li, len(lq), vi, len(vq))
    marks.append(a.mark())
    return marks, stats
```

```python
from asmlib import *
import gemm16
from kk1 import rs4, bc4, rowsum16, allreduce64, umax
NAME = "sequential_preLN__linear_kernel_hedgehog__glu_gated_glu__prompt"
WS_O, WS_HC, WS_HH, WS_G = 0, 4<<20, 8<<20, 24<<20
G_SS, G_ST1, G_FL, G_F2, G_CS, G_MD, G_XS, G_XB, G_SIZE = 0, 128<<10, 160<<10, 192<<10, 224<<10, 480<<10, 8<<20, 4<<20, 12<<20
def place(r, t='s27'): return f's_and_b32 {t}, {r}, 0xffffe000\ns_add_u32 {r}, {r}, {t}\ns_lshr_b32 {t}, {r}, 8\ns_and_b32 {t}, {t}, 8192\ns_or_b32 {r}, {r}, {t}\ns_xor_b32 {r}, {r}, s30\n'
XS, XS_Z, XS_W, XS_T, XS_END = 16512, 4096, 4608, 4736, 5248
WS_TRACE = 60<<20
SIDE = 32<<20
SPIN = 0x20000
LOG2E = "0x3fb8aa3b"
SLOT = 40960; L_WPHI = 3*SLOT; L_PH = 0; L_VB = 32768
B2 = [32768 + 16384*s_ for s_ in range(8)]
HSAVE = 184
P_X, P_WQKV, P_WPHI, P_WO, P_WG, P_WU, P_WD, P_OUT = 64, 66, 68, 70, 72, 74, 76, 78

def psrd(a, r, p, n): srd(a, r, f"s{p}", f"s{p+1}", n)
def ws_srd(a, r, off, n):
    a(f"s_add_u32 s{r}, s32, {off}\ns_addc_u32 s{r+1}, s33, 0\ns_mov_b32 s{r+2}, {n}\ns_mov_b32 s{r+3}, 0x20000")

class Gen:
    def __init__(self, o):
        self.o = o; self.a = Asm(); self.tail = Asm(); self.names = []; self.info = []; self.visits = []
    def tr(self, name, lvl=1):
        if not self.o.get("trace", 0) or (lvl > 1 and lvl != self.o["trace"]): return
        a = self.a; self.names.append(name)
        a("s_memrealtime s[88:89]\ns_memtime s[90:91]"); a.wait_all(vm=False)
        a("s_lshl_b64 exec, 1, s29\nv_accvgpr_write_b32 a252, s88\nv_accvgpr_write_b32 a253, s90\ns_mov_b64 exec, -1\ns_add_u32 s29, s29, 1")
    def weave(self, body, ops, skip=0):
        a = self.a; m = a.mark(); nv = len(a.vm); body(); assert len(a.vm) == nv
        work = a.lines[m:]; a.lines = a.lines[:m]; n = len(ops); k = 0
        for i, l in enumerate(work):
            while k < n and i >= skip + k*(len(work) - skip)//n:
                self.group(ops[k]); k += 1
            a.lines.append(l)
        assert k == n
    def splice(self, body, at):
        a = self.a; m = a.mark(); nv = len(a.vm); body(); assert len(a.vm) == nv
        work = a.lines[m:]; a.lines = a.lines[:m]; at = sorted(at, key=lambda x: x[0])
        for i, l in enumerate(work):
            while at and at[0][0] <= i: at.pop(0)[1]()
            a.lines.append(l)
        for _, fn in at: fn()
        return len(work)
    def group(self, fns):
        for k, fn in enumerate(fns):
            if k == len(fns) - 1 and k > 0 and "m0" in self.a.lines[-1]: self.a("s_nop 0")
            fn()
    def signal(self, val, tag):
        a = self.a
        a(f"v_mov_b32 v30, {val}\ns_sub_u32 s27, s100, 16"); a.wait(vm=[tag]); a("s_barrier")
        a(f"s_cmp_lg_u32 s20, 0\ns_cbranch_scc1 L_sig{val}\nbuffer_store_dword v30, off, s[16:19], s27 sc1\nL_sig{val}:")
        self.tr(f"{val}sig", 6)
    def await_(self, val):
        a = self.a
        self.tr(f"{val}rdy", 6)
        a(f"s_cmp_lg_u32 s20, 0\ns_cbranch_scc1 L_got{val}\ns_mov_b32 s34, {G_F2}\ns_add_u32 s34, s34, s30")
        sl0, sl = self.o.get("sleep", (0, 0))
        if sl0: a(f"s_sleep {sl0}")
        a(f"s_mov_b32 s27, {SPIN}\nL_poll{val}:\n" + (f"s_sleep {sl}\n" if sl else "") + f"buffer_load_dword v30, v31, s[16:19], s34 offen sc1\ns_sub_u32 s27, s27, 1\ns_cmp_eq_u32 s27, 0\ns_cbranch_scc1 L_got{val}\ns_waitcnt vmcnt(0)")
        a(f"v_cmp_gt_u32 vcc, {val}, v30\ns_nop 0\ns_cbranch_vccnz L_poll{val}\nL_got{val}:")
        a.wait_all(); a.reset(); a("s_barrier")
    def visit(self, first, last, waves):
        if not self.o.get("visit", 1): return
        k = len(self.visits); self.visits.append((first, last, waves))
        self.a(f"s_call_b64 s[96:97], L_visit{k}")
    def code_touch(self, uid, first, last, sr, vr, per):
        c = Asm()
        c(f"s_getpc_b64 s[{sr}:{sr+1}]\nL_pc_{uid}:\ns_add_u32 s{sr}, s{sr}, {first}-L_pc_{uid}\ns_addc_u32 s{sr+1}, s{sr+1}, 0")
        c(f"s_lshr_b32 s{sr+2}, s2, 3\ns_lshl_b32 s{sr+2}, s{sr+2}, 2\ns_add_u32 s{sr+2}, s{sr+2}, s20\ns_mul_i32 s{sr+2}, s{sr+2}, {per}")
        c(f"v_min_u32 v{vr}, {per-1}, v0\nv_add_u32 v{vr}, s{sr+2}, v{vr}\nv_lshlrev_b32 v{vr}, 7, v{vr}\nv_min_u32 v{vr}, {last}-{first}-4, v{vr}")
        c(f"v_mov_b32 v{vr+1}, s{sr+1}\nv_add_co_u32 v{vr}, vcc, s{sr}, v{vr}\ns_nop 1\nv_addc_co_u32 v{vr+1}, vcc, 0, v{vr+1}, vcc")
        a = self.a; X = lambda s: (lambda: a(s))
        return [X("\n".join(c.lines[:4]))] + [X(l) for l in c.lines[4:-3]] + [X("\n".join(c.lines[-3:])), lambda: a.vmem(f"global_load_dword a250, v[{vr}:{vr+1}], off", ("ct",))]

    def ids24(self):
        return ("s_bfe_u32 s80, s2, 0x20001\ns_lshl_b32 s80, s80, 2\ns_bfe_u32 s27, s2, 0x20003\ns_add_u32 s80, s80, s27\n"
                "s_and_b32 s81, s2, 1\ns_lshr_b32 s27, s2, 5\ns_lshl_b32 s27, s27, 1\ns_add_u32 s81, s81, s27\n"
                "s_lshl_b32 s82, s80, 3\ns_lshl_b32 s27, s20, 1\ns_add_u32 s82, s82, s27\n"
                "s_lshl_b32 s83, s20, 16\ns_lshl_b32 s27, s81, 7\ns_add_u32 s83, s83, s27\ns_lshl_b32 s84, s20, 12")
    def xb(self, r):
        return (f"s_lshr_b32 {r}, s2, 3\ns_lshl_b32 {r}, {r}, 2\ns_and_b32 s27, s2, 3\ns_add_u32 {r}, {r}, s27\ns_lshl_b32 {r}, {r}, 2\ns_add_u32 {r}, {r}, s20\ns_lshl_b32 {r}, {r}, 10\n" + place(r) + f"s_add_u32 {r}, {r}, {G_XB}")
    def voff24(self, v, natural):
        t = f"v_bfe_u32 v{v+1}, v0, 4, 2\nv_lshlrev_b32 v{v+1}, 1, v{v+1}\nv_and_b32 v{v+2}, 7, v0\nv_xor_b32 v{v+1}, v{v+1}, v{v+2}\nv_lshlrev_b32 v{v+1}, 4, v{v+1}\n"
        if natural: t += f"v_lshrrev_b32 v{v+2}, 5, v0\nv_lshlrev_b32 v{v+2}, 3, v{v+2}\nv_bfe_u32 v{v+3}, v0, 3, 2\nv_add_u32 v{v+2}, v{v+2}, v{v+3}\n"
        else: t += f"v_lshrrev_b32 v{v+2}, 3, v0\n"
        t += f"v_lshl_add_u32 v{v}, v{v+2}, 11, v{v+1}\n"
        for i in range(1, 4): t += f"v_add_u32 v{v+i}, {((16*(i & 1) + 4*(i >> 1)) if natural else 8*i)*2048 - 1024*i}, v{v}\n"
        return t
    def pre24(self, st, i, base, v, sr):
        a = self.a; f = []
        if i == 0: f += [lambda: a(f"s_add_u32 s85, s83, {st*262144}"), lambda: a(f"s_add_u32 m0, s84, {base}")]
        f.append(lambda: a.vmem(f"buffer_load_dwordx4 v{v+i}, s[{sr}:{sr+3}], s85 offen offset:{1024*i} lds", ("pre",)))
        return f
    def rdaddr24(self, v):
        t = f"v_lshrrev_b32 v{v+1}, 2, v0\nv_lshlrev_b32 v{v+1}, 7, v{v+1}\nv_bfe_u32 v{v+2}, v0, 3, 2\nv_lshlrev_b32 v{v+2}, 5, v{v+2}\nv_and_b32 v{v+3}, 3, v0\nv_lshlrev_b32 v{v+3}, 3, v{v+3}\nv_add3_u32 v{v}, v{v+1}, v{v+2}, v{v+3}\n"
        for sg in range(1, 4): t += f"v_xor_b32 v{v+sg}, {32*sg}, v{v}\n"
        return t
    def rowmajor24(self, v, t0):
        return (f"v_and_b32 v{v}, 15, v0\nv_lshlrev_b32 v{v}, 11, v{v}\nv_bfe_u32 v{v+1}, v0, 4, 1\nv_lshlrev_b32 v{v+1}, 5, v{v+1}\nv_lshrrev_b32 v{t0}, 5, v0\nv_lshlrev_b32 v{t0}, 4, v{t0}\n"
                f"v_add3_u32 v{v}, v{v}, v{v+1}, v{t0}\nv_add_u32 v{v+1}, 32768, v{v}\ns_lshl_b32 s86, s82, 15\ns_lshl_b32 s27, s81, 7\ns_add_u32 s86, s86, s27")

    def phase1(self):
        a, t, o = self.a, self.tail, self.o.get("k1", {})
        NPH = o.get("NPH", 4)
        a("s_load_dwordx8 s[64:71], s[0:1], 0\ns_load_dwordx2 s[32:33], s[0:1], 80\ns_load_dwordx8 s[72:79], s[0:1], 40\ns_load_dwordx2 s[30:31], s[0:1], 72")
        if o.get("ct0", 1):
            a("s_getpc_b64 s[56:57]\nL_pc0:\nv_lshlrev_b32 v24, 4, v0\nv_mov_b32 v25, s57\nv_add_co_u32 v24, vcc, s56, v24\ns_lshr_b32 s58, s2, 3\ns_lshl_b32 s58, s58, 11\nv_addc_co_u32 v25, vcc, 0, v25, vcc")
            a.vmem("global_load_dword a250, v[24:25], off", ("ct0",))
            a("v_lshl_add_u32 v24, v0, 3, s58\nv_min_u32 v24, L_code_end-L_go-4, v24\nv_add_u32 v24, L_go-L_pc0, v24\nv_mov_b32 v25, s57\nv_add_co_u32 v24, vcc, s56, v24\ns_nop 1\nv_addc_co_u32 v25, vcc, 0, v25, vcc")
            a.vmem("global_load_dword a249, v[24:25], off", ("ct0",))
        a("v_lshrrev_b32 v1, 6, v0\nv_lshlrev_b32 v31, 2, v0\nv_and_b32 v0, 63, v0\nv_readfirstlane_b32 s20, v1")
        a("s_and_b32 s26, s2, 4\ns_lshl_b32 s26, s26, 1\ns_bfe_u32 s27, s2, 0x30003\ns_add_u32 s26, s26, s27")
        a("s_and_b32 s25, s2, 3\ns_lshl_b32 s25, s25, 2\ns_lshr_b32 s27, s2, 6\ns_add_u32 s25, s25, s27")
        a("s_and_b32 s46, s20, 1\ns_lshr_b32 s47, s20, 1\nv_lshlrev_b32 v30, 4, v0")
        a("s_lshl_b32 s51, s26, 6\ns_lshl_b32 s27, s25, 2\ns_add_u32 s51, s51, s27\ns_add_u32 s51, s51, s20\ns_lshl_b32 s34, s51, 12")
        sh = {2: 3, 4: 2, 8: 1, 16: 0}[NPH]
        HI = o.get("rot", "lo") == "hi"
        a((f"s_lshr_b32 s21, s26, {sh}" if HI else f"s_and_b32 s21, s26, {NPH-1}") + f"\ns_lshl_b32 s21, s21, {sh+7}\ns_mul_i32 s22, s21, 3072")
        a("s_lshl_b32 s35, s26, 18\ns_lshl_b32 s27, s20, 16\ns_add_u32 s35, s35, s27")
        a("v_lshrrev_b32 v16, 4, v0\nv_and_b32 v17, 7, v0\nv_xor_b32 v16, v16, v17\nv_lshl_add_u32 v16, v16, 4, s35\nv_lshrrev_b32 v18, 3, v0")
        a("v_lshl_add_u32 v2, v18, 11, v16\nv_xor_b32 v3, 64, v2")
        a(f"v_add_u32 v4, {16*2048 - 2048}, v2\nv_add_u32 v5, {24*2048 - 3072}, v3\nv_add_u32 v3, {8*2048 - 1024}, v3")
        a("s_lshl_b32 s27, s47, 5\ns_lshl_b32 s35, s46, 2\ns_add_u32 s35, s35, s27\ns_mul_i32 s35, s35, 6144\ns_lshl_b32 s27, s25, 7\ns_add_u32 s35, s35, s27")
        a("v_lshrrev_b32 v16, 4, v0\nv_lshlrev_b32 v16, 1, v16\nv_xor_b32 v16, v16, v17\nv_lshl_add_u32 v16, v16, 4, s35")
        a("v_lshrrev_b32 v18, 5, v0\nv_lshlrev_b32 v18, 3, v18\nv_bfe_u32 v19, v0, 3, 2\nv_add_u32 v18, v18, v19\nv_mul_u32_u24 v18, 6144, v18\nv_add_u32 v6, v18, v16")
        wimm = lambda part, i: (part*2048 + i*1024) % 4096
        for part in range(3):
            for i in range(2):
                if part or i: a(f"v_add_u32 v{6+2*part+i}, {16*i*6144 + part*2048 - wimm(part, i)}, v6")
        a("s_mul_i32 s45, s20, 10240\ns_mov_b32 s23, s45\ns_mov_b32 s44, 0")
        a("s_waitcnt lgkmcnt(0)")
        if self.o.get("wsoff"): a(f"s_add_u32 s32, s32, {self.o['wsoff'] << 20}\ns_addc_u32 s33, s33, 0")
        if self.o.get("trace1"): self.tr("karg")
        psrd(a, 8, P_X, 4<<20); psrd(a, 4, P_WQKV, 1024*6144); ws_srd(a, 16, WS_G, G_SIZE)
        a("s_cmp_ge_u32 s2, 8\ns_cbranch_scc1 L_nz")
        a(f"v_mov_b32 v24, 0\nv_mov_b32 v25, 0\nv_mov_b32 v26, 0\nv_mov_b32 v27, 0\ns_lshl_b32 s24, s2, 2\ns_add_u32 s24, s24, s20\ns_lshl_b32 s24, s24, 7\ns_add_u32 s24, s24, {G_FL}\ns_add_u32 s27, s24, 32768")
        a("v_lshrrev_b32 v16, 3, v0\nv_lshlrev_b32 v16, 12, v16\nv_lshl_add_u32 v16, v17, 4, v16")
        a("buffer_store_dwordx4 v[24:27], v16, s[16:19], s24 offen sc1\nbuffer_store_dwordx4 v[24:27], v16, s[16:19], s27 offen sc1\nL_nz:")
        XR = 228
        c = gemm16.Cfg()
        c.TB, c.NB, c.SPS, c.NST, c.NDMA = 4, 6, 1, 16, 10
        c.tok_lds = True; c.drain_at_P = True; c.tok_early = 0
        c.BODY = 2; c.LA, c.WR = 2, 6; c.PBACK = PB1 = o.get('pback', 16); c.post = o.get('post'); PG = 48 - PB1; c.LDS2 = False
        c.early = lambda j: o.get('early', {}).get(j, 0)
        c.acc = lambda j, tb: f"v[{32+4*(4*j+tb)}:{35+4*(4*j+tb)}]"
        c.tokreg = lambda sl, tb, s: f"a[{24+32*sl+8*tb+4*s}:{24+32*sl+8*tb+4*s+3}]"
        wb = lambda sl: 8*sl if sl < 3 else 96 + 8*sl
        c.wreg = lambda sl, s: f"a[{wb(sl)+4*s}:{wb(sl)+4*s+3}]"
        c.swap = lambda j: j >= 4
        c.tokwait = {0: [0], 2: [1, 2, 3]}; c.first_zero = True; c.unchain0 = self.o.get('unch', 0)
        def stat_loads(a):
            for i in range(4): a.vmem(f"buffer_load_dwordx4 v[{XR+4*i}:{XR+3+4*i}], v30, s[8:11], s34 offen offset:{1024*i}", ("xr",))
        SP = o.get('statpos', 0)
        if SP == 0: c.prologue_00 = stat_loads
        def dma(a, st, i):
            f = []
            if i == 0:
                if st in (1, 2): f.append(lambda: a(f"s_add_u32 s23, s23, {SLOT}"))
                if st > 0: f.append(lambda: a("s_add_u32 s21, s21, 128")); f.append(lambda: a("s_and_b32 s21, s21, 0x7ff"))
                f.append(lambda: a("s_mov_b32 m0, s23"))
            if i == 4:
                if st > 0: f.append(lambda: a("s_mul_i32 s22, s21, 3072"))
                f.append(lambda: a("s_add_u32 m0, s23, 4096"))
            if i == 8: f.append(lambda: a("s_add_u32 m0, s23, 8192"))
            if o.get("x_nodma") and st >= 3: f.append(lambda: a.vmem("s_nop 0", ("dma", st)))
            elif i < 4: f.append(lambda: a.vmem(f"buffer_load_dwordx4 v{2+i}, s[8:11], s21 offen offset:{1024*i} lds", ("dma", st)))
            else: f.append(lambda: a.vmem(f"buffer_load_dwordx4 v{2+i}, s[4:7], s22 offen offset:{wimm((i-4)//2, i%2)} lds", ("dma", st)))
            return f
        c.dma = dma
        woff = lambda j, s, rd: (2*s+rd)*10240 + 4096 + (j//2)*2048
        def wread(a, st, sis, j, s, rd, sl, tag):
            lo = wb(sl) + 4*s + 2*rd
            a.lds(f"ds_read_b64_tr_b16 a[{lo}:{lo+1}], v{14+j%2} offset:{woff(j, s, rd)}", tag)
        c.wread = wread
        c.tokread = lambda a, st, sis, tb, s, sl, tag: a.lds(f"ds_read_b128 {c.tokreg(sl, tb, s)}, v{12+s} offset:{(tb//2)*10240 + (tb%2)*2048}", tag)
        c.dmapos = lambda i: o.get("dmapos", [-15, -10, -6, -2, 2, 7, 12, 15, 19, 23])[i]
        WP, ONES, F, P, MX, MN, EF = 128, 136, 140, 156, 188, 192, 196
        CS = lambda j: (244 + 4*j) if j < 2 else (228 + 4*(j-2))
        V = lambda s, tag: (lambda: a.vmem(s, tag))
        X = lambda s: (lambda: a(s))
        def fixed(st):
            ex = []
            if st < c.NST - 1:
                def chk(s):
                    def f():
                        assert a.lg.count(("w", st*6+5, 1)) == 2 and ("w", st*6+6, 0) not in a.lg and ("tok", st+1, 0, 0) not in a.lg
                        a(s)
                    return f
                ex += [(o.get('cmpg', 5), X(f"s_cmp_eq_u32 s44, {2*SLOT}\ns_cselect_b32 s43, s42, s41"))]
                def upd():
                    assert st + 2 >= c.NST or a.vm.count(("dma", st+2)) >= 9
                    a("s_add_u32 s23, s44, s45\ns_add_u32 s44, s44, s43")
                if st or not SP: ex += [(o.get('updg', 22) if st else PG - 2, upd)]
                if st in (3, 4):
                    ex += [(PG, X("s_mov_b32 s86, 0\ns_buffer_load_dword s86, s[16:19], s24 glc"))]
                if st in (4, 5):
                    ex += [(g_, X(("s_add_u32" if st == 4 else "s_sub_u32") + " s28, s28, s86")) for g_ in o.get("samp", (1, 4, 6, 9, 11, 13, 14, 17, 21, 25, 27))]
                if st == 4: ex += [(26, X("s_xor_b32 s24, s24, 8192"))]
                ex += [(PG - 4 + r, chk(f"v_add_u32 v{12+r}, s43, v{12+r}")) for r in range(4)]
            return ex
        c.fixed = fixed
        sgl = [[V("buffer_load_dword a249, v1, s[4:7], s94 offen", ("sg",))]] if o.get("sgl", 1) else []
        SL2 = o.get("sl2", 0)
        sl2 = [[V("buffer_load_dword a248, v26, s[4:7], s28 offen", ("sg",))]] if SL2 else []
        NSH = 16//NPH; assert NSH <= 4
        ct2 = self.code_touch("a2", "L_tail1", "L_ph3", 92, 24, 1)
        RG = o.get("pf_rows", 4); PFW = o.get("pfw", "loop")
        def extra(st):
            ex = []
            if 1 <= st < 4:
                ex += [(PG, V(f"buffer_store_dwordx4 a[96:99], v30, s[36:39], 0 offen offset:{1024*(st-1)} sc1", ("clr",)))]
            if st == 3: ex += [(PG, V("buffer_load_dword v20, v28, s[12:15], 0 offen sc1", ("boot",)))]
            if st == 12:
                ex += [(0, X("v_and_b32 v28, 60, v31")), (4, V("buffer_load_dword v20, v19, s[16:19], s40 offen sc1", ("rdy",))), (4, V("buffer_load_dword v18, v28, s[12:15], 0 offen offset:128 sc1", ("rdy",)))]
            if st == 4:
                ex += [(5, X(f"s_mov_b32 s36, s{P_WO}\ns_mov_b32 s37, s{P_WO+1}")), (13, X(f"s_mov_b32 s38, {2<<20}"))]
            if st == 12: ex += [(9, ct2[-1])]
            if st == 13:
                def check_ready():
                    a.wait(vm=[("rdy",)])
                    a("v_min_u32 v20, v20, v18\nv_cmp_gt_u32 vcc, 1, v20\ns_nop 0\ns_cbranch_vccnz L_spin0\nL_rdy0:")
                seq = [check_ready, V("buffer_load_dwordx2 v[172:173], v22, s[16:19], s55 offen sc1", ("st",))]
                for u in range(4): seq.append(V(f"buffer_load_dwordx4 v[{P+4*u}:{P+3+4*u}], v30, s[16:19], s53 offen offset:{1024*u} sc1", ("cs",)))
                seq += [V(f"buffer_load_dwordx4 a[{88+4*i}:{91+4*i}], v30, s[36:39], s95 offen offset:{1024*i}", ("wo",)) for i in range(2)]
                ex += [(o.get('lp', (5, 6, 10, 17, 26, 30, 36, 40))[k], f) for k, f in enumerate(seq)]
            if st == 14:
                k = 0
                for hs in H14:
                    for i in range(4):
                        g_ = o.get("h0", 44) + o.get("hstep", 4)*k; k += 1
                        assert hs in (1, 2, 6, 7) or g_ >= 32
                        ex += [(g_, f) for f in self.pre24(hs, i, B2[hs], 252, 36)]
                if RG and PFW == "loop": ex += [(o.get("pfg", 94), V("buffer_load_dword a251, v23, s[56:59], s60 offen", ("pf",)))]
            return ex
        H14 = o.get("h14", (6, 7, 1)); HQ = o.get("hq", ())
        STASH = (10, 11, 16, 17, 21, 24, 25, 28, 31, 12, 13, 22, 14, 15)
        L_ST, L_CX = 40960, 45056
        def slots(st):
            rd = lambda r, g_=-16: (g_, X(f"v_accvgpr_read_b32 v{r}, a{100+STASH.index(r)}"), 1, 0)
            one = lambda l, cost=1, dist=0: (0, X(l), cost, dist)
            D = lambda l, tag, g_=0: (g_, (lambda: a.lds(l, tag)), 1, 0)
            if st == 13:
                fix = self.o.get("numa")
                def beg():
                    assert "L_rdy0:" in a.lines
                L = [(8, beg, 0, 0)] + [(8, X(f"v_add_u32_dpp v18, v18, v18 {m_} row_mask:0xf bank_mask:0xf"), 1, 2) for m_ in ("quad_perm:[1,0,3,2]", "quad_perm:[2,3,0,1]", "row_half_mirror", "row_mirror")]
                L += [(0, X("v_readfirstlane_b32 s30, v18"), 1, 1), (0, X("s_and_b32 s27, s2, 4"), 1, 0), (0, X("s_lshl_b32 s27, s27, 11"), 1, 0)]
                L += [(0, X("s_cmp_gt_u32 s30, 1024\ns_cselect_b32 s30, 8192, 0" if fix is None else f"s_mov_b32 s30, {fix << 13}"), 1, 3)]
                return L + [one(l) for l in ["s_xor_b32 s30, s30, s27", "s_and_b32 s31, s25, 8", "s_lshl_b32 s31, s31, 10", "s_xor_b32 s31, s31, s30"] + self.xb("s3").split("\n")]
            if st == 14:
                L = [one(l) for l in (f"s_lshl_b32 s27, s20, 9", f"s_add_u32 s27, s27, {L_ST}", "v_lshl_add_u32 v174, v0, 2, s27", "v_and_b32 v175, 0xffffff3f, v174", "v_and_b32 v176, 48, v0", "v_add_u32 v176, s27, v176",
                                      "s_lshl_b32 s27, s20, 10", f"s_add_u32 s27, s27, {L_CX}", "v_add_u32 v177, s27, v30", "v_and_b32 v178, 0xfffffbff, v177")]
                L += [(o.get("csw", 14), lambda: a.wait(vm=[("cs",)]), 1, 0), D("ds_write2st64_b32 v174, v172, v173 offset0:0 offset1:1", ("sw",))]
                for e in range(3): L += [one(l) for l in (f"v_add_f32 v{P+e}, v{P+e}, v{P+4+e}", f"v_add_f32 v{P+8+e}, v{P+8+e}, v{P+12+e}", f"v_add_f32 v{P+e}, v{P+e}, v{P+8+e}")]
                def cw():
                    assert ("w", 90, 0) not in a.lg and ("tok", 15, 0, 0) not in a.lg
                    a.lds(f"ds_write_b128 v177, v[{P}:{P+3}]", ("sw",))
                return L + [(0, cw, 1, 0)]
            if st != 15: return []
            L = [rd(r) for r in (10, 11, 16, 17, 21, 24, 25, 28, 31, 22)]
            L += [D(f"ds_read_b128 v[{P+4*x}:{P+3+4*x}], v178 offset:{1024*x}", ("cs",), 4) for x in range(2)]
            L += [D(f"ds_read2_b32 v[{2+2*tb}:{3+2*tb}], v175 offset0:{16*tb} offset1:{64+16*tb}", ("st",)) for tb in range(4)]
            L += [D(f"ds_read_b128 v[{EF+4*q}:{EF+4*q+3}], v176 offset:{64*(q//2) + 256*(q%2)}", ("st",)) for q in range(8)]
            L += [(0, lambda: a.wait(lg=[("cs",)]), 1, 0)]
            L += [one(f"v_mfma_f32_16x16x4_f32 v[{CS(j)}:{CS(j)+3}], v{P + 4*(j%2) + 1}, v29, 0") for j in (2, 3)]
            L += [one(l) for l in (f"v_mov_b32 v{CS(4)}, v{P+2}", f"v_mov_b32 v{CS(5)}, v{P+6}", f"v_mov_b32 v18, v{P}", f"v_mov_b32 v19, v{P+4}")]
            A_, B_ = CS(4), CS(5)
            L += [one(f"v_permlane16_swap_b32 v{A_}, v{B_}", 2), one(f"v_add_f32 v{A_+1}, v{A_}, v{B_}"), one(f"v_add_f32 v{B_+1}, v{A_}, v{B_}"), rd(12, 0), rd(13, 0),
                  one(f"v_permlane32_swap_b32 v{A_+1}, v{B_+1}", 2), one(f"v_add_f32 v{A_}, v{A_+1}, v{B_+1}"), one(f"v_add_f32 v{B_}, v{A_+1}, v{B_+1}"),
                  (0, lambda: a.wait(lg=[("st",)]), 1, 0)]
            L += [one(f"v_mul_f32 v{3+2*tb}, {LOG2E}, v{3+2*tb}") for tb in range(4)] + [one(f"v_permlane16_swap_b32 v{A_}, v{B_}", 2)]
            def last(r):
                def f():
                    assert a.lg.count(("w", 95, 1)) == 2
                    rd(r)[1]()
                return (28, f, 1, 0)
            return L + [last(14), last(15)]
        c.slots = slots
        c.extra = extra
        def share_check(k):
            if k >= NSH: return
            a(f"s_cmp_eq_u32 s50, {k}\ns_cbranch_scc1 L_sh{k}\nL_ns{k}:")
            t(f"L_sh{k}:\ns_call_b64 s[100:101], L_share\ns_branch L_ns{k}")
        def on_P(a, st):
            assert st + 2 >= c.NST or a.vm.count(("dma", st+2)) == 10
            self.tr(f"1P{st}", 2)
            if st in (5, 12): self.tr(f"1P{st}", 5)
            share_check(st + 1)
            if st == 5:
                assert a.vm_done > max(i for i, x in enumerate(a.vm) if x in (("clr",), ("boot",)))
                a("s_cmp_eq_u32 s20, 0\ns_cbranch_scc1 L_flag\nL_ret:")
        c.on_P = on_P
        def pre_P(a, st):
            if st == 0 and SP:
                assert a.vm.count(("dma", 1)) == 10
                a.wait(vm=[("xr",)])
                self.weave(stats, [dma(a, 2, i) for i in range(10)])
                a("s_add_u32 s23, s44, s45\ns_add_u32 s44, s44, s43"); stat_store()
            if st == 1:
                a(f"v_lshrrev_b32 v16, 2, v0\nv_lshlrev_b32 v16, 6, v16\nv_and_b32 v17, 3, v0\nv_lshl_add_u32 v16, v17, 3, v16\ns_lshl_b32 s27, s47, 11\ns_add_u32 s27, s27, {L_WPHI}\nv_add_u32 v16, s27, v16")
                for fb in range(2):
                    for rd in range(2): a.lds(f"ds_read_b64_tr_b16 v[{WP+4*fb+2*rd}:{WP+4*fb+2*rd+1}], v16 offset:{1024*rd + 32*fb}", ("wp",))
            if st == o.get("vst", 1): self.visit("L_ns0", "L_got2" if self.o.get("vw", 0) else "L_ph2", (0, 1, 2, 3))
        c.pre_P = pre_P
        def first_P(a):
            self.tr("1pro")
            a("s_lshr_b32 s27, s2, 3\ns_or_b32 s27, s27, s20\ns_cbranch_scc1 L_nl\nv_mov_b32 v16, 1\ns_lshl_b32 s27, s2, 2\ns_mov_b64 exec, 1\nbuffer_store_dword v16, v30, s[12:15], s27 offen sc1\ns_mov_b64 exec, -1\nL_nl:")
            share_check(0)
        c.first_P = first_P
        def pro_work():
            pass
            a(f"s_mov_b32 s41, {SLOT}\ns_mov_b32 s42, {-2*SLOT & 0xffffffff}\ns_mov_b32 s40, {G_FL}")
            a("s_lshl_b32 s27, s25, 1\ns_add_u32 s48, s27, s47")
            a(f"s_lshl_b32 s27, s46, 11\ns_add_u32 s62, s49, s27\ns_lshl_b32 s27, s47, 13\ns_add_u32 s62, s62, s27\ns_lshl_b32 s27, s47, 8\ns_lshl_b32 s35, s46, 3\ns_add_u32 s63, s27, s35\ns_add_u32 s63, s63, s49\ns_add_u32 s63, s63, {XS_Z}")
            a(f"s_add_u32 s49, s49, {XS_T}\nv_and_b32 v28, 28, v31")
            a("v_and_b32 v16, 15, v0\nv_bfe_u32 v17, v0, 1, 3\nv_lshrrev_b32 v18, 4, v0\nv_xor_b32 v17, v17, v18\nv_lshlrev_b32 v17, 4, v17\nv_lshl_add_u32 v12, v16, 7, v17")
            a("s_mul_i32 s27, s46, 20480\nv_add_u32 v12, s27, v12\nv_xor_b32 v13, 64, v12")
            a(f"v_lshlrev_b32 v22, 3, v0\nv_mov_b32 v29, 1.0\nv_mul_u32_u24 v27, {XS}, v18\nv_lshl_add_u32 v27, v16, 4, v27")
            a("v_and_b32 v17, 3, v0\nv_and_b32 v18, 12, v0\nv_lshl_or_b32 v17, v18, 4, v17\ns_and_b32 s27, s2, 0x3c\nv_or_b32 v17, s27, v17")
            a("s_and_b32 s27, s2, 0xc3\nv_lshl_or_b32 v19, v16, 2, s27")
            a("v_and_b32 v18, 16, v0\nv_cmp_eq_u32 vcc, 0, v18\nv_lshrrev_b32 v18, 2, v0\ns_nop 0\nv_cndmask_b32 v19, v19, v17, vcc\nv_lshlrev_b32 v19, 7, v19")
            a("v_lshlrev_b32 v16, 7, v18\nv_bfe_u32 v17, v0, 3, 2\nv_lshlrev_b32 v17, 5, v17\nv_and_b32 v18, 3, v0\nv_lshlrev_b32 v18, 3, v18\nv_add3_u32 v14, v16, v17, v18")
            a("s_lshl_b32 s27, s47, 6\nv_xor_b32 v14, s27, v14\nv_xor_b32 v15, 32, v14")
            a(f"s_lshl_b32 s52, s48, 13\ns_add_u32 s52, s52, {G_CS}\ns_lshl_b32 s27, s46, 12\ns_add_u32 s53, s52, s27")
            a(f"s_lshl_b32 s55, s26, 10\ns_lshl_b32 s27, s46, 9\ns_add_u32 s55, s55, s27\ns_add_u32 s55, s55, {G_ST1}")
            if RG:
                a(f"s_bitcmp1_b32 s20, 0\ns_cselect_b32 s56, s{P_WU}, s{P_WG}\ns_cselect_b32 s57, s{P_WU+1}, s{P_WG+1}\ns_mov_b32 s58, 7340032\ns_mov_b32 s59, 0x20000")
                a(f"s_lshr_b32 s60, s2, 3\ns_lshl_b32 s60, s60, 1\ns_add_u32 s60, s60, s47\ns_mul_i32 s60, s60, {RG*7168}\ns_and_b32 s27, s2, 3\ns_mul_i32 s27, s27, 1792\ns_add_u32 s60, s60, s27\ns_and_b32 s27, s2, 4\ns_mul_i32 s27, s27, 224\ns_add_u32 s60, s60, s27")
                a(f"v_lshrrev_b32 v23, 3, v0\nv_min_u32 v23, {RG-1}, v23\nv_mul_u32_u24 v23, 7168, v23\nv_and_b32 v17, 7, v0\nv_min_u32 v17, 6, v17\nv_lshl_add_u32 v23, v17, 7, v23")
            if sgl:
                a(f"s_lshr_b32 s27, s{P_WQKV}, 7\ns_sub_u32 s27, 3, s27\ns_and_b32 s27, s27, 7\ns_lshl_b32 s27, s27, 7\ns_mul_i32 s94, s51, 6144\ns_add_u32 s94, s94, s27")
                a("v_min_u32 v1, 5, v0\nv_lshlrev_b32 v1, 10, v1")
            if SL2:
                a(f"s_lshr_b32 s27, s{P_WQKV}, 7\ns_sub_u32 s27, 3, s27\ns_and_b32 s27, s27, 7\ns_and_b32 s35, s25, 8\ns_add_u32 s27, s27, s35\ns_xor_b32 s35, s27, s25")
                a(f"s_lshl_b32 s28, s27, 7\ns_sub_u32 s35, s35, 1\ns_lshl_b32 s27, s35, 11\ns_add_u32 s28, s28, s27\ns_and_b32 s27, s26, 7\ns_lshl_b32 s27, s27, 2\ns_add_u32 s27, s27, s20\ns_mul_i32 s27, s27, {2*6144}\ns_add_u32 s28, s28, s27")
                a(f"v_bfe_u32 v17, v0, 1, 2\nv_lshlrev_b32 v17, 2, v17\nv_lshrrev_b32 v18, 3, v0\nv_min_u32 v18, {SL2-1}, v18\nv_sub_u32 v17, v17, v18\nv_add_u32 v17, 3, v17\nv_and_b32 v18, 1, v0\nv_lshl_add_u32 v17, v17, 6, v18\nv_mul_u32_u24 v26, 6144, v17")
                a("s_cmp_lt_u32 s35, 3\ns_cselect_b32 s28, s28, 0\ns_cselect_b32 s27, 0, 0x7ffffff0\nv_or_b32 v26, s27, v26")
            for r in range(136, 140): a(f"v_mov_b32 v{r}, 0x3f803f80")
            a(self.ids24()); a(self.voff24(252, False))
        def tail_addr():
            T = 180; st_ = lambda r, x: a(f"v_accvgpr_write_b32 a{100+STASH.index(r)}, v{x}")
            a(f"v_bfe_u32 v{T}, v0, 1, 2\nv_lshlrev_b32 v{T}, 2, v{T}\nv_and_b32 v{T+1}, 1, v0\nv_bfe_u32 v{T+2}, v0, 3, 1\nv_lshlrev_b32 v{T+2}, 1, v{T+2}\nv_or3_b32 v{T}, v{T}, v{T+1}, v{T+2}")
            a(f"v_lshrrev_b32 v{T+1}, 4, v0\nv_xor_b32 v{T}, v{T}, v{T+1}\nv_lshlrev_b32 v{T}, 3, v{T}\nv_and_b32 v{T+1}, 15, v0\nv_lshl_add_u32 v{T}, v{T+1}, 7, v{T}")
            a(f"s_lshl_b32 s27, s20, 13\nv_add_u32 v{T}, s27, v{T}"); st_(10, T)
            for q in range(1, 4): a(f"v_xor_b32 v{T+1}, {32*q}, v{T}"); st_(10+q, T+1)
            a(f"v_bfe_u32 v{T}, v0, 3, 2\nv_lshlrev_b32 v{T}, 2, v{T}\nv_bfe_u32 v{T+1}, v0, 2, 1\nv_lshrrev_b32 v{T+2}, 5, v0\nv_lshlrev_b32 v{T+2}, 1, v{T+2}\nv_or3_b32 v{T}, v{T}, v{T+1}, v{T+2}")
            a(f"v_and_b32 v{T+1}, 3, v0\nv_xor_b32 v{T}, v{T}, v{T+1}\nv_lshlrev_b32 v{T}, 3, v{T}\nv_lshrrev_b32 v{T+1}, 2, v0\nv_lshl_add_u32 v{T}, v{T+1}, 7, v{T}")
            a(f"s_lshl_b32 s35, s46, 6\ns_or_b32 s27, s27, s35\nv_xor_b32 v{T}, s27, v{T}"); st_(14, T)
            for r, x in ((15, 32), (16, 8192), (17, 8224)): a(f"v_xor_b32 v{T+1}, {x}, v{T}"); st_(r, T+1)
            a(f"s_lshl_b32 s27, s20, 12\ns_add_u32 s27, s27, {L_VB}\nv_add_u32 v{T}, s27, v30\nv_xor_b32 v{T+1}, 4096, v{T}"); st_(24, T); st_(25, T+1)
            a(f"v_lshrrev_b32 v{T}, 4, v0\nv_mul_u32_u24 v{T+1}, {XS}, v{T}\nv_and_b32 v{T+2}, 0x70, v30\nv_lshl_add_u32 v{T}, v{T}, 2, v{T+2}\nv_and_b32 v{T+3}, 8, v0\nv_lshl_or_b32 v{T}, v{T+3}, 10, v{T}"); st_(28, T+1); st_(31, T)
            a(f"v_and_b32 v{T}, 0xf0, v30\nv_and_b32 v{T+1}, 16, v0\nv_lshl_or_b32 v26, v{T+1}, 9, v{T}"); assert not SL2
            a(f"v_lshrrev_b32 v{T}, 3, v0\nv_mul_u32_u24 v{T}, {XS}, v{T}\nv_add_u32 v{T}, v{T}, v{T+2}\nv_lshrrev_b32 v{T+1}, 5, v0\nv_mul_u32_u24 v{T+1}, {XS - 512}, v{T+1}\nv_add_u32 v{T+1}, v{T+1}, v30"); st_(21, T); st_(22, T+1)
            a("s_lshl_b32 s95, s25, 4\ns_add_u32 s95, s95, s26\ns_lshl_b32 s95, s95, 2\ns_add_u32 s95, s95, s20\ns_lshl_b32 s95, s95, 11")
        def stats():
            U = 196
            for q in range(2):
                for d in range(8): a(f"v_lshlrev_b32 v{U+16*q+2*d}, 16, v{XR+8*q+d}\nv_and_b32 v{U+1+16*q+2*d}, 0xffff0000, v{XR+8*q+d}")
            for q in range(2):
                a(f"v_add_f32 v{140+2*q}, v{U+16*q}, v{U+1+16*q}")
                for e in range(2, 16): a(f"v_add_f32 v{140+2*q}, v{140+2*q}, v{U+16*q+e}")
            allreduce64(a, [140, 142], [144, 145])
            for q in range(2):
                a(f"v_mul_f32 v{140+2*q}, 0x3a800000, v{140+2*q}")
                for e in range(16): a(f"v_sub_f32 v{U+16*q+e}, v{U+16*q+e}, v{140+2*q}")
                a(f"v_mul_f32 v{141+2*q}, v{U+16*q}, v{U+16*q}")
                for e in range(1, 16): a(f"v_fmac_f32 v{141+2*q}, v{U+16*q+e}, v{U+16*q+e}")
            allreduce64(a, [141, 143], [144, 145])
            for q in range(2): a(f"v_mov_b32 v144, 0x3727c5ac\nv_fmac_f32 v144, 0x3a800000, v{141+2*q}\nv_rsq_f32 v{141+2*q}, v144")
        def own1(a, d1):
            T1 = (lambda n: self.tr(n)) if self.o.get("trace1") else (lambda n: None)
            a(f"s_and_b32 s50, s26, {16//NPH - 1}" if HI else f"s_lshr_b32 s50, s26, {4-sh}")
            BP = o.get("badph", 0)
            if BP:
                b = {4: 2, 8: 1}[BP]
                a(f"s_lshr_b32 s27, s{P_WQKV}, 7\ns_add_u32 s27, s27, s25\ns_and_b32 s27, s27, 7\ns_and_b32 s35, s26, {BP-1}\ns_lshl_b32 s35, s35, {b+7}\ns_lshr_b32 s43, s26, {4-b}")
                a("s_cmp_eq_u32 s27, 3\ns_cselect_b32 s21, s35, s21\ns_cselect_b32 s50, s43, s50\ns_mul_i32 s22, s21, 3072"); assert 16//BP <= NSH
            d0 = [dma(a, 0, i) for i in range(10)]; n0 = o.get("n0", 4)
            for g in d0[:n0]: self.group(g)
            T1("iss0")
            a(f"s_lshl_b32 s61, s25, 18\ns_add_u32 s61, s61, {G_XS}\ns_mul_i32 s27, s26, {XS}\ns_add_u32 s49, s61, s27")
            a(f"s_mul_i32 s27, s46, {XS_END//2}\ns_lshl_b32 s35, s47, 13\ns_add_u32 s27, s27, s35\ns_add_u32 s27, s27, s49\ns_add_u32 s36, s16, s27\ns_addc_u32 s37, s17, 0\ns_mov_b32 s38, {XS_END//2}\ns_mov_b32 s39, 0x20000")
            for r in range(96, 100): a(f"v_accvgpr_write_b32 a{r}, -1")
            psrd(a, 12, P_WPHI, 65536)
            a("s_lshl_b32 s92, s20, 10\ns_lshl_b32 s93, s25, 12\ns_add_u32 s93, s93, s92")
            wphi = [X(f"s_add_u32 m0, s92, {L_WPHI}"), V("buffer_load_dwordx4 v30, s[12:15], s93 offen lds", ("wphi",))]
            if SP == 0:
                pro_work(); T1("work"); a.wait(vm=[("xr",)]); T1("xr")
                self.weave(lambda: (stats(), tail_addr()), d0[n0:] + [wphi] + sgl + (sl2 + d1 if SL2 == 3 else d1[:4] + sl2 + d1[4:])); T1("stats")
            else:
                pro_work(); T1("work")
                xr = [[V(f"buffer_load_dwordx4 v[{XR+4*i}:{XR+3+4*i}], v30, s[8:11], s34 offen offset:{1024*i}", ("xr",))] for i in range(4)]
                self.weave(tail_addr, d0[n0:] + sgl + (sl2 + xr if SL2 == 3 else xr + sl2) + [wphi]); T1("stats")
            srd(a, 12, "s30", "s31", 256)
            for fn in ct2[:-1]: fn()
            a(f"s_and_b32 s24, s25, 8\ns_lshl_b32 s24, s24, 10\ns_lshl_b32 s27, s20, 7\ns_add_u32 s24, s24, s27\ns_add_u32 s24, s24, s49\ns_sub_u32 s24, s24, {XS_T}\ns_mov_b32 s28, 0")
        c.own_stage0 = True
        c.own_stage1 = own1
        def stat_store():
            a(f"s_lshl_b32 s27, s51, 4\ns_add_u32 s27, s27, {G_ST1}\ns_mov_b64 exec, 1")
            a.vmem("buffer_store_dwordx4 v[140:143], v30, s[16:19], s27 offen sc1", ("clr",))
            a("s_mov_b64 exec, -1")
        if SP: c.lazy1 = lambda i: o.get("lz", 2)*i; c.skip_dma = (2,)
        def pro_mid(a):
            if not SP: stat_store()
            a("s_branch L_go\n@near\n.p2align 12\nL_go:")
        c.prologue_mid = pro_mid
        marks, stats_ = gemm16.mainloop(a, c)
        self.info.append((roll2(a, marks, "L_loop1", "s24"), stats_))
        self.tr("1main")
        a("L_tail1:")
        t("L_share:")
        t("s_lshl_b32 s27, s46, 5\nv_xor_b32 v16, s27, v14")
        for part in range(3):
            for s in range(2):
                for rd in range(2): t(f"ds_read_b64_tr_b16 v[{P+8*part+4*s+2*rd}:{P+8*part+4*s+2*rd+1}], v16 offset:{woff(2*part, s, rd)}")
        t(f"s_lshl_b32 s27, s46, 12\ns_lshl_b32 s35, s26, 8\ns_add_u32 s27, s27, s35\ns_add_u32 s27, s27, s52\ns_waitcnt lgkmcnt(0)")
        for part in range(3):
            for s in range(2): t(f"v_mfma_f32_16x16x32_bf16 v[{144+4*part}:{147+4*part}], v[{ONES}:{ONES+3}], v[{P+8*part+4*s}:{P+8*part+4*s+3}], {'0' if s == 0 else f'v[{144+4*part}:{147+4*part}]'}")
        t("s_nop 7\nv_mov_b32 v145, v148\nv_mov_b32 v146, v152\ns_mov_b64 exec, 0xffff")
        t("buffer_store_dwordx4 v[144:147], v30, s[16:19], s27 offen sc1\ns_mov_b64 exec, -1\ns_setpc_b64 s[100:101]")
        t(f"L_flag:\ns_mov_b32 s27, {SPIN}\nL_flagb:\nv_cmp_eq_u32 vcc, 0, v20\ns_sub_u32 s27, s27, 1\ns_cbranch_vccz L_flagc\ns_cmp_eq_u32 s27, 0\ns_cbranch_scc1 L_flagc")
        t("buffer_load_dword v20, v28, s[12:15], 0 offen sc1\ns_waitcnt vmcnt(0)\ns_branch L_flagb")
        t("L_flagc:\nv_mov_b32 v16, 1\ns_lshl_b32 s27, s2, 7\ns_add_u32 s27, s27, s40\ns_mov_b64 exec, 1\nbuffer_store_dword v16, v30, s[16:19], s27 offen sc1")
        t("s_cmp_ge_u32 s2, 16\ns_cbranch_scc1 L_flage\ns_sub_u32 s27, 0, s28\ns_bitcmp1_b32 s2, 2\ns_cselect_b32 s28, s27, s28\ns_add_u32 s28, s28, 64\ns_and_b32 s28, s28, 127\ns_max_u32 s28, s28, 1\nv_mov_b32 v17, s28\ns_lshl_b32 s27, s2, 2")
        t("buffer_store_dword v17, v30, s[12:15], s27 offen offset:128 sc1\nL_flage:\ns_mov_b64 exec, -1\ns_branch L_ret")
        k = a.lines.index("@near"); a.lines[k:k+1] = t.lines; t.lines = []
        t(f"L_spin0:\ns_mov_b32 s27, {SPIN}\nL_spin0b:\nbuffer_load_dword v20, v19, s[16:19], s40 offen sc1\nbuffer_load_dword v18, v28, s[12:15], 0 offen offset:128 sc1\ns_waitcnt vmcnt(0)\nv_min_u32 v20, v20, v18\nv_cmp_gt_u32 vcc, 1, v20\ns_sub_u32 s27, s27, 1")
        t("s_cbranch_vccz L_rdy0\ns_cmp_lg_u32 s27, 0\ns_cbranch_scc1 L_spin0b\ns_branch L_rdy0")
        S = lambda sg, tb: (140 if sg == 0 else 228) + 4*tb
        mf = lambda d, A_, B_, C_: a(f"v_mfma_f32_16x16x32_bf16 v[{d}:{d+3}], v[{A_}:{A_+3}], v[{B_}:{B_+3}], {C_ if C_ == '0' else f'v[{C_}:{C_+3}]'}")
        pre2 = lambda sts: [self.pre24(st, i, B2[st], 252, 36) for st in sts for i in range(4)]
        pk = lambda r: f"v[{r}:{r+1}]"
        def feat1(j0, between=None):
            b = 32 + 16*j0
            def partA():
                for tb in range(4):
                    for x in range(2):
                        for h in (0, 2): a(f"v_pk_fma_f32 {pk(b+16*x+4*tb+h)}, {pk(2+2*tb)}, {pk(CS(j0+x)+h)}, {pk(b+16*x+4*tb+h)} op_sel_hi:[0,1,1] neg_lo:[1,0,0] neg_hi:[1,0,0]")
                        if tb > 0: mf(P + 8*(tb-1) + 4*x, WP + 4*x, F + 4*(tb-1), "0")
                    for d in range(4): a(f"v_cvt_pk_bf16_f32 v{F+4*tb+d}, v{b+16*(d//2)+4*tb+2*(d%2)}, v{b+16*(d//2)+4*tb+2*(d%2)+1}")
            def partB():
                for tb in range(4):
                    p = P + 8*tb
                    for dst, op3, op2 in ((MX+tb, "v_max3_f32", "v_max_f32"), (MN+tb, "v_min3_f32", "v_min_f32")):
                        a(f"{op3} v{dst}, v{p}, v{p+1}, v{p+2}\n{op3} v{dst}, v{dst}, v{p+3}, v{p+4}\n{op3} v{dst}, v{dst}, v{p+5}, v{p+6}\n{op2} v{dst}, v{dst}, v{p+7}")
                two = ((MX, "v_max_f32"), (MN, "v_min_f32"))
                a("s_nop 0")
                for r, op in two: a(f"v_permlane16_swap_b32 v{r}, v{r+1}\nv_permlane16_swap_b32 v{r+2}, v{r+3}")
                for r, op in two: a(f"{op} v{r}, v{r}, v{r+1}\n{op} v{r+2}, v{r+2}, v{r+3}")
                a("s_nop 0")
                for r, op in two: a(f"v_permlane32_swap_b32 v{r}, v{r+2}")
                for r, op in two: a(f"{op} v{r+1}, v{r}, v{r+2}\n{op} v{r+2}, v{r}, v{r+2}")
                a("s_nop 0")
                for r, op in two: a(f"v_permlane32_swap_b32 v{r+1}, v{r+2}")
                for r, op in two: a(f"v_mov_b32 v{r}, v{r+1}\nv_mov_b32 v{r+3}, v{r+2}")
                for r, op in two: a(f"v_permlane16_swap_b32 v{r}, v{r+1}\nv_permlane16_swap_b32 v{r+2}, v{r+3}")
            partA()
            a("s_nop 1")
            for fb in range(2): mf(P + 24 + 4*fb, WP + 4*fb, F + 12, "0")
            if between: between()
            partB()
            for tb in range(4): a(f"v_mul_f32 v{MX+tb}, v{MX+tb}, v{3+2*tb}\nv_mul_f32 v{MN+tb}, v{MN+tb}, v{3+2*tb}")
        def feat2(b):
            for tb in range(4):
                sel = tb % 2; mx, mn = pk(MX+tb-sel), pk(MN+tb-sel)
                for e in range(0, 8, 2): a(f"v_pk_fma_f32 {pk(b+8*tb+e)}, {pk(P+8*tb+e)}, {pk(2+2*tb)}, {mx} op_sel:[0,1,{sel}] op_sel_hi:[1,1,{sel}] neg_lo:[0,0,1] neg_hi:[0,0,1]")
                for e in range(0, 8, 2): a(f"v_pk_fma_f32 {pk(P+8*tb+e)}, {pk(P+8*tb+e)}, {pk(2+2*tb)}, {mn} op_sel:[0,1,{sel}] op_sel_hi:[1,1,{sel}] neg_lo:[1,0,0] neg_hi:[1,0,0]")
                for e in range(8):
                    a(f"v_exp_f32 v{b+8*tb+e}, v{b+8*tb+e}")
                    if tb > 0 and e in (0, 2): mf(S(e//2, tb-1), ONES, EF + 8*e + 4*(tb-1), "0")
                for e in range(8): a(f"v_exp_f32 v{P+8*tb+e}, v{P+8*tb+e}")
                for sg, src in ((0, b), (1, P)):
                    for d in range(4): a(f"v_cvt_pk_bf16_f32 v{EF+16*sg+4*tb+d}, v{src+8*tb+2*d}, v{src+8*tb+2*d+1}")
            mf(S(0, 3), ONES, EF + 12, "0"); a("s_nop 0"); mf(S(1, 3), ONES, EF + 28, "0")
        def scale_pack(b, sc, after=None):
            for tb in range(4):
                for sg, src in ((0, b), (1, P)):
                    for e in range(0, 8, 2): a(f"v_pk_mul_f32 {pk(src+8*tb+e)}, {pk(src+8*tb+e)}, {pk(sc(sg, tb))} op_sel_hi:[1,0]")
                    for d in range(4): a(f"v_cvt_pk_bf16_f32 v{EF+16*sg+4*tb+d}, v{src+8*tb+2*d}, v{src+8*tb+2*d+1}")
                    if after: after(tb, sg)
        VF, KV, Z = 96, 112, 244
        def vside():
            for db in range(2):
                for tb in range(4):
                    for h in (0, 2):
                        x = 96 + 16*db + 4*tb + h
                        a(f"v_pk_fma_f32 {pk(x)}, {pk(EF+8*tb+h)}, {pk(CS(4+db))}, {pk(x)} op_sel_hi:[1,0,1] neg_lo:[1,0,0] neg_hi:[1,0,0]\nv_pk_mul_f32 {pk(x)}, {pk(x)}, {pk(EF+8*tb+4+h)}")
                for d in range(8): a(f"v_cvt_pk_bf16_f32 v{VF+8*db+d}, v{96+16*db+2*d}, v{97+16*db+2*d}")
                if db == 0: a("s_barrier")
                for i in range(2): a.lds(f"ds_write_b128 v24, v[{VF+8*db+4*i}:{VF+8*db+4*i+3}] offset:{2048*db + 1024*i}", ("vw",))
        def afr(who, ks):
            for fb in range(2):
                for rd in range(2):
                    r = 16*who + 8*fb + 4*ks + 2*rd
                    a.lds(f"ds_read_b64_tr_b16 a[{r}:{r+1}], v{14+2*who+fb} offset:{(32*ks + 16*rd)*128}", ("af", who, ks))
        def kvm(who, ks, db, fb):
            af = 16*who + 8*fb + 4*ks; A_ = f"a[{af}:{af+3}]"
            d = KV + 8*fb + 4*db if db < 2 else Z + 4*fb
            C_ = "0" if who == 0 and ks == 0 else f"v[{d}:{d+3}]"
            if db == 2: return f"v_mfma_f32_16x16x32_bf16 v[{d}:{d+3}], v[{ONES}:{ONES+3}], {A_}, {C_}"
            B_ = f"v[{VF+8*db+4*ks}:{VF+8*db+4*ks+3}]" if who == 0 else f"a[{32+8*db+4*ks}:{35+8*db+4*ks}]"
            return f"v_mfma_f32_16x16x32_bf16 v[{d}:{d+3}], {A_}, {B_}, {C_}"
        TK = (lambda n: self.tr(n)) if o.get('x_tk') else (lambda n: None)
        marker = [[X("s_nop 0" if k == 0 else f"s_add_u32 s3, s3, {1<<20}" + ("\ns_xor_b32 s3, s3, 8192" if k == 2 else "")), V("buffer_store_dwordx4 a[96:99], v30, s[16:19], s3 offen sc1", ("xclr",))] for k in range(4)]
        MK = self.o.get("k3", {}).get("mk", "p1")
        if MK == "p1": self.weave(lambda: feat1(2, vside), marker)
        else: feat1(2, vside)
        TK("kB")
        HK = o.get("hk", ()); assert 0 not in HK
        if HK: self.weave(lambda: feat2(64), pre2(HK))
        else: feat2(64)
        TK("kf2")
        for tb in range(3):
            for sg in range(2): a(f"v_rcp_f32 v{S(sg, tb)}, v{S(sg, tb)}")
        def wr(tb, sg):
            for fb in range(2): a.lds(f"ds_write_b64 v{10+2*sg+fb}, v[{EF+16*sg+4*tb+2*fb}:{EF+16*sg+4*tb+2*fb+1}] offset:{2048*tb}", ("pw",))
            if (tb, sg) == (0, 0): a(f"v_rcp_f32 v{S(0, 3)}, v{S(0, 3)}\nv_rcp_f32 v{S(1, 3)}, v{S(1, 3)}")
            if (tb, sg) == (1, 1): afr(0, 0)
            if (tb, sg) == (2, 0): a.wait(lg=[("af", 0, 0)])
            if (tb, sg) in ((2, 0), (2, 1), (3, 0)):
                for fb in range(2): a(kvm(0, 0, 2*(tb-2) + sg, fb))
        scale_pack(64, S, wr); TK("kscl")
        afr(0, 1)
        a(f"s_add_u32 s61, s61, s31\ns_and_b32 s27, s26, 7\ns_lshl_b32 s27, s27, 9\ns_add_u32 s52, s61, s27\ns_lshl_b32 s27, s47, 8\ns_add_u32 s53, s61, s27\ns_add_u32 s53, s53, {XS_Z}")
        self.tr("1kside", 2)
        a.wait(lg=[("pw",)]); a("s_barrier")
        afr(1, 0)
        for i in (0, 1): a.lds(f"ds_read_b128 a[{32+4*i}:{35+4*i}], v25 offset:{1024*i}", ("vg", 0))
        afr(1, 1)
        for i in (2, 3): a.lds(f"ds_read_b128 a[{32+4*i}:{35+4*i}], v25 offset:{1024*i}", ("vg", 1))
        a.wait(lg=[("af", 0, 1)])
        for db in range(3):
            for fb in range(2): a(kvm(0, 1, db, fb))
        def pub(db):
            for d in range(4): a(f"v_cvt_pk_bf16_f32 v{72+4*db+d}, v{KV+8*(d//2)+4*db+2*(d%2)}, v{KV+8*(d//2)+4*db+2*(d%2)+1}")
            a.vmem(f"buffer_store_dwordx4 v[{72+4*db}:{75+4*db}], v30, s[16:19], s62 offen offset:{1024*db} sc1", ("pub",))
        for db in range(3):
            a.wait(lg=[("af", 1, 1), ("vg", min(db, 1))])
            for fb in range(2):
                for ks in range(2): a(kvm(1, ks, db, fb))
        pub(0); pub(1)
        a(f"v_mov_b32 v{Z+1}, v{Z+4}\ns_mov_b32 exec_hi, 0")
        a.vmem(f"buffer_store_dwordx2 v[{Z}:{Z+1}], v26, s[16:19], s63 offen sc1", ("pub",))
        a("s_mov_b64 exec, -1")
        self.tr("1pub")
        a(f"s_barrier\ns_and_b32 s100, s2, 0x83\ns_lshl_b32 s100, s100, 7\ns_and_b32 s27, s2, 0x78\ns_lshl_b32 s27, s27, 6\ns_add_u32 s100, s100, s27\ns_lshl_b32 s27, s20, 2\ns_add_u32 s100, s100, s27\ns_add_u32 s101, s30, {G_F2 + 16}\ns_add_u32 s100, s100, s101")
        a.wait(vm=[("wo",)])
        a(f"v_mfma_f32_16x16x32_bf16 v[96:99], v[{ONES}:{ONES+3}], a[88:91], 0\nv_mfma_f32_16x16x32_bf16 v[96:99], v[{ONES}:{ONES+3}], a[92:95], v[96:99]")
        a(f"s_lshl_b32 s27, s20, 2\ns_add_u32 s54, s49, s27\ns_sub_u32 s54, s54, {XS_T - XS_W}\ns_lshl_b32 s27, s20, 7\ns_add_u32 s52, s52, s27\ns_add_u32 s49, s49, s27")
        for j in range(2): a(f"v_mfma_f32_16x16x4_f32 v[{CS(j)}:{CS(j)+3}], v{18+j}, v29, 0")
        rowsum16(a, [96])
        a("v_mul_f32 v96, 0x3a800000, v96\ns_mov_b64 exec, 0x10001")
        a.vmem("buffer_store_dword v96, v26, s[16:19], s54 offen sc1", ("wb",))
        a("s_mov_b64 exec, -1")
        def strided(n, first, stride, mk, tag):
            return [[X(f"s_mov_b32 s34, {first}" if i == 0 else f"s_add_u32 s34, s34, {stride}"), V(mk(i), tag)] for i in range(n)]
        kv_ops = lambda: strided(2, "s52", 8*XS, lambda i: f"buffer_load_dwordx4 v[{64+4*i}:{67+4*i}], v21, s[16:19], s34 offen sc1", ("kv",))
        z_ops = lambda: strided(4, "s53", 4*XS, lambda i: f"buffer_load_dwordx4 v[{80+4*i}:{83+4*i}], v27, s[16:19], s34 offen sc1", ("z",))
        KF = (128, 132, 10, 14)
        tot_ops = lambda: strided(4, "s92", 2*XS, lambda i: f"buffer_load_dwordx4 v[{KF[i]}:{KF[i]+3}], v22, s[16:19], s34 offen sc1", ("tot",)) + \
                          strided(2, "s93", 4*XS, lambda i: f"buffer_load_dwordx4 v[{244+4*i}:{247+4*i}], v28, s[16:19], s34 offen sc1", ("tot",))
        def retry(k, regs, ops, leave=0):
            a(f"s_mov_b32 s27, {SPIN}\nL_chk{k}:")
            umax(a, 20, regs)
            a(f"v_cmp_eq_u32 vcc, -1, v20\ns_sub_u32 s27, s27, 1\ns_cbranch_vccz L_ok{k}\ns_cmp_eq_u32 s27, 0\ns_cbranch_scc1 L_ok{k}")
            vm = list(a.vm)
            if self.o.get("rsleep"): a(f"s_sleep {self.o['rsleep']}")
            for g in ops(): self.group(g)
            a.vm = vm
            a(f"s_waitcnt vmcnt({leave})\ns_branch L_chk{k}\nL_ok{k}:")
        a(f"s_mul_i32 s27, s47, {8*XS}\ns_add_u32 s93, s61, s27\ns_add_u32 s93, s93, {XS_W}")
        a(f"s_lshr_b32 s27, s31, 13\ns_xor_b32 s27, s27, s47\ns_lshr_b32 s35, s26, 3\ns_xor_b32 s27, s27, s35\ns_mul_i32 s27, s27, {8*XS}\ns_add_u32 s92, s61, s27\ns_add_u32 s92, s92, {XS_T}")
        a("s_and_b32 s27, s26, 7\ns_lshl_b32 s27, s27, 3\ns_lshl_b32 s34, s46, 2\ns_add_u32 s27, s27, s34\ns_lshl_b32 s54, s27, 15\ns_lshl_b32 s35, s48, 10\ns_add_u32 s54, s54, s35\n" + place("s54"))
        a(f"s_and_b32 s55, s26, 7\ns_lshl_b32 s55, s55, 1\ns_add_u32 s55, s55, s46\ns_lshl_b32 s55, s55, 6\ns_add_u32 s55, s55, s48\ns_lshl_b32 s55, s55, 8\ns_add_u32 s55, s55, s30\ns_add_u32 s55, s55, {G_MD}")
        C3 = SIDE - 128 if self.o.get("c3", 0) else 0
        a(f"v_lshrrev_b32 v1, 3, v0\nv_cmp_eq_u32 vcc, 3, v1\nv_add_u32 v1, {C3}, v30\ns_nop 0\nv_cndmask_b32 v1, v30, v1, vcc")
        ws_srd(a, 56, WS_O, 4<<20); a(self.rowmajor24(24, 26)); a("s_mov_b32 s94, 0x358637bd")
        G = lambda ops, i0, step: [(i0 + step*k, (lambda g=g: self.group(g))) for k, g in enumerate(ops)]
        ZM = o.get('zm', 'after'); POST = o.get('post_scale', 1); X2 = 140 if POST else P
        def reduce_():
            self.tr("1q", 2)
            a.wait(vm=[("kv",)])
            retry(1, range(64, 72), kv_ops)
            self.tr("1hop1")
            if ZM == "before":
                for g in z_ops(): self.group(g)
            for e in range(8): a(f"v_lshlrev_b32 v{96+e}, 16, v{64+e}\nv_and_b32 v{104+e}, 0xffff0000, v{64+e}")
            for b in (96, 104):
                for h in (0, 2): a(f"v_pk_add_f32 {pk(b+h)}, {pk(b+h)}, {pk(b+4+h)}")
            a("s_nop 0")
            for b in (96, 104): a(f"v_permlane16_swap_b32 v{b}, v{b+1}\nv_permlane16_swap_b32 v{b+2}, v{b+3}")
            for b in (96, 104): a(f"v_add_f32 v{b}, v{b}, v{b+1}\nv_add_f32 v{b+2}, v{b+2}, v{b+3}")
            a("s_nop 0\nv_permlane32_swap_b32 v96, v98\nv_permlane32_swap_b32 v104, v106\nv_add_f32 v96, v96, v98\nv_add_f32 v104, v104, v106\ns_nop 0")
            a("v_add_f32_dpp v96, v96, v96 row_ror:8 row_mask:0xf bank_mask:0xf\nv_add_f32_dpp v104, v104, v104 row_ror:8 row_mask:0xf bank_mask:0xf\nv_cvt_pk_bf16_f32 v72, v96, v104")
            a.vmem("buffer_store_dword v72, v31, s[16:19], s49 offen sc1", ("tots",))
            if ZM == "after":
                for g in z_ops(): self.group(g)
        I1, I2, I3 = o.get("i1", 40), o.get("i2", 160), o.get("i3", 20)
        n = self.splice(lambda: (feat1(0), feat2(32)), G(pre2(HQ), 0, 8) + G(kv_ops() + (z_ops() if ZM == 'early' else []), I1, 6) + [(I2, reduce_)])
        a.wait(vm=[("z",)])
        retry(2, range(80, 96), z_ops)
        ZF, ZQ = 120, 64
        def zmath():
            for q in range(0, 8, 2): a(f"v_pk_add_f32 {pk(80+q)}, {pk(80+q)}, {pk(88+q)}")
            for q in range(0, 4, 2): a(f"v_pk_add_f32 {pk(80+q)}, {pk(80+q)}, {pk(84+q)}")
            a("s_nop 0")
            for q in range(4): a(f"v_mfma_f32_16x16x4_f32 v[{100+4*q}:{103+4*q}], v{80+q}, v29, 0")
            a("s_nop 6")
            for d in range(8): a(f"v_cvt_pk_bf16_f32 v{ZF+d}, v{100+2*d}, v{101+2*d}")
            a("s_nop 0")
            for tb in range(4):
                for sg in range(2): mf(ZQ + 16*sg + 4*tb, ZF + 4*sg, EF + 16*sg + 4*tb, "0")
            a("s_nop 1")
            for tb in range(4):
                a(f"v_fma_f32 v{ZQ+4*tb}, v{S(0,tb)}, s94, v{ZQ+4*tb}\nv_mul_f32 v{ZQ+4*tb}, v{ZQ+4*tb}, v{S(1,tb)}\nv_fmac_f32 v{ZQ+4*tb}, v{ZQ+16+4*tb}, v{S(0,tb)}")
                a(f"v_rcp_f32 v{ZQ+4*tb}, v{ZQ+4*tb}")
            for tb in range(4): a(f"v_mul_f32 v{100+2*tb}, v{ZQ+4*tb}, v{S(1,tb)}\nv_mul_f32 v{108+2*tb}, v{ZQ+4*tb}, v{S(0,tb)}")
            if not POST: scale_pack(32, lambda sg, tb: 100 + 8*sg + 2*tb)
        n2 = self.splice(zmath, G(tot_ops(), I3, 5))
        self.info.append((n, n2))
        for tb in range(2):
            for u in range(2): a.vmem(f"buffer_load_dwordx4 v[{X2+8*tb+4*u}:{X2+3+8*tb+4*u}], v{24+tb}, s[8:11], s86 offen offset:{64*u}", ("x2",))
        self.tr("1z", 2)
        a.wait(vm=[("tot",)])
        retry(3, [r + k for r in KF for k in range(4)] + list(range(244, 252)), tot_ops)
        self.tr("1hop2")
        O = 32
        def ostore(tb):
            if POST:
                for e in range(0, 8, 2): a(f"v_pk_mul_f32 {pk(O+8*tb+e)}, {pk(O+8*tb+e)}, {pk(100+2*tb)} op_sel_hi:[1,0]")
                for e in range(0, 8, 2): a(f"v_pk_fma_f32 {pk(O+8*tb+e)}, {pk(P+8*tb+e)}, {pk(108+2*tb)}, {pk(O+8*tb+e)} op_sel_hi:[1,0,1]")
            for d in range(4): a(f"v_cvt_pk_bf16_f32 v{64+4*tb+d}, v{O+8*tb+2*d}, v{O+8*tb+2*d+1}")
            a.vmem(f"buffer_store_dwordx4 v[{64+4*tb}:{67+4*tb}], v1, s[56:59], s54 offen sc1", ("o",))
            if tb < 3: a("s_add_u32 s54, s54, 65536")
        for tb in range(4):
            for db in range(2):
                d = O + 8*tb + 4*db
                mf(d, KF[db], EF + 4*tb, "0")
                if POST: mf(P + 8*tb + 4*db, KF[2+db], EF + 16 + 4*tb, "0")
                else: mf(d, KF[2+db], EF + 16 + 4*tb, d)
            if tb >= 2: ostore(tb - 2)
        ostore(2); ostore(3)
        for tb in range(4):
            a(f"v_pk_mul_f32 {pk(100+2*tb)}, {pk(O+8*tb)}, {pk(244)}")
            for e in range(2, 8, 2): a(f"v_pk_fma_f32 {pk(100+2*tb)}, {pk(O+8*tb+e)}, {pk(244+e)}, {pk(100+2*tb)}")
        for tb in range(4): a(f"v_add_f32 v{96+tb}, v{100+2*tb}, v{101+2*tb}")
        rs4(a, 96, "v_add_f32")
        a("v_lshlrev_b32 v16, 2, v0")
        a.vmem("buffer_store_dword v96, v16, s[16:19], s55 offen sc1", ("md",))
        self.tr("1end")
        a.wait(vm=[("x2",)])
        def xinit():
            for tb in range(2):
                for u in range(2):
                    x = X2 + 8*tb + 4*u
                    a(f"v_permlane16_swap_b32 v{x}, v{x+2}\nv_permlane16_swap_b32 v{x+1}, v{x+3}")
                    for d in range(4):
                        r = 32 + 4*(2*(2*u + d//2) + tb) + 2*(d % 2)
                        a(f"v_lshlrev_b32 v{r}, 16, v{x+d}\nv_and_b32 v{r+1}, 0xffff0000, v{x+d}")
        HE = o.get("he", (0, 2))
        a("L_ph2:")
        self.weave(lambda: (xinit(), self.setup2()), pre2(HE) + [[]])
        self.signal(2, ("md",))
        for g in pre2([x for x in range(8) if x not in H14 + HQ + HE + HK]): self.group(g)

    def setup3(self):
        a = self.a
        a("s_and_b32 s25, s2, 3\ns_lshl_b32 s25, s25, 3\ns_lshr_b32 s27, s2, 5\ns_add_u32 s25, s25, s27\ns_bfe_u32 s26, s2, 0x20003")
        a("s_movk_i32 s27, 6944\nv_lshlrev_b32 v9, 4, v0")
        for i in range(7):
            a(f"v_add_u32 v14, {64*i}, v0\nv_mul_u32_u24 v14, 4682, v14\nv_lshrrev_b32 v14, 16, v14\nv_mad_u32_u24 v{2+i}, v14, s27, v9")
            if i >= 4: a(f"v_add_u32 v{2+i}, 4096, v{2+i}")
        a("s_lshl_b32 s87, s26, 4\ns_lshl_b32 s35, s20, 2\ns_add_u32 s87, s87, s35")
        a("v_add_u32 v10, 65536, v9\nv_add_u32 v11, 131072, v9\nv_add_u32 v12, 196608, v9")
        a("s_mul_i32 s22, s47, 229376\ns_mul_i32 s27, s25, 224\ns_add_u32 s22, s22, s27")
        a("s_mul_i32 s27, s46, 14336\ns_mul_i32 s23, s47, 7168\ns_add_u32 s23, s23, s27")
        a.lines.append(f"s_bitcmp1_b32 s20, 0\ns_cselect_b32 s4, s{P_WU}, s{P_WG}\ns_cselect_b32 s5, s{P_WU+1}, s{P_WG+1}\ns_mov_b32 s6, 7340032")
        a("v_lshrrev_b32 v14, 2, v0\nv_mul_u32_u24 v14, 224, v14\nv_and_b32 v15, 3, v0\nv_lshl_add_u32 v13, v15, 3, v14")
    def dma3(self, a, st, i):
        f = []
        if i == 0 and st >= 2 and st % 2 == 0: f.append(lambda: a("s_xor_b32 s23, s23, 0x10000"))
        if i == 0 and st > 0: f.append(lambda: a(f"s_add_u32 s22, s22, {64*7168}"))
        if i % 4 == 0: f.append(lambda: a(f"s_add_u32 m0, s23, {(st%2)*32768 + i*1024}"))
        f.append(lambda: a.vmem(f"buffer_load_dwordx4 v{2+i}, s[4:7], s22 offen offset:{1024*(i%4)} lds", ("dma", st)))
        return f

    def setup2(self):
        a = self.a
        a(self.rdaddr24(16))
        for sg in range(4): a(f"v_add_u32 v{16+sg}, {B2[0]}, v{16+sg}")
        a("v_and_b32 v23, 31, v0\nv_lshlrev_b32 v22, 3, v23\nv_lshlrev_b32 v23, 2, v23\nv_lshrrev_b32 v20, 5, v0\nv_lshl_add_u32 v20, v20, 8, v23")
        a(f"s_bfe_u32 s92, s82, 0x40002\ns_lshl_b32 s92, s92, 14\ns_lshl_b32 s27, s46, 7\ns_add_u32 s92, s92, s27\ns_add_u32 s92, s92, s30\ns_add_u32 s92, s92, {G_MD}\ns_add_u32 s93, s92, 4096")
        a(f"s_lshl_b32 s94, s82, 7\ns_add_u32 s94, s94, {G_ST1}\ns_and_b32 s21, s82, 63\ns_lshl_b32 s21, s21, 15\n" + place("s21"))
        a("v_add_u32 v21, 65536, v1\nv_accvgpr_write_b32 a223, v1")
        a("s_and_b32 s34, s80, 7\ns_lshl_b32 s34, s34, 9\nv_and_b32 v31, 3, v0\nv_lshl_add_u32 v31, v31, 7, s34\nv_and_b32 v29, 4, v0\nv_lshl_or_b32 v31, v29, 10, v31\nv_and_b32 v29, 8, v0\nv_lshl_or_b32 v31, v29, 11, v31")
        self.setup3()
    def phase2(self):
        a, o = self.a, self.o.get("k2", {})
        TR = o.get("TR", 4); E3 = 0
        ws_srd(a, 8, WS_HC, 4<<20)
        for fn in self.code_touch("b", "L_ph3", "L_ph4", 52, 26, 2): fn()
        VW = self.o.get("vw", 0)
        if not VW: self.visit("L_ph2", "L_loop3", (1, 2, 3))
        self.await_(2)
        self.tr("2start")
        c = gemm16.Cfg()
        c.TB, c.NB, c.SPS, c.NST, c.NDMA = 2, 4, 2, 8, 4
        c.PRE = 8; c.TR = TR; c.BODY = 8; c.LA, c.WR = o.get("LA", 3), 4; c.TOK0 = o.get("tok0", 2)
        c.PBACK = 4*c.LA; c.LDS2 = False
        accr = lambda j, tb: 32 + 4*(2*j+tb)
        c.acc = lambda j, tb: f"v[{accr(j,tb)}:{accr(j,tb)+3}]"
        c.tokreg = lambda sl, tb, s: f"a[{40+16*sl+8*tb+4*s}:{40+16*sl+8*tb+4*s+3}]"
        c.wreg = lambda sl, s: f"a[{8*sl+4*s}:{8*sl+4*s+3}]"
        def tok(a, t, tb, s):
            f = []
            if t % 2 == 0 and tb == 0 and s == 0 and t > 0: f.append(lambda: a(f"s_add_u32 s21, s21, {4096 if t % 4 else 12288}"))
            f.append(lambda: a.vmem(f"buffer_load_dwordx4 {c.tokreg(t % c.TR, tb, s)}, v{1 if tb == 0 else 21}, s[56:59], s21 offen offset:{1024*((2*t+s)%4)} {self.o.get('tokfl', 'sc1')}", ("tok", t, tb, s)))
            return f
        c.tok = tok; c.tokpos = lambda i: 4*i
        def wread(a, st, sis, j, s, rd, sl, tag):
            lo = 8*sl + 4*s + 2*rd
            a.lds(f"ds_read_b64_tr_b16 a[{lo}:{lo+1}], v{16+j} offset:{(st%2)*16384 + (64*sis + 32*s + 16*rd)*128}", tag)
        c.wread = wread
        PB = 4
        c.barrier_at = lambda st: st == PB
        def on_P(a, st):
            if st % 2 == 1:
                for sg in range(4): a(f"v_add_u32 v{16+sg}, {B2[st+1] - B2[st-1]}, v{16+sg}")
            if self.o.get("trace2"): self.tr(f"2P{st}")
        c.on_P = on_P
        if self.o.get("trace2"): c.first_tok = lambda a: self.tr("2tok")
        if VW: c.prologue_mid = lambda a: self.visit("L_got2", "L_loop3", (0, 1, 2, 3))
        V = lambda s, tag: (lambda: a.vmem(s, tag))
        X = lambda s: (lambda: a(s))
        self.pre3 = o.get("pre3", 1 + E3)
        def extra(st):
            ex = []
            if st >= 1 and st < 5:
                ex += [(2 + 8*k, V(f"buffer_load_dword v{64+i}, v20, s[16:19], s{92+i//8} offen offset:{512*(i%8)} sc1", ("md",))) for k, i in enumerate(range(4*st-4, 4*st))]
            if st == 5: ex += [(2, V("buffer_load_dword v24, v22, s[16:19], s94 offen sc1", ("md",)))]
            if st == 6:
                k = 0
                for s3 in range(E3, self.pre3):
                    for i in range(7):
                        for fn in self.dma3(a, s3, i): ex.append((o.get("p0", 18) + o.get("pstep", 5)*k, fn))
                        k += 1
            return ex
        def fixed(st):
            if st != 7: return []
            L = [lambda: a.wait(vm=[("md",)])] + [X(f"v_add_f32 v{64+i}, v{64+i}, v{64+i+n}") for n in (8, 4, 2, 1) for i in range(n)]
            L += [X("v_mov_b32 v65, v64\ns_nop 0"), X("v_permlane32_swap_b32 v64, v65"), X("v_add_f32 v64, v64, v65"), X("v_add_f32 v24, v24, v64"), X("v_mov_b32 v25, v24\ns_nop 0"), X("v_permlane16_swap_b32 v24, v25")]
            return [(8 + k, f) for k, f in enumerate(L)]
        c.fixed = fixed
        adr = ("s_and_b32 s34, s82, 63\ns_lshl_b32 s34, s34, 15\ns_lshl_b32 s27, s81, 11\ns_add_u32 s34, s34, s27\n" + place("s34") +
               "s_bfe_u32 s35, s82, 0x40002\ns_lshl_b32 s35, s35, 4\ns_add_u32 s35, s35, s81\ns_lshl_b32 s35, s35, 1\ns_add_u32 s35, s35, s46\ns_lshl_b32 s35, s35, 7\n" + place("s35"))
        c.slots = lambda st: [(0, X(l), 1, 0) for l in adr.split()and adr.strip().split("\n")] if st == 2 else []
        c.extra = extra
        gemm16.mainloop(a, c)
        self.tr("2main")
        pk = lambda r: f"v[{r}:{r+1}]"
        a("s_nop 3")
        for tb in range(2):
            for u in range(2):
                x = 72 + 8*tb + 4*u
                for d in range(4):
                    r = accr(2*u + d//2, tb) + 2*(d % 2)
                    a(f"v_pk_add_f32 {pk(r+64)}, {pk(r)}, v[24:25] op_sel:[0,{tb}] op_sel_hi:[1,{tb}] neg_lo:[0,1] neg_hi:[0,1]")
                for d in range(4):
                    r = accr(2*u + d//2, tb) + 2*(d % 2) + 64
                    a(f"v_cvt_pk_bf16_f32 v{x+d}, v{r}, v{r+1}")
                a.vmem(f"buffer_store_dwordx4 v[{x}:{x+3}], v{9+tb}, s[8:11], s34 offen offset:{1024*u} sc1", ("hc",))
        for tb in range(2):
            rs = [accr(nb, tb) + h + 64 for nb in range(4) for h in (0, 2)]
            a(f"v_pk_mul_f32 {pk(26+2*tb)}, {pk(rs[0])}, {pk(rs[0])}")
            for r in rs[1:]: a(f"v_pk_fma_f32 {pk(26+2*tb)}, {pk(r)}, {pk(r)}, {pk(26+2*tb)}")
        a("v_add_f32 v26, v26, v27\nv_add_f32 v28, v28, v29\ns_nop 1\nv_permlane16_swap_b32 v26, v28\ns_nop 0\nv_add_f32 v26, v26, v28\nv_mov_b32 v28, v26\ns_nop 1\nv_permlane32_swap_b32 v26, v28\ns_nop 0\nv_add_f32 v26, v26, v28")
        a.vmem("buffer_store_dword v26, v23, s[16:19], s35 offen sc1", ("ss",))
        self.tr("2end")

    def phase3(self):
        a, o = self.a, self.o.get("k3", {})
        PKF, D, G0, PRE = o.get("pkf", 5), o.get("pfd", 4), o.get("g0", 0), o.get("pre", 2)
        a("L_ph3:")
        def hsave():
            for r in range(32): a(f"v_accvgpr_write_b32 a{HSAVE+r}, v{32+r}")
        rest3 = [self.dma3(a, s3, i) for s3 in range(self.pre3, PRE) for i in range(7)]
        if o.get("r3", "after") == "before": self.weave(hsave, rest3 + [[]]); rest3 = []
        else: hsave()
        a("s_lshl_b32 s21, s87, 15\n" + place("s21") + "s_mov_b32 s51, 4096")
        ws_srd(a, 12, WS_HH, 16<<20); psrd(a, 40, P_WD, 7340032)
        a("s_lshl_b32 s38, s87, 10\n" + place("s38") + "v_lshlrev_b32 v14, 2, v0")
        a(f"s_lshr_b32 s36, s2, 3\ns_lshl_b32 s36, s36, 1\ns_add_u32 s36, s36, s47\ns_add_u32 s36, s36, {64*D}\ns_mul_i32 s36, s36, 7168\ns_and_b32 s37, s2, 3\ns_mul_i32 s37, s37, 1792\ns_add_u32 s36, s36, s37\ns_and_b32 s37, s2, 4\ns_mul_i32 s37, s37, 224\ns_add_u32 s36, s36, s37")
        a(f"s_lshr_b32 s37, s2, 3\ns_mul_i32 s37, s37, {112*2048}\ns_and_b32 s27, s2, 7\ns_lshl_b32 s27, s27, 2\ns_add_u32 s27, s27, s20\ns_lshl_b32 s27, s27, 10\ns_add_u32 s37, s37, s27")
        W0 = o.get("w0", 5)
        a(f"s_add_u32 s48, s36, {(15-D)*64*7168}\ns_mov_b32 s49, s37\ns_add_u32 s50, s37, {6*32768}\ns_sub_u32 s37, s37, {W0*32768}")
        a("v_min_u32 v1, 6, v0\nv_lshlrev_b32 v1, 7, v1\nv_min_u32 v15, 7, v0\nv_lshlrev_b32 v15, 7, v15"); assert W0 <= 5
        hhb = ("s_lshl_b32 s99, s87, 17\ns_lshr_b32 s27, s25, 4\ns_mul_i32 s27, s27, 57344\ns_add_u32 s99, s99, s27\ns_and_b32 s27, s25, 15\ns_lshl_b32 s27, s27, 9\ns_add_u32 s99, s99, s27\n"
               "s_add_u32 s96, s99, s27\ns_add_u32 s99, s99, 49152\n" + place("s96") + place("s99") + "s_add_u32 s97, s96, 32768\ns_add_u32 s98, s96, 65536")
        a(f"s_and_b32 s35, s2, 1\ns_mul_i32 s92, s35, {1792*2048}\ns_lshl_b32 s27, s81, 7\ns_add_u32 s92, s92, s27\ns_mul_i32 s27, s20, {112*2048}\ns_add_u32 s92, s92, s27\ns_add_u32 s93, s92, s27")
        a("s_lshl_b32 s95, s20, 13\ns_and_b32 s28, s82, 63\ns_lshl_b32 s28, s28, 17\ns_mul_i32 s27, s35, 57344\ns_add_u32 s28, s28, s27\n" + place("s28"))
        a(f"s_and_b32 s34, s80, 6\ns_add_u32 s34, s34, s35\ns_lshl_b32 s34, s34, 8\ns_bfe_u32 s27, s82, 0x20002\ns_lshl_b32 s27, s27, 2\ns_add_u32 s34, s34, s27")
        a(f"v_and_b32 v20, 1, v0\nv_lshl_add_u32 v20, v20, 7, s34\nv_and_b32 v21, 6, v0\nv_lshl_or_b32 v20, v21, 10, v20\nv_and_b32 v21, 8, v0\nv_lshl_or_b32 v20, v21, 11, v20\ns_xor_b32 s27, s100, 128\ns_sub_u32 s27, s27, s101")
        a("v_mov_b32 v21, s27\nv_cmp_gt_u32 vcc, 16, v0\ns_nop 1\nv_cndmask_b32 v20, v21, v20, vcc\nv_accvgpr_write_b32 a222, v20")
        a(f"s_mov_b32 s63, s3\ns_sub_u32 s62, s3, {1<<20}\ns_xor_b32 s61, s3, {(2<<20) + 8192}\ns_xor_b32 s60, s62, {(2<<20) + 8192}")
        for r in range(4): a(f"v_accvgpr_write_b32 a{224+r}, -1")
        if True:
            sg = a
            sg(f"s_lshr_b32 s27, s{P_WD}, 7\ns_sub_u32 s27, 3, s27\ns_and_b32 s27, s27, 7\ns_lshl_b32 s55, s27, 7\ns_and_b32 s35, s2, 1\ns_mul_i32 s35, s35, {1792*2048}\ns_add_u32 s55, s55, s35")
            sg("s_lshr_b32 s27, s27, 1\ns_lshr_b32 s35, s81, 1\ns_sub_u32 s27, s35, s27\ns_sub_u32 s27, s27, 1\ns_and_b32 s27, s27, 3\ns_lshl_b32 s27, s27, 1\ns_lshr_b32 s35, s35, 2\ns_add_u32 s27, s27, s35")
            sg("s_lshl_b32 s27, s27, 2\ns_and_b32 s35, s80, 3\ns_add_u32 s27, s27, s35\ns_lshl_b32 s27, s27, 2\ns_add_u32 s27, s27, s20")
            sg("s_cmp_ge_u32 s27, 96\ns_cselect_b32 s27, 256, s27\nv_mul_u32_u24 v28, 96, v0\nv_add_u32 v28, s27, v28\nv_cmp_gt_u32 vcc, 256, v28")
            sg("v_bfe_u32 v29, v28, 5, 2\nv_mul_u32_u24 v29, 112, v29\nv_and_b32 v30, 31, v28\nv_add_u32 v29, v29, v30\nv_lshlrev_b32 v29, 11, v29")
            sg("v_bfe_u32 v30, v28, 4, 3\nv_mul_u32_u24 v30, 112, v30\nv_and_b32 v31, 15, v28\nv_add_u32 v30, v30, v31\nv_lshlrev_b32 v30, 11, v30")
            sg("v_bfe_u32 v28, v28, 7, 1\nv_lshl_add_u32 v29, v28, 10, v29\nv_lshl_add_u32 v30, v28, 10, v30\nv_mov_b32 v31, 0x7ffffff0\nv_cndmask_b32 v28, v31, v29, vcc\nv_cndmask_b32 v29, v31, v30, vcc")
            a(self.rdaddr24(16))
            for k, r in enumerate((16, 17, 18, 19, 28, 29)): a(f"v_accvgpr_write_b32 a{216+k}, v{r}")
        a("s_lshr_b32 s34, s26, 1\ns_lshl_b32 s34, s34, 8\ns_and_b32 s35, s26, 1\ns_lshl_b32 s35, s35, 10\ns_or_b32 s34, s34, s35")
        a("v_and_b32 v31, 1, v0\nv_lshl_add_u32 v31, v31, 7, s34\nv_and_b32 v29, 2, v0\nv_lshl_or_b32 v31, v29, 8, v31\nv_and_b32 v29, 12, v0\nv_lshl_or_b32 v31, v29, 9, v31\nv_and_b32 v29, 16, v0\nv_lshl_or_b32 v31, v29, 10, v31")
        self.signal(3, ("ss",))
        for g in rest3: self.group(g)
        VW = self.o.get("vw", 0)
        if not VW: self.visit("L_loop3", "L_done", (1, 2, 3)); a(hhb)
        self.await_(3)
        self.tr("3start")
        c = gemm16.Cfg()
        c.TB, c.NB, c.SPS, c.NST, c.NDMA = 4, 14, 1, 16, 7
        c.TR = 2; c.BODY = 2; c.LA, c.WR = 2, 4; c.PRE = PRE
        c.PBACK = 16; c.LDS2 = False; c.first_zero = True
        accr = lambda j, tb: 32 + 4*(4*j+tb)
        c.acc = lambda j, tb: f"v[{accr(j,tb)}:{accr(j,tb)+3}]"
        c.tokreg = lambda sl, tb, s: f"a[{32+32*sl+8*tb+4*s}:{32+32*sl+8*tb+4*s+3}]"
        c.wreg = lambda sl, s: f"a[{8*sl+4*s}:{8*sl+4*s+3}]"
        c.dma = self.dma3
        def tok(a, t, tb, s, sl=None):
            f = []
            if t % 2 == 0 and tb == 0 and s == 0 and t > 0: f.append(lambda: a("s_add_u32 s21, s21, s51\ns_xor_b32 s51, s51, 8192"))
            f.append(lambda: a.vmem(f"buffer_load_dwordx4 {c.tokreg(t % 2 if sl is None else sl, tb, s)}, v{9+tb}, s[8:11], s21 offen offset:{1024*((2*t+s)%4)} {self.o.get('tokfl', 'sc1')}", ("tok", t, tb, s)))
            return f
        c.tok = tok
        woff = lambda st, j, s, rd: (st%2)*32768 + (j%2)*14336 + (32*s + 16*rd)*224 + (j//2)*32
        def wread(a, st, sis, j, s, rd, sl, tag):
            lo = 8*sl + 4*s + 2*rd
            a.lds(f"ds_read_b64_tr_b16 a[{lo}:{lo+1}], v13 offset:{woff(st, j, s, rd)}", tag)
        c.wread = wread
        def on_P(a, st):
            if st % 2 == 1: a("v_xor_b32 v13, 0x10000, v13")
            self.tr(f"3P{st}", 3)
        c.on_P = on_P
        c.first_tok = lambda a: self.tr("3tok")
        c.fine0 = o.get("fine0", 1); c.unchain0 = self.o.get("unch", 0)
        def marker(a):
            for k in range(4): a.vmem(f"buffer_store_dwordx4 a[224:227], v9, s[16:19], s{60+k} offen sc1", ("xclr",))
        MK = o.get('mk', 'p1')
        if VW: c.prologue_mid = lambda a: (self.visit("L_loop3", "L_done", (0, 1, 2, 3)), a(hhb))
        c.pos_by_stage = True
        lz = PRE == 1
        if lz: c.lazy1 = lambda i: 4*i
        c.tokpos = lambda i, st: o.get('t13', (30, 3))[0] + o.get('t13', (30, 3))[1]*i if st == 13 else o.get('t0', 4) + 4*i if st == 0 and not lz else 30 + 4*i if st == 0 and lz else 4 + 4*i
        c.dmapos = lambda i, st: 4*i if st == 13 else 62 + 4*i if st == 0 and lz else 36 + 8*i
        c.drain_at = lambda st: st == 13
        V = lambda s, tag: (lambda: a.vmem(s, tag))
        X = lambda s: (lambda: a(s))
        def extra(st):
            ex = []; g = o.get("pfgap", 90)
            if D < 16 and G0 <= st < 12:
                ex += [(g, V("buffer_load_dword a250, v1, s[4:7], s36 offen", ("pf",))), (g+2, X(f"s_add_u32 s36, s36, {64*7168}")), (g+2, X("s_min_u32 s36, s36, s48"))]
            if 1 <= st < 12:
                ex += [(g-4, X("s_add_u32 s37, s37, 32768")), (g-4, X("s_max_i32 s39, s37, s49")), (g-4, X("s_min_u32 s39, s39, s50")), (g, V("buffer_load_dword a251, v15, s[40:43], s39 offen", ("pf",)))]
            if MK == 'p3m' and st in (1, 12):
                ex += [(g_, V(f"buffer_store_dwordx4 a[224:227], v9, s[16:19], s{60 + k + (2 if st == 12 else 0)} offen sc1", ("xclr",))) for k, g_ in enumerate((33, 41))]
            if st == o.get("ssst", 0):
                for i in range(16): ex.append((o.get("ss0", 38) + o.get("ssd", 4)*i, V(f"buffer_load_dword v{16+i}, v14, s[16:19], s38 offen offset:{256*i} sc1", ("ss",))))
            if st == 12: ex += [(90, f) for f in self.code_touch("c", "L_ph4", "L_code_end", 56, 14, 2)]
            if st == 13:
                for i in range(8):
                    for fn in tok(a, 15, i//2, i%2, 2): ex.append((o.get('t15', (56, 3))[0] + o.get('t15', (56, 3))[1]*i, fn))
            return ex
        c.extra = extra
        pre = Asm()
        for st_ in (8, 4, 2, 1):
            for i in range(st_): pre(f"v_add_f32 v{16+i}, v{16+i}, v{16+i+st_}")
        pre("v_mov_b32 v17, 0x3727c5ac\nv_fmac_f32 v17, 0x3a800000, v16\nv_sqrt_f32 v24, v17\nv_rsq_f32 v16, v17\nv_mul_f32 v16, 0xbfb8aa3b, v16")
        for b in (16, 24):
            pre(f"v_mov_b32 v{b+4}, v{b}\nv_permlane32_swap_b32 v{b}, v{b+4}\nv_mov_b32 v{b+2}, v{b}\nv_mov_b32 v{b+6}, v{b+4}")
            pre(f"v_permlane16_swap_b32 v{b}, v{b+2}\nv_permlane16_swap_b32 v{b+4}, v{b+6}")
        late = Asm()
        late("v_and_b32 v2, 15, v0\nv_lshlrev_b32 v2, 4, v2\nv_bfe_u32 v3, v0, 4, 1\nv_lshlrev_b32 v3, 18, v3\nv_lshrrev_b32 v4, 5, v0\nv_lshlrev_b32 v4, 8, v4\nv_add3_u32 v2, v2, v3, v4")
        late("v_add_u32 v3, 524288, v2\nv_accvgpr_read_b32 v8, a222\nv_accvgpr_read_b32 v1, a223\nv_add_u32 v15, 262144, v1")
        late(self.voff24(4, not self.o.get('perm', 0)))
        def idle(st):
            if st == 13: return [(40, X("\n".join(late.lines[k:k+2]))) for k in range(0, len(late.lines), 2)]
            if st != o.get("prest", 12): return []
            L = [X("\n".join(pre.lines[k:k+2])) for k in range(0, 14, 2)] + [X(l + ("\ns_nop 0" if l.startswith("v_mov") else "")) for l in pre.lines[14:]]
            return [(o.get("preg", 0), lambda: a.wait(vm=[("ss",)]))] + [(0, f) for f in L]
        c.idle = idle
        def gate_ops(fb, tb):
            g = accr(2*fb, tb); L = []
            if fb >= PKF:
                L += [(f"v_pk_mul_f32 v[{g+2*h}:{g+2*h+1}], v[{g+2*h}:{g+2*h+1}], v[{16+2*tb}:{17+2*tb}] op_sel_hi:[1,0]", 4) for h in range(2)]
                L += [(f"v_exp_f32 v{g+r}, v{g+r}", 8) for r in range(4)]
                L += [(f"v_pk_fma_f32 v[{g+2*h}:{g+2*h+1}], v[{g+2*h}:{g+2*h+1}], v[{24+2*tb}:{25+2*tb}], v[{24+2*tb}:{25+2*tb}] op_sel_hi:[1,0,0]", 4) for h in range(2)]
            else:
                L += [(f"v_mul_f32 v{g+r}, v{16+2*tb}, v{g+r}", 4) for r in range(4)]
                L += [(f"v_exp_f32 v{g+r}, v{g+r}", 8) for r in range(4)]
                L += [(f"v_fma_f32 v{g+r}, v{g+r}, v{24+2*tb}, v{24+2*tb}", 4) for r in range(4)]
            return L + [(f"v_rcp_f32 v{g+r}, v{g+r}", 8) for r in range(4)]
        PERM = self.o.get("perm", 0)
        def fin_ops(fb, tp):
            if PERM and fb < 6:
                L = []
                for tb in (2*tp, 2*tp+1):
                    g, u, d = accr(2*fb, tb), accr(2*fb+1, tb), accr(2*(fb & 6)+1, tb)
                    if fb >= PKF: L += [(f"v_pk_mul_f32 v[{g+2*h}:{g+2*h+1}], v[{g+2*h}:{g+2*h+1}], v[{u+2*h}:{u+2*h+1}]", 4) for h in range(2)]
                    else: L += [(f"v_mul_f32 v{g+r}, v{g+r}, v{u+r}", 4) for r in range(4)]
                    L += [(f"v_cvt_pk_bf16_f32 v{d+2*(fb%2)+h}, v{g+2*h}, v{g+2*h+1}", 4) for h in range(2)]
                    if fb % 2: L += [(f"buffer_store_dwordx4 v[{d}:{d+3}], v{(1, 15, 17, 19)[tb]}, s[12:15], s{96 + fb//2} offen sc1", 4)]
                return L
            gs = [accr(2*fb, 2*tp+x) for x in range(2)]; us = [accr(2*fb+1, 2*tp+x) for x in range(2)]; d = us[0]; L = []
            for x in range(2):
                if fb >= PKF: L += [(f"v_pk_mul_f32 v[{gs[x]+2*h}:{gs[x]+2*h+1}], v[{gs[x]+2*h}:{gs[x]+2*h+1}], v[{us[x]+2*h}:{us[x]+2*h+1}]", 4) for h in range(2)]
                else: L += [(f"v_mul_f32 v{gs[x]+r}, v{gs[x]+r}, v{us[x]+r}", 4) for r in range(4)]
            return L + [(f"v_cvt_pk_bf16_f32 v{d}, v{gs[0]}, v{gs[0]+1}", 4), (f"v_cvt_pk_bf16_f32 v{d+2}, v{gs[1]}, v{gs[1]+1}", 4),
                  (f"v_cvt_pk_bf16_f32 v{d+1}, v{gs[0]+2}, v{gs[0]+3}", 4), (f"v_cvt_pk_bf16_f32 v{d+3}, v{gs[1]+2}, v{gs[1]+3}", 4), ("s_nop 0", 4),
                  (f"v_permlane16_swap_b32 v{d}, v{d+2}", 8), (f"v_permlane16_swap_b32 v{d+1}, v{d+3}", 8),
                  (f"buffer_store_dwordx4 v[{d}:{d+3}], v{2+tp}, s[12:15], s{96 + fb//2} offen offset:{512*(fb%2)} sc1", 4)]
        c.NRUN = 14
        twreg = lambda sl, s: 132 + 16*sl + 4*s
        def tread(j, s, rd):
            lo = twreg(j % 3, s) + 2*rd
            return lambda: a.lds(f"ds_read_b64_tr_b16 a[{lo}:{lo+1}], v13 offset:{woff(s//2, j, s%2, rd)}", ("tw", j))
        treads = lambda j: [tread(j, s, rd) for s in range(4) for rd in range(2)]
        c.tail_reads = treads(0)
        c.P_wait = lambda st: [("dma", 15)] if st == 13 else []
        marks, _ = gemm16.mainloop(a, c)
        self.info.append(roll(a, marks, "L_loop3", "s24"))
        q = []
        for fb in range(7):
            for tp in range(2):
                if fb > 0: q += [([(2*fb-1, 2*tp), (2*fb-1, 2*tp+1)], l, cst) for l, cst in fin_ops(fb-1, tp)]
            for tb in range(4): q += [([(2*fb, tb)], l, cst) for l, cst in gate_ops(fb, tb)]
        for tp in range(2): q += [([(13, 2*tp), (13, 2*tp+1)], l, cst) for l, cst in fin_ops(6, tp)]
        self.nstg = self.o.get("k4", {}).get("stg", 0)
        dq = [fn for st in range(3 + self.nstg) for i in range(8) for fn in self.dma4(a, st, i, "p4")]
        def emit(l):
            if l.startswith("buffer_store"): a.vmem(l, ("hh", self.nhh//2)); self.nhh += 1
            else: a(l)
        self.nhh = 0; P4, C4 = o.get("p4", 220), o.get("c4", 999); assert not self.nstg
        self.tok0 = self.o.get("k4", {}).get("tok0", 4)
        tq = [self.tok4(a, t, i//2, i%2, "p4") for t in range(self.tok0) for i in range(4)]
        done = {}; rq = []
        for j in range(14):
            if j + 1 < 14: rq += treads(j + 1)
            for m in range(16):
                tb, s = divmod(m, 4); s = s if tb % 2 == 0 else 3 - s
                if m == 0: a.wait(vm=[("tok", t, x, y) for t in (14, 15) for x in range(4) for y in range(2)] if j == 0 else [], lg=[("tw", j)])
                a(f"v_mfma_f32_16x16x32_bf16 {c.acc(j, tb)}, a[{twreg(j%3, s)}:{twreg(j%3, s)+3}], {c.tokreg(2*(s//2), tb, s%2)}, {c.acc(j, tb)}")
                if m % 4 == 3: done[(j, tb)] = a.mark()
                credit = o.get("strict", 16) - (4 if m == 15 else 0)
                if rq and m < 12 and (m % 3 != 2): rq.pop(0)(); credit -= 4
                if dq and m in o.get("dslots", (2, 5, 8, 13)): dq.pop(0)(); credit -= 4
                if (j, m) == (o.get("f4", 9), 12): self.progress(4, ("hh", 1)); credit = 0
                if 16*j + m == P4: a.vmem("buffer_load_dword v12, v8, s[16:19], s101 offen sc1", ("poll",)); credit -= 4
                if 16*j + m == C4: self.check(4, ("poll",)); credit = 0
                if 16*j + m > C4 and m % 4 == 2 and len(tq) > 4*self.tok0 - 16: self.group(tq.pop(0)); credit -= 4
                while q and credit >= q[0][2] and all(n in done and a.mark() - done[n] >= 8 for n in q[0][0]):
                    _, l, cst = q.pop(0); emit(l); credit -= cst
            assert not rq
        assert not dq
        self.tr("3main")
        k0 = int(len(q)*o.get("chk", 0.2)) if C4 > 223 else 0; nq = len(q); nt_ = len(tq)
        for k, (need, l, cst) in enumerate(q):
            gap = min(a.mark() - done[n] for n in need)
            if gap < 8: a(f"s_nop {7 - gap}"); done = {k_: -99 for k_ in done}
            if k == P4 - 224: a.vmem("buffer_load_dword v12, v8, s[16:19], s101 offen sc1", ("poll",))
            if k == k0 and C4 > 223: self.check(4, ("poll",))
            while tq and k >= k0 and (nt_ - len(tq)) * (nq - k0 - 12) <= (k - k0) * nt_: self.group(tq.pop(0))
            emit(l)
        assert not tq
        self.progress(5, ("hh", 3))
        self.tr("3end")
        a.vm = [x[1:] if x[0] == "p4" else ("old", x) for x in a.vm]; a.lg = [("old", x) for x in a.lg]

    def progress(self, val, tag):
        a = self.a; assert a.vm.count(tag) == 2
        a.wait(vm=[tag] + [x for x in (("prog",), ("old", ("prog",))) if x in a.vm]); a(f"v_mov_b32 v14, {val}")
        a.vmem("buffer_store_dword v14, off, s[16:19], s100 sc1", ("prog",))
    def check(self, val, tag):
        a, t = self.a, self.tail
        a.wait(vm=[tag])
        a(f"v_cmp_gt_u32 vcc, {val}, v12\ns_nop 0\ns_cbranch_vccnz L_spin{val}\nL_rdy{val}:")
        t(f"L_spin{val}:\ns_mov_b32 s27, {SPIN}\nL_spin{val}b:\n" + (f"s_sleep {self.o['psleep']}\n" if self.o.get("psleep") else "") + f"buffer_load_dword v12, v8, s[16:19], s101 offen sc1\ns_waitcnt vmcnt(0)\nv_cmp_gt_u32 vcc, {val}, v12\ns_sub_u32 s27, s27, 1")
        t(f"s_cbranch_vccz L_rdy{val}\ns_cmp_lg_u32 s27, 0\ns_cbranch_scc1 L_spin{val}b\ns_branch L_rdy{val}")
    R4 = [0, 32768, 131072, 65536, 98304]
    T4 = [64, 80, 0, 16, 32]
    def dma4(self, a, st, i, pfx=None):
        f = []; tag = (pfx, "dma", st) if pfx else ("dma", st)
        if i == 0:
            if st == 12 and self.o.get("perm", 0):
                f += [(lambda l=l: a(l)) for l in ("v_lshrrev_b32 v5, 5, v0", "v_lshl_add_u32 v4, v5, 13, v4", f"v_add_u32 v5, {112*2048 - 1024}, v4", f"v_add_u32 v6, {4*2048 - 2048}, v4", f"v_add_u32 v7, {116*2048 - 3072}, v4")]
            elif st == 12: f += [lambda: a(f"v_add_u32 v5, {96*2048}, v5"), lambda: a(f"v_add_u32 v7, {96*2048}, v7")]
            f += [lambda: a(f"s_add_u32 s94, s92, {((st%4)*448 + (st//4)*32)*2048}" if st < 12 else f"s_add_u32 s94, s93, {((st-12)*896 + 96)*2048}"), lambda: a("s_xor_b32 s85, s94, 128")]
        if pfx and st >= 3:
            r = 64*(st - 3) + 4*i
            return f + [lambda: a.vmem(f"buffer_load_dwordx4 a[{r}:{r+3}], v{4+i%4}, s[40:43], {'s85' if i < 4 else 's94'} offen offset:{1024*(i%4)}", tag)]
        if i % 4 == 0: f.append(lambda: a(f"s_add_u32 m0, s95, {self.R4[st%5] + 1024*i}"))
        f.append(lambda: a.vmem(f"buffer_load_dwordx4 v{4+i%4}, s[40:43], {'s85' if i < 4 else 's94'} offen offset:{1024*(i%4)} lds", tag))
        return f
    def tok4(self, a, t, tb, s, pfx=None):
        f = []; tag = (pfx, "tok", t, tb, s) if pfx else ("tok", t, tb, s); r = self.T4[t % 5] + 8*tb + 4*s
        if t % 2 == 0 and tb == 0 and s == 0 and t > 0: f.append(lambda: a(f"s_add_u32 s28, s28, {4096 if t % 4 else 12288}"))
        f.append(lambda: a.vmem(f"buffer_load_dwordx4 a[{r}:{r+3}], v{1 if tb == 0 else 15}, s[12:15], s28 offen offset:{1024*((2*t+s)%4)} sc1", tag))
        return f

    def phase4(self):
        a, t, o = self.a, self.tail, self.o.get("k4", {})
        a("L_ph4:")
        for k, r in enumerate((16, 17, 18, 19, 28, 29)): a(f"v_accvgpr_read_b32 v{r}, a{216+k}")
        a("s_add_u32 s27, s95, 65536\nv_add_u32 v20, s27, v9")
        a.wait(vm=[("dma", 2 + self.nstg)]); a("s_barrier")
        c = gemm16.Cfg()
        c.TB, c.NB, c.SPS, c.NST, c.NDMA = 2, 8, 2, 14, 8
        c.PRE = 3 + self.nstg; c.LEAD = 3; c.TR = 5; c.TLEAD = o.get("tlead", 3); c.TOKPRE = self.tok0; c.BODY = 14
        c.LA = o.get("LA", 3); c.WR = 4; c.WPAIR = o.get("wpair", 0); c.PBACK = 4*c.LA; c.LDS2 = False; c.first_zero = True; c.unchain0 = self.o.get("unch", 0)
        assert c.TLEAD <= c.TOKPRE <= c.TR
        accr = lambda j, tb: 32 + 4*(2*j+tb)
        c.acc = lambda j, tb: f"v[{accr(j,tb)}:{accr(j,tb)+3}]"
        c.tokreg = lambda sl, tb, s: f"a[{self.T4[sl]+8*tb+4*s}:{self.T4[sl]+8*tb+4*s+3}]"
        c.wreg = lambda sl, s: f"a[{132+8*sl+4*s}:{135+8*sl+4*s}]"
        c.dma, c.tok = self.dma4, self.tok4
        def wread(a, st, sis, j, s, rd, sl, tag):
            lo = 132 + 8*sl + 4*s + 2*rd
            a.lds(f"ds_read_b64_tr_b16 a[{lo}:{lo+1}], v{16+j%4} offset:{(self.R4[st%5] & 32768) + (2*sis + s)*8192 + (j//4)*4096 + rd*2048}", tag)
        c.wread = wread
        def on_P(a, st):
            d = (self.R4[(st+1)%5] & ~32768) - (self.R4[st%5] & ~32768)
            if d:
                for sg in range(4): a(f"v_add_u32 v{16+sg}, {d & 0xffffffff}, v{16+sg}")
            self.tr(f"4P{st}", 4)
        c.on_P = on_P
        def pre_P(a, st):
            if 3 <= st + 1 < c.PRE:
                assert a.lg.count(("stg", st + 1)) == 8
                a.wait(lg=[("stg", st + 1)])
        c.pre_P = pre_P
        c.first_tok = lambda a: self.tr("4start")
        c.tokpos = lambda i: 1 + 8*i
        c.pos_by_stage = True
        c.tokpos = lambda i, st: 1 + 8*i
        c.dmapos = lambda i, st: 6*i if st == 0 else o.get('dp', (-8, 7))[0] + o.get('dp', (-8, 7))[1]*i
        RATE = o.get("rate", 8.9)
        if RATE: c.dma_at = lambda s, i: max(0, 64*(c.PRE - 3) - c.PBACK) + int((8*(s - c.PRE) + i)*RATE)
        V = lambda s, tag: (lambda: a.vmem(s, tag))
        X = lambda s: (lambda: a(s))
        SG = o.get("sgl", 1)
        setup = Asm(); setup(self.rowmajor24(24, 26)); psrd(setup, 8, P_OUT, 4<<20)
        FULL = o.get("full", 0)
        if FULL: setup(f"v_bfe_u32 v26, v0, 3, 1\nv_mul_u32_u24 v26, {16384 - 64}, v26\nv_sub_u32 v24, v24, v26\nv_sub_u32 v25, v25, v26\ns_add_u32 s87, s86, 16384")
        setup("s_xor_b32 s48, s60, 4096\ns_xor_b32 s49, s61, 4096\ns_xor_b32 s50, s62, 4096\ns_xor_b32 s51, s63, 4096")
        def extra(st):
            ex = []; u = st + 3 + SG
            if SG and c.PRE <= u < 14:
                off = ((u%4)*448 + (u//4)*32)*2048 if u < 12 else ((u-12)*896 + 96)*2048
                ex += [(46, X(f"s_add_u32 s53, s55, {off}")), (46, V(f"buffer_load_dword a250, v{28 if u < 12 else 29}, s[40:43], s53 offen", ("sg",)))]
            if st == 0:
                ex += [(o.get("w0", 4) + o.get("wstep", 8)*k, (lambda k=k: a.lds(f"ds_write_b128 v20, a[{64*(k//8) + 4*(k%8)}:{64*(k//8) + 4*(k%8) + 3}] offset:{32768*(k//8) + 1024*(k%8)}", ("stg", 3 + k//8)))) for k in range(8*self.nstg)]
            if st == o.get("f6", 2): ex += [(40, lambda: self.progress(6, ("old", ("hh", 6))))]
            for val, t1 in ((5, 8), (6, 16)):
                g = (t1 - c.TLEAD)*32
                pl = o.get("pl", (60, 90))[val - 5]
                if st == (g - pl)//64: ex += [((g - pl) % 64, V("buffer_load_dword v12, v8, s[16:19], s101 offen sc1", ("poll", val)))]
                if st == g//64: ex += [(g % 64, lambda val=val: self.check(val, ("poll", val)))]
            pass
            return ex
        c.extra = extra
        c.slots = lambda st: [(0, X(l), 1, 0) for l in setup.lines] if st == 11 else []
        c.NRUN = 13
        order = [(sis, j) for h in range(2) for j in range(4*h, 4*h+4) for sis in range(2)]
        nb0 = 13*16
        treads = lambda k: [(lambda s=s, rd=rd: wread(a, 13, order[k][0], order[k][1], s, rd, (nb0 + k) % 4, ("tw", k))) for s in range(2) for rd in range(2)]
        c.tail_reads = [f for k in range(c.LA) for f in treads(k)]
        gemm16.mainloop(a, c)
        SX, RX = 96, 112
        sq = []
        for j in range(4):
            for d in range(4): sq.append((j, f"v_cvt_pk_bf16_f32 v{SX+4*j+d}, v{32+8*j+2*d}, v{33+8*j+2*d}"))
            sq.append((j, f"buffer_store_dwordx4 v[{SX+4*j}:{SX+4*j+3}], v9, s[16:19], s{60+j} offen sc1"))
        done = {}
        for k, (sis, j) in enumerate(order):
            rq = treads(k + c.LA) if k + c.LA < 16 else []
            for m in range(4):
                tb = m // 2; s = (m % 2) ^ tb
                if m == 0: a.wait(vm=[("tok", 26 + sis, x, y) for x in range(2) for y in range(2)], lg=[("tw", k)])
                a(f"v_mfma_f32_16x16x32_bf16 {c.acc(j, tb)}, {c.wreg((nb0 + k) % 4, s)}, {c.tokreg((26 + sis) % 5, tb, s)}, {c.acc(j, tb)}")
                if sis == 1 and m == 3: done[j] = a.mark()
                if rq: rq.pop(0)()
                if sq and sq[0][0] in done and a.mark() - done[sq[0][0]] >= 8: a(sq.pop(0)[1])
        assert not sq
        self.tr("4main")
        recv = lambda: [a(f"buffer_load_dwordx4 v[{RX+4*j}:{RX+4*j+3}], v9, s[16:19], s{48+j} offen sc1") for j in range(4)]
        pk = lambda r: f"v[{r}:{r+1}]"
        R0 = o.get("r0", 16)
        for r in range(0, 32, 2):
            if r == R0: recv()
            a(f"v_accvgpr_read_b32 v20, a{HSAVE+r}\nv_accvgpr_read_b32 v21, a{HSAVE+r+1}\nv_pk_add_f32 {pk(64+r)}, {pk(64+r)}, v[20:21]")
        if R0 >= 32: recv()
        a(f"s_waitcnt vmcnt(0)\ns_mov_b32 s27, {SPIN}\nL_chk4:")
        umax(a, 20, range(RX, RX + 16))
        a("v_cmp_eq_u32 vcc, -1, v20\ns_sub_u32 s27, s27, 1\ns_cbranch_vccz L_ok4\ns_cmp_eq_u32 s27, 0\ns_cbranch_scc1 L_ok4")
        recv(); a("s_waitcnt vmcnt(0)\ns_branch L_chk4\nL_ok4:")
        self.tr("4got")
        for tb in range(2):
            for u in range(2):
                x = SX + 8*tb + 4*u
                for d in range(4):
                    r = accr(4 + 2*u + d//2, tb) + 2*(d % 2); p = RX + (r - 64)//2
                    a(f"v_lshlrev_b32 v20, 16, v{p}\nv_and_b32 v21, 0xffff0000, v{p}\nv_pk_add_f32 {pk(r)}, {pk(r)}, v[20:21]\nv_cvt_pk_bf16_f32 v{x+d}, v{r}, v{r+1}")
                a(f"s_nop 1\nv_permlane16_swap_b32 v{x}, v{x+2}\nv_permlane16_swap_b32 v{x+1}, v{x+3}")
                if not FULL: a(f"buffer_store_dwordx4 v[{x}:{x+3}], v{24+tb}, s[8:11], s86 offen offset:{64*u} {o.get('stfl', 'sc1 nt')}")
            if FULL:
                x = SX + 8*tb; y = 32 + 8*tb
                for d in range(4): a(f"v_mov_b32 v{y+d}, v{x+d}")
                for d in range(4): a(f"v_mov_b32_dpp v{y+d}, v{x+4+d} row_ror:8 row_mask:0xf bank_mask:0xc")
                a(f"buffer_store_dwordx4 v[{y}:{y+3}], v{24+tb}, s[8:11], s86 offen {o.get('stfl', 'sc1 nt')}")
                for d in range(4): a(f"v_mov_b32_dpp v{x+4+d}, v{x+d} row_ror:8 row_mask:0xf bank_mask:0x3")
                a(f"buffer_store_dwordx4 v[{x+4}:{x+7}], v{24+tb}, s[8:11], s87 offen {o.get('stfl', 'sc1 nt')}")
        self.tr("4end")
        if self.o.get("trace"): a("s_waitcnt vmcnt(0)"); self.tr("4ack")

def roll2(a, marks, label, sreg):
    blocks = [a.lines[marks[i]:marks[i+1]] for i in range(len(marks)-1)]
    out = a.lines[:marks[0]]; i = 0; info = []
    while i < len(blocks):
        j = i
        while j + 1 < len(blocks) and blocks[j+1] == blocks[i]: j += 1
        n = j - i + 1
        if n > 1: out += [f"s_mov_b32 {sreg}, {n}", f"{label}_{i}:"] + blocks[i] + [f"s_sub_u32 {sreg}, {sreg}, 1", f"s_cmp_lg_u32 {sreg}, 0", f"s_cbranch_scc1 {label}_{i}"]
        else: out += blocks[i]
        info.append(n); i = j + 1
    a.lines = out + a.lines[marks[-1]:]
    return info

def sizes(lines):
    import subprocess, re, tempfile, os
    stub = sorted({m for l in lines for m in re.findall(r"L_visit\d+", l)})
    d = tempfile.mkdtemp()
    open(d + "/x.s", "w").write('.amdgcn_target "amdgcn-amd-amdhsa--gfx950"\n.text\n' + "\n".join(l for l in lines if not l.startswith(".p2align")) + "\n" + "".join(x + ":\n" for x in stub) + "L_code_end:\n")
    subprocess.run(["clang", "-x", "assembler", "-target", "amdgcn-amd-amdhsa", "-mcpu=gfx950", "-c", d + "/x.s", "-o", d + "/x.o"], check=True)
    dis = subprocess.run(["llvm-objdump", "-d", "-z", "--mcpu=gfx950", d + "/x.o"], capture_output=True, text=True).stdout
    sz = [4*len(m.group(1).split()) for m in re.finditer(r"// [0-9A-F]{12}: ([0-9A-F ]+)", dis)]
    out = []; k = 0
    for l in lines:
        if l.endswith(":") or l.startswith("."): out.append(0)
        else: out.append(sz[k]); k += 1
    assert k == len(sz)
    return out
def page_stubs(g):
    a, t = g.a, g.tail
    sz = sizes(a.lines + t.lines)
    out = []; off = None; page = 0; pos = {}; stubs = []
    for i, l in enumerate(a.lines):
        if l == "L_go:": off = 0
        if l.endswith(":"): pos[l[:-1]] = len(out)
        if off is not None and off >= 4096*page and sz[i] and l != "s_endpgm" and not a.lines[i-1].startswith("L_pc"):
            assert off < 4096*page + 56
            stubs.append(len(out)); out += [f"L_pg{page}:", "s_cbranch_execz L_vret"]; off += 4; page += 1
        out.append(l)
        if off is not None: off += sz[i]
    a.lines = out
    near = Asm(); near("L_vret:\ns_setpc_b64 s[98:99]")
    for k, (first, last, waves) in enumerate(g.visits):
        w = near if k == 0 else t
        pgs = [p for p, x in enumerate(stubs) if pos[first] <= x < pos[last]]
        w(f"L_visit{k}:\ns_mov_b64 exec, 0")
        for n, wv in enumerate(waves):
            w(f"s_cmp_lg_u32 s20, {wv}\ns_cbranch_scc1 L_visit{k}_{n}")
            for p in pgs[n::len(waves)]: w(f"s_call_b64 s[98:99], L_pg{p}")
            w(f"L_visit{k}_{n}:")
        w("s_mov_b64 exec, -1\ns_setpc_b64 s[96:97]")
        g.info.append(pgs)
    k = a.lines.index(".p2align 12"); a.lines[k:k] = near.lines

def gen(o={}, name=NAME + "_kernel", aslist=False):
    g = Gen(o); a = g.a
    a("s_cmp_ge_u32 s2, 256\ns_cbranch_scc1 L_done")
    if o.get("trace"): a("s_mov_b32 s29, 0\nv_accvgpr_write_b32 a252, 0\nv_accvgpr_write_b32 a253, 0"); g.tr("start")
    g.phase1(); g.phase2(); g.phase3(); g.phase4()
    if o.get("trace"):
        ws_srd(a, 56, WS_TRACE, 1<<20)
        a("s_lshl_b32 s60, s2, 11\ns_lshl_b32 s61, s20, 9\ns_add_u32 s60, s60, s61\nv_lshlrev_b32 v16, 3, v0\nbuffer_store_dwordx2 a[252:253], v16, s[56:59], s60 offen")
    if o.get("spin"):
        A_, B_, mult, W = o["spin"]
        a(f"s_cmp_lg_u32 s2, {W}\ns_cbranch_scc1 L_done\nv_accvgpr_read_b32 v20, a{252 if mult > 0 else 253}\ns_memrealtime s[8:9]\ns_nop 1\nv_readlane_b32 s10, v20, {g.names.index(A_)}\nv_readlane_b32 s11, v20, {g.names.index(B_)}\ns_waitcnt lgkmcnt(0)\ns_nop 3")
        a(f"s_sub_u32 s11, s11, s10\ns_min_u32 s11, s11, 20000\ns_mul_i32 s11, s11, {mult}" if mult > 0 else f"s_sub_u32 s11, s11, s10\ns_min_u32 s11, s11, 100000\ns_lshr_b32 s11, s11, {-mult}")
        a("L_z_spin:\ns_memrealtime s[12:13]\ns_waitcnt lgkmcnt(0)\ns_sub_u32 s12, s12, s8\ns_cmp_lt_u32 s12, s11\ns_cbranch_scc1 L_z_spin")
    a("L_done:\ns_endpgm")
    a.lines = [x for l in a.lines for x in l.split("\n")]
    if o.get("st"):
        for L in (a.lines, g.tail.lines):
            for k, l in enumerate(L):
                if l.startswith("buffer_store") and l.rstrip().endswith(" sc1"): L[k] = l.rstrip()[:-3] + o["st"]
    if o.get("ld"):
        for L in (a.lines, g.tail.lines):
            for k, l in enumerate(L):
                if l.startswith("buffer_load") and l.rstrip().endswith(" sc1"): L[k] = l.rstrip()[:-3] + o["ld"]
    if g.visits: page_stubs(g)
    ll = f"; @launch {'kernel=' + name + ' ' if aslist else ''}grid=(256,1,1) block=(256,1,1) lds=163840\n"
    txt = ll + '.amdgcn_target "amdgcn-amd-amdhsa--gfx950"\n.text\n' + kernel_head(name) + a.text() + g.tail.text() + 'L_code_end:\n.section .rodata,"a"\n' + kernel_desc(name, 512, 256)
    return txt, g
def header():
    ref = open(f"cdna_kernels/{NAME}.s.ref").read().split("\n")
    return "\n".join(l for l in ref if l.startswith(";") and "@launch" not in l and "Override" not in l and "grid=ceil" not in l) + "\n"
if __name__ == "__main__":
    import sys
    txt, g = gen({"trace": int(sys.argv[2]) if len(sys.argv) > 2 else 0})
    open(sys.argv[1] if len(sys.argv) > 1 else "mega.s", "w").write(header() + txt)
    print(g.info, g.names)
```

```python
from asmlib import *
import gemm16
from kk1 import rs4, bc4, rowsum16, allreduce64, umax
NAME = "sequential_preLN__linear_kernel_hedgehog__glu_gated_glu__prompt"
WS_O, WS_HC, WS_HH, WS_G = 0, 4<<20, 8<<20, 24<<20
G_SS, G_ST1, G_FL, G_F2, G_CS, G_MD, G_XS, G_XB, G_SIZE = 0, 128<<10, 160<<10, 192<<10, 224<<10, 480<<10, 8<<20, 4<<20, 12<<20
def place(r, t='s27'): return f's_and_b32 {t}, {r}, 0xffffe000\ns_add_u32 {r}, {r}, {t}\ns_lshr_b32 {t}, {r}, 8\ns_and_b32 {t}, {t}, 8192\ns_or_b32 {r}, {r}, {t}\ns_xor_b32 {r}, {r}, s30\n'
XS, XS_Z, XS_W, XS_T, XS_END = 16512, 4096, 4608, 4736, 5248
WS_TRACE = 60<<20
SIDE = 32<<20
SPIN = 0x20000
LOG2E = "0x3fb8aa3b"
SLOT = 40960; L_WPHI = 3*SLOT; L_PH = 0; L_VB = 32768
B2 = [32768 + 16384*s_ for s_ in range(8)]
HSAVE = 184
P_X, P_WQKV, P_WPHI, P_WO, P_WG, P_WU, P_WD, P_OUT = 64, 66, 68, 70, 72, 74, 76, 78

def psrd(a, r, p, n): srd(a, r, f"s{p}", f"s{p+1}", n)
def ws_srd(a, r, off, n):
    a(f"s_add_u32 s{r}, s32, {off}\ns_addc_u32 s{r+1}, s33, 0\ns_mov_b32 s{r+2}, {n}\ns_mov_b32 s{r+3}, 0x20000")

class Gen:
    def __init__(self, o):
        self.o = o; self.a = Asm(); self.tail = Asm(); self.names = []; self.info = []; self.visits = []
    def tr(self, name, lvl=1):
        if not self.o.get("trace", 0) or (lvl > 1 and lvl != self.o["trace"]): return
        a = self.a; self.names.append(name)
        a("s_memrealtime s[88:89]\ns_memtime s[90:91]"); a.wait_all(vm=False)
        a("s_lshl_b64 exec, 1, s29\nv_accvgpr_write_b32 a252, s88\nv_accvgpr_write_b32 a253, s90\ns_mov_b64 exec, -1\ns_add_u32 s29, s29, 1")
    def weave(self, body, ops, skip=0):
        a = self.a; m = a.mark(); nv = len(a.vm); body(); assert len(a.vm) == nv
        work = a.lines[m:]; a.lines = a.lines[:m]; n = len(ops); k = 0
        for i, l in enumerate(work):
            while k < n and i >= skip + k*(len(work) - skip)//n:
                self.group(ops[k]); k += 1
            a.lines.append(l)
        assert k == n
    def splice(self, body, at):
        a = self.a; m = a.mark(); nv = len(a.vm); body(); assert len(a.vm) == nv
        work = a.lines[m:]; a.lines = a.lines[:m]; at = sorted(at, key=lambda x: x[0])
        for i, l in enumerate(work):
            while at and at[0][0] <= i: at.pop(0)[1]()
            a.lines.append(l)
        for _, fn in at: fn()
        return len(work)
    def group(self, fns):
        for k, fn in enumerate(fns):
            if k == len(fns) - 1 and k > 0 and "m0" in self.a.lines[-1]: self.a("s_nop 0")
            fn()
    def signal(self, val, tag):
        a = self.a
        a(f"v_mov_b32 v30, {val}\ns_sub_u32 s27, s100, 16"); a.wait(vm=[tag]); a("s_barrier")
        a(f"s_cmp_lg_u32 s20, 0\ns_cbranch_scc1 L_sig{val}\nbuffer_store_dword v30, off, s[16:19], s27 sc1\nL_sig{val}:")
        self.tr(f"{val}sig", 6)
    def await_(self, val):
        a = self.a
        self.tr(f"{val}rdy", 6)
        a(f"s_cmp_lg_u32 s20, 0\ns_cbranch_scc1 L_got{val}\ns_mov_b32 s34, {G_F2}\ns_add_u32 s34, s34, s30")
        sl0, sl = self.o.get("sleep", (0, 0))
        if sl0: a(f"s_sleep {sl0}")
        a(f"s_mov_b32 s27, {SPIN}\nL_poll{val}:\n" + (f"s_sleep {sl}\n" if sl else "") + f"buffer_load_dword v30, v31, s[16:19], s34 offen sc1\ns_sub_u32 s27, s27, 1\ns_cmp_eq_u32 s27, 0\ns_cbranch_scc1 L_got{val}\ns_waitcnt vmcnt(0)")
        a(f"v_cmp_gt_u32 vcc, {val}, v30\ns_nop 0\ns_cbranch_vccnz L_poll{val}\nL_got{val}:")
        a.wait_all(); a.reset(); a("s_barrier")
    def visitn(self, site, waves):
        n = self.o.get("vplan", {"a": 4, "c": 6, "e": 99}).get(site, 0)
        if n: self.visit(n, None, waves)
    def visit(self, first, last, waves):
        if not self.o.get("visit", 1): return
        k = len(self.visits); self.visits.append((first, last, waves))
        self.a(f"s_call_b64 s[96:97], L_visit{k}")
    def code_touch(self, uid, first, last, sr, vr, per):
        c = Asm()
        c(f"s_getpc_b64 s[{sr}:{sr+1}]\nL_pc_{uid}:\ns_add_u32 s{sr}, s{sr}, {first}-L_pc_{uid}\ns_addc_u32 s{sr+1}, s{sr+1}, 0")
        c(f"s_lshr_b32 s{sr+2}, s2, 3\ns_lshl_b32 s{sr+2}, s{sr+2}, 2\ns_add_u32 s{sr+2}, s{sr+2}, s20\ns_mul_i32 s{sr+2}, s{sr+2}, {per}")
        c(f"v_min_u32 v{vr}, {per-1}, v0\nv_add_u32 v{vr}, s{sr+2}, v{vr}\nv_lshlrev_b32 v{vr}, 7, v{vr}\nv_min_u32 v{vr}, {last}-{first}-4, v{vr}")
        c(f"v_mov_b32 v{vr+1}, s{sr+1}\nv_add_co_u32 v{vr}, vcc, s{sr}, v{vr}\ns_nop 1\nv_addc_co_u32 v{vr+1}, vcc, 0, v{vr+1}, vcc")
        a = self.a; X = lambda s: (lambda: a(s))
        return [X("\n".join(c.lines[:4]))] + [X(l) for l in c.lines[4:-3]] + [X("\n".join(c.lines[-3:])), lambda: a.vmem(f"global_load_dword a250, v[{vr}:{vr+1}], off", ("ct",))]

    def ids24(self):
        return ("s_bfe_u32 s80, s2, 0x20001\ns_lshl_b32 s80, s80, 2\ns_bfe_u32 s27, s2, 0x20003\ns_add_u32 s80, s80, s27\n"
                "s_and_b32 s81, s2, 1\ns_lshr_b32 s27, s2, 5\ns_lshl_b32 s27, s27, 1\ns_add_u32 s81, s81, s27\n"
                "s_lshl_b32 s82, s80, 3\ns_lshl_b32 s27, s20, 1\ns_add_u32 s82, s82, s27\n"
                "s_lshl_b32 s83, s20, 16\ns_lshl_b32 s27, s81, 7\ns_add_u32 s83, s83, s27\ns_lshl_b32 s84, s20, 12")
    def xb(self, r):
        return (f"s_lshr_b32 {r}, s2, 3\ns_lshl_b32 {r}, {r}, 2\ns_and_b32 s27, s2, 3\ns_add_u32 {r}, {r}, s27\ns_lshl_b32 {r}, {r}, 2\ns_add_u32 {r}, {r}, s20\ns_lshl_b32 {r}, {r}, 10\n" + place(r) + f"s_add_u32 {r}, {r}, {G_XB}")
    def voff24(self, v, natural):
        t = f"v_bfe_u32 v{v+1}, v0, 4, 2\nv_lshlrev_b32 v{v+1}, 1, v{v+1}\nv_and_b32 v{v+2}, 7, v0\nv_xor_b32 v{v+1}, v{v+1}, v{v+2}\nv_lshlrev_b32 v{v+1}, 4, v{v+1}\n"
        if natural: t += f"v_lshrrev_b32 v{v+2}, 5, v0\nv_lshlrev_b32 v{v+2}, 3, v{v+2}\nv_bfe_u32 v{v+3}, v0, 3, 2\nv_add_u32 v{v+2}, v{v+2}, v{v+3}\n"
        else: t += f"v_lshrrev_b32 v{v+2}, 3, v0\n"
        t += f"v_lshl_add_u32 v{v}, v{v+2}, 11, v{v+1}\n"
        for i in range(1, 4): t += f"v_add_u32 v{v+i}, {((16*(i & 1) + 4*(i >> 1)) if natural else 8*i)*2048 - 1024*i}, v{v}\n"
        return t
    def pre24(self, st, i, base, v, sr):
        a = self.a; f = []
        if i == 0: f += [lambda: a(f"s_add_u32 s85, s83, {st*262144}"), lambda: a(f"s_add_u32 m0, s84, {base}")]
        f.append(lambda: a.vmem(f"buffer_load_dwordx4 v{v+i}, s[{sr}:{sr+3}], s85 offen offset:{1024*i} lds", ("pre",)))
        return f
    def rdaddr24(self, v):
        t = f"v_lshrrev_b32 v{v+1}, 2, v0\nv_lshlrev_b32 v{v+1}, 7, v{v+1}\nv_bfe_u32 v{v+2}, v0, 3, 2\nv_lshlrev_b32 v{v+2}, 5, v{v+2}\nv_and_b32 v{v+3}, 3, v0\nv_lshlrev_b32 v{v+3}, 3, v{v+3}\nv_add3_u32 v{v}, v{v+1}, v{v+2}, v{v+3}\n"
        for sg in range(1, 4): t += f"v_xor_b32 v{v+sg}, {32*sg}, v{v}\n"
        return t
    def rowmajor24(self, v, t0):
        return (f"v_and_b32 v{v}, 15, v0\nv_lshlrev_b32 v{v}, 11, v{v}\nv_bfe_u32 v{v+1}, v0, 4, 1\nv_lshlrev_b32 v{v+1}, 5, v{v+1}\nv_lshrrev_b32 v{t0}, 5, v0\nv_lshlrev_b32 v{t0}, 4, v{t0}\n"
                f"v_add3_u32 v{v}, v{v}, v{v+1}, v{t0}\nv_add_u32 v{v+1}, 32768, v{v}\ns_lshl_b32 s86, s82, 15\ns_lshl_b32 s27, s81, 7\ns_add_u32 s86, s86, s27")

    def phase1(self):
        a, t, o = self.a, self.tail, self.o.get("k1", {})
        NPH = o.get("NPH", 4)
        a("s_load_dwordx8 s[64:71], s[0:1], 0\ns_load_dwordx2 s[32:33], s[0:1], 80\ns_load_dwordx8 s[72:79], s[0:1], 40\ns_load_dwordx2 s[30:31], s[0:1], 72")
        if o.get("ct0", 1):
            a("s_getpc_b64 s[56:57]\nL_pc0:\nv_lshlrev_b32 v24, 4, v0\nv_mov_b32 v25, s57\nv_add_co_u32 v24, vcc, s56, v24\ns_lshr_b32 s58, s2, 3\ns_lshl_b32 s58, s58, 11\nv_addc_co_u32 v25, vcc, 0, v25, vcc")
            a.vmem("global_load_dword a250, v[24:25], off", ("ct0",))
            a("v_lshl_add_u32 v24, v0, 3, s58\nv_min_u32 v24, L_code_end-L_go-4, v24\nv_add_u32 v24, L_go-L_pc0, v24\nv_mov_b32 v25, s57\nv_add_co_u32 v24, vcc, s56, v24\ns_nop 1\nv_addc_co_u32 v25, vcc, 0, v25, vcc")
            a.vmem("global_load_dword a249, v[24:25], off", ("ct0",))
        a("v_lshrrev_b32 v1, 6, v0\nv_lshlrev_b32 v31, 2, v0\nv_and_b32 v0, 63, v0\nv_readfirstlane_b32 s20, v1")
        a("s_and_b32 s26, s2, 4\ns_lshl_b32 s26, s26, 1\ns_bfe_u32 s27, s2, 0x30003\ns_add_u32 s26, s26, s27")
        a("s_and_b32 s25, s2, 3\ns_lshl_b32 s25, s25, 2\ns_lshr_b32 s27, s2, 6\ns_add_u32 s25, s25, s27")
        a("s_and_b32 s46, s20, 1\ns_lshr_b32 s47, s20, 1\nv_lshlrev_b32 v30, 4, v0")
        a("s_lshl_b32 s51, s26, 6\ns_lshl_b32 s27, s25, 2\ns_add_u32 s51, s51, s27\ns_add_u32 s51, s51, s20\ns_lshl_b32 s34, s51, 12")
        sh = {2: 3, 4: 2, 8: 1, 16: 0}[NPH]
        HI = o.get("rot", "lo") == "hi"
        a((f"s_lshr_b32 s21, s26, {sh}" if HI else f"s_and_b32 s21, s26, {NPH-1}") + f"\ns_lshl_b32 s21, s21, {sh+7}\ns_mul_i32 s22, s21, 3072")
        a("s_lshl_b32 s35, s26, 18\ns_lshl_b32 s27, s20, 16\ns_add_u32 s35, s35, s27")
        a("v_lshrrev_b32 v16, 4, v0\nv_and_b32 v17, 7, v0\nv_xor_b32 v16, v16, v17\nv_lshl_add_u32 v16, v16, 4, s35\nv_lshrrev_b32 v18, 3, v0")
        a("v_lshl_add_u32 v2, v18, 11, v16\nv_xor_b32 v3, 64, v2")
        a(f"v_add_u32 v4, {16*2048 - 2048}, v2\nv_add_u32 v5, {24*2048 - 3072}, v3\nv_add_u32 v3, {8*2048 - 1024}, v3")
        a("s_lshl_b32 s27, s47, 5\ns_lshl_b32 s35, s46, 2\ns_add_u32 s35, s35, s27\ns_mul_i32 s35, s35, 6144\ns_lshl_b32 s27, s25, 7\ns_add_u32 s35, s35, s27")
        a("v_lshrrev_b32 v16, 4, v0\nv_lshlrev_b32 v16, 1, v16\nv_xor_b32 v16, v16, v17\nv_lshl_add_u32 v16, v16, 4, s35")
        a("v_lshrrev_b32 v18, 5, v0\nv_lshlrev_b32 v18, 3, v18\nv_bfe_u32 v19, v0, 3, 2\nv_add_u32 v18, v18, v19\nv_mul_u32_u24 v18, 6144, v18\nv_add_u32 v6, v18, v16")
        wimm = lambda part, i: (part*2048 + i*1024) % 4096
        for part in range(3):
            for i in range(2):
                if part or i: a(f"v_add_u32 v{6+2*part+i}, {16*i*6144 + part*2048 - wimm(part, i)}, v6")
        a("s_mul_i32 s45, s20, 10240\ns_mov_b32 s23, s45\ns_mov_b32 s44, 0")
        a("s_waitcnt lgkmcnt(0)")
        if self.o.get("wsoff"): a(f"s_add_u32 s32, s32, {self.o['wsoff'] << 20}\ns_addc_u32 s33, s33, 0")
        if self.o.get("trace1"): self.tr("karg")
        psrd(a, 8, P_X, 4<<20); psrd(a, 4, P_WQKV, 1024*6144); ws_srd(a, 16, WS_G, G_SIZE)
        a("s_cmp_ge_u32 s2, 8\ns_cbranch_scc1 L_nz")
        a(f"v_mov_b32 v24, 0\nv_mov_b32 v25, 0\nv_mov_b32 v26, 0\nv_mov_b32 v27, 0\ns_lshl_b32 s24, s2, 2\ns_add_u32 s24, s24, s20\ns_lshl_b32 s24, s24, 7\ns_add_u32 s24, s24, {G_FL}\ns_add_u32 s27, s24, 32768")
        a("v_lshrrev_b32 v16, 3, v0\nv_lshlrev_b32 v16, 12, v16\nv_lshl_add_u32 v16, v17, 4, v16")
        a("buffer_store_dwordx4 v[24:27], v16, s[16:19], s24 offen sc1\nbuffer_store_dwordx4 v[24:27], v16, s[16:19], s27 offen sc1\nL_nz:")
        XR = 228
        c = gemm16.Cfg()
        c.TB, c.NB, c.SPS, c.NST, c.NDMA = 4, 6, 1, 16, 10
        c.tok_lds = True; c.drain_at_P = True; c.tok_early = 0
        c.BODY = 2; c.LA, c.WR = 2, 6; c.PBACK = PB1 = o.get('pback', 16); c.post = o.get('post'); PG = 48 - PB1; c.LDS2 = False
        c.early = lambda j: o.get('early', {}).get(j, 0)
        c.acc = lambda j, tb: f"v[{32+4*(4*j+tb)}:{35+4*(4*j+tb)}]"
        c.tokreg = lambda sl, tb, s: f"a[{24+32*sl+8*tb+4*s}:{24+32*sl+8*tb+4*s+3}]"
        wb = lambda sl: 8*sl if sl < 3 else 96 + 8*sl
        c.wreg = lambda sl, s: f"a[{wb(sl)+4*s}:{wb(sl)+4*s+3}]"
        c.swap = lambda j: j >= 4
        c.tokwait = {0: [0], 2: [1, 2, 3]}; c.first_zero = True; c.unchain0 = self.o.get('unch', 0)
        def stat_loads(a):
            for i in range(4): a.vmem(f"buffer_load_dwordx4 v[{XR+4*i}:{XR+3+4*i}], v30, s[8:11], s34 offen offset:{1024*i}", ("xr",))
        SP = o.get('statpos', 0)
        if SP == 0: c.prologue_00 = stat_loads
        def dma(a, st, i):
            f = []
            if i == 0:
                if st in (1, 2): f.append(lambda: a(f"s_add_u32 s23, s23, {SLOT}"))
                if st > 0: f.append(lambda: a("s_add_u32 s21, s21, 128")); f.append(lambda: a("s_and_b32 s21, s21, 0x7ff"))
                f.append(lambda: a("s_mov_b32 m0, s23"))
            if i == 4:
                if st > 0: f.append(lambda: a("s_mul_i32 s22, s21, 3072"))
                f.append(lambda: a("s_add_u32 m0, s23, 4096"))
            if i == 8: f.append(lambda: a("s_add_u32 m0, s23, 8192"))
            if o.get("x_nodma") and st >= 3: f.append(lambda: a.vmem("s_nop 0", ("dma", st)))
            elif i < 4: f.append(lambda: a.vmem(f"buffer_load_dwordx4 v{2+i}, s[8:11], s21 offen offset:{1024*i} lds", ("dma", st)))
            else: f.append(lambda: a.vmem(f"buffer_load_dwordx4 v{2+i}, s[4:7], s22 offen offset:{wimm((i-4)//2, i%2)} lds", ("dma", st)))
            return f
        c.dma = dma
        woff = lambda j, s, rd: (2*s+rd)*10240 + 4096 + (j//2)*2048
        def wread(a, st, sis, j, s, rd, sl, tag):
            lo = wb(sl) + 4*s + 2*rd
            a.lds(f"ds_read_b64_tr_b16 a[{lo}:{lo+1}], v{14+j%2} offset:{woff(j, s, rd)}", tag)
        c.wread = wread
        c.tokread = lambda a, st, sis, tb, s, sl, tag: a.lds(f"ds_read_b128 {c.tokreg(sl, tb, s)}, v{12+s} offset:{(tb//2)*10240 + (tb%2)*2048}", tag)
        c.dmapos = lambda i: o.get("dmapos", [-15, -10, -6, -2, 2, 7, 12, 15, 19, 23])[i]
        WP, ONES, F, P, MX, MN, EF = 128, 136, 140, 156, 188, 192, 196
        CS = lambda j: (244 + 4*j) if j < 2 else (228 + 4*(j-2))
        V = lambda s, tag: (lambda: a.vmem(s, tag))
        X = lambda s: (lambda: a(s))
        def fixed(st):
            ex = []
            if st < c.NST - 1:
                def chk(s):
                    def f():
                        assert a.lg.count(("w", st*6+5, 1)) == 2 and ("w", st*6+6, 0) not in a.lg and ("tok", st+1, 0, 0) not in a.lg
                        a(s)
                    return f
                ex += [(o.get('cmpg', 5), X(f"s_cmp_eq_u32 s44, {2*SLOT}\ns_cselect_b32 s43, s42, s41"))]
                def upd():
                    assert st + 2 >= c.NST or a.vm.count(("dma", st+2)) >= 9
                    a("s_add_u32 s23, s44, s45\ns_add_u32 s44, s44, s43")
                if st or not SP: ex += [(o.get('updg', 22) if st else PG - 2, upd)]
                if st in (3, 4):
                    ex += [(PG, X("s_mov_b32 s86, 0\ns_buffer_load_dword s86, s[16:19], s24 glc"))]
                if st in (4, 5):
                    ex += [(g_, X(("s_add_u32" if st == 4 else "s_sub_u32") + " s28, s28, s86")) for g_ in o.get("samp", (1, 4, 6, 9, 11, 13, 14, 17, 21, 25, 27))]
                if st == 4: ex += [(26, X("s_xor_b32 s24, s24, 8192"))]
                ex += [(PG - 4 + r, chk(f"v_add_u32 v{12+r}, s43, v{12+r}")) for r in range(4)]
            return ex
        c.fixed = fixed
        sgl = [[V("buffer_load_dword a249, v1, s[4:7], s94 offen", ("sg",))]] if o.get("sgl", 1) else []
        SL2 = o.get("sl2", 0)
        sl2 = [[V("buffer_load_dword a248, v26, s[4:7], s28 offen", ("sg",))]] if SL2 else []
        NSH = 16//NPH; assert NSH <= 4
        ct2 = self.code_touch("a2", "L_tail1", "L_ph3", 92, 24, 1)
        RG = o.get("pf_rows", 4); PFW = o.get("pfw", "loop")
        def extra(st):
            ex = []
            if 1 <= st < 4:
                ex += [(PG, V(f"buffer_store_dwordx4 a[96:99], v30, s[36:39], 0 offen offset:{1024*(st-1)} sc1", ("clr",)))]
            if st == 3: ex += [(PG, V("buffer_load_dword v20, v28, s[12:15], 0 offen sc1", ("boot",)))]
            if st == 12:
                ex += [(0, X("v_and_b32 v28, 60, v31")), (4, V("buffer_load_dword v20, v19, s[16:19], s40 offen sc1", ("rdy",))), (4, V("buffer_load_dword v18, v28, s[12:15], 0 offen offset:128 sc1", ("rdy",)))]
            if st == 4:
                ex += [(5, X(f"s_mov_b32 s36, s{P_WO}\ns_mov_b32 s37, s{P_WO+1}")), (13, X(f"s_mov_b32 s38, {2<<20}"))]
            if st == 12: ex += [(9, ct2[-1])]
            if st == 13:
                def check_ready():
                    a.wait(vm=[("rdy",)])
                    a("v_min_u32 v20, v20, v18\nv_cmp_gt_u32 vcc, 1, v20\ns_nop 0\ns_cbranch_vccnz L_spin0\nL_rdy0:")
                seq = [check_ready, V("buffer_load_dwordx2 v[172:173], v22, s[16:19], s55 offen sc1", ("st",))]
                for u in range(4): seq.append(V(f"buffer_load_dwordx4 v[{P+4*u}:{P+3+4*u}], v30, s[16:19], s53 offen offset:{1024*u} sc1", ("cs",)))
                seq += [V(f"buffer_load_dwordx4 a[{88+4*i}:{91+4*i}], v30, s[36:39], s95 offen offset:{1024*i}", ("wo",)) for i in range(2)]
                ex += [(o.get('lp', (5, 6, 10, 17, 26, 30, 36, 40))[k], f) for k, f in enumerate(seq)]
            if st == 14:
                k = 0
                for hs in H14:
                    for i in range(4):
                        g_ = o.get("h0", 44) + o.get("hstep", 4)*k; k += 1
                        assert hs in (1, 2, 6, 7) or g_ >= 32
                        ex += [(g_, f) for f in self.pre24(hs, i, B2[hs], 252, 36)]
                if RG and PFW == "loop": ex += [(o.get("pfg", 94), V("buffer_load_dword a251, v23, s[56:59], s60 offen", ("pf",)))]
            return ex
        H14 = o.get("h14", (6, 7, 1)); HQ = o.get("hq", ())
        STASH = (10, 11, 16, 17, 21, 24, 25, 28, 31, 12, 13, 22, 14, 15)
        L_ST, L_CX = 40960, 45056
        def slots(st):
            rd = lambda r, g_=-16: (g_, X(f"v_accvgpr_read_b32 v{r}, a{100+STASH.index(r)}"), 1, 0)
            one = lambda l, cost=1, dist=0: (0, X(l), cost, dist)
            D = lambda l, tag, g_=0: (g_, (lambda: a.lds(l, tag)), 1, 0)
            if st == 13:
                fix = self.o.get("numa")
                def beg():
                    assert "L_rdy0:" in a.lines
                L = [(8, beg, 0, 0)] + [(8, X(f"v_add_u32_dpp v18, v18, v18 {m_} row_mask:0xf bank_mask:0xf"), 1, 2) for m_ in ("quad_perm:[1,0,3,2]", "quad_perm:[2,3,0,1]", "row_half_mirror", "row_mirror")]
                L += [(0, X("v_readfirstlane_b32 s30, v18"), 1, 1), (0, X("s_and_b32 s27, s2, 4"), 1, 0), (0, X("s_lshl_b32 s27, s27, 11"), 1, 0)]
                L += [(0, X("s_cmp_gt_u32 s30, 1024\ns_cselect_b32 s30, 8192, 0" if fix is None else f"s_mov_b32 s30, {fix << 13}"), 1, 3)]
                return L + [one(l) for l in ["s_xor_b32 s30, s30, s27", "s_and_b32 s31, s25, 8", "s_lshl_b32 s31, s31, 10", "s_xor_b32 s31, s31, s30"] + self.xb("s3").split("\n")]
            if st == 14:
                L = [one(l) for l in (f"s_lshl_b32 s27, s20, 9", f"s_add_u32 s27, s27, {L_ST}", "v_lshl_add_u32 v174, v0, 2, s27", "v_and_b32 v175, 0xffffff3f, v174", "v_and_b32 v176, 48, v0", "v_add_u32 v176, s27, v176",
                                      "s_lshl_b32 s27, s20, 10", f"s_add_u32 s27, s27, {L_CX}", "v_add_u32 v177, s27, v30", "v_and_b32 v178, 0xfffffbff, v177")]
                L += [(o.get("csw", 14), lambda: a.wait(vm=[("cs",)]), 1, 0), D("ds_write2st64_b32 v174, v172, v173 offset0:0 offset1:1", ("sw",))]
                for e in range(3): L += [one(l) for l in (f"v_add_f32 v{P+e}, v{P+e}, v{P+4+e}", f"v_add_f32 v{P+8+e}, v{P+8+e}, v{P+12+e}", f"v_add_f32 v{P+e}, v{P+e}, v{P+8+e}")]
                def cw():
                    assert ("w", 90, 0) not in a.lg and ("tok", 15, 0, 0) not in a.lg
                    a.lds(f"ds_write_b128 v177, v[{P}:{P+3}]", ("sw",))
                return L + [(0, cw, 1, 0)]
            if st != 15: return []
            L = [rd(r) for r in (10, 11, 16, 17, 21, 24, 25, 28, 31, 22)]
            L += [D(f"ds_read_b128 v[{P+4*x}:{P+3+4*x}], v178 offset:{1024*x}", ("cs",), 4) for x in range(2)]
            L += [D(f"ds_read2_b32 v[{2+2*tb}:{3+2*tb}], v175 offset0:{16*tb} offset1:{64+16*tb}", ("st",)) for tb in range(4)]
            L += [D(f"ds_read_b128 v[{EF+4*q}:{EF+4*q+3}], v176 offset:{64*(q//2) + 256*(q%2)}", ("st",)) for q in range(8)]
            L += [(0, lambda: a.wait(lg=[("cs",)]), 1, 0)]
            L += [one(f"v_mfma_f32_16x16x4_f32 v[{CS(j)}:{CS(j)+3}], v{P + 4*(j%2) + 1}, v29, 0") for j in (2, 3)]
            L += [one(l) for l in (f"v_mov_b32 v{CS(4)}, v{P+2}", f"v_mov_b32 v{CS(5)}, v{P+6}", f"v_mov_b32 v18, v{P}", f"v_mov_b32 v19, v{P+4}")]
            A_, B_ = CS(4), CS(5)
            L += [one(f"v_permlane16_swap_b32 v{A_}, v{B_}", 2), one(f"v_add_f32 v{A_+1}, v{A_}, v{B_}"), one(f"v_add_f32 v{B_+1}, v{A_}, v{B_}"), rd(12, 0), rd(13, 0),
                  one(f"v_permlane32_swap_b32 v{A_+1}, v{B_+1}", 2), one(f"v_add_f32 v{A_}, v{A_+1}, v{B_+1}"), one(f"v_add_f32 v{B_}, v{A_+1}, v{B_+1}"),
                  (0, lambda: a.wait(lg=[("st",)]), 1, 0)]
            L += [one(f"v_mul_f32 v{3+2*tb}, {LOG2E}, v{3+2*tb}") for tb in range(4)] + [one(f"v_permlane16_swap_b32 v{A_}, v{B_}", 2)]
            def last(r):
                def f():
                    assert a.lg.count(("w", 95, 1)) == 2
                    rd(r)[1]()
                return (28, f, 1, 0)
            return L + [last(14), last(15)]
        c.slots = slots
        c.extra = extra
        def share_check(k):
            if k >= NSH: return
            a(f"s_cmp_eq_u32 s50, {k}\ns_cbranch_scc1 L_sh{k}\nL_ns{k}:")
            t(f"L_sh{k}:\ns_call_b64 s[100:101], L_share\ns_branch L_ns{k}")
        def on_P(a, st):
            assert st + 2 >= c.NST or a.vm.count(("dma", st+2)) == 10
            self.tr(f"1P{st}", 2)
            if st in (5, 12): self.tr(f"1P{st}", 5)
            share_check(st + 1)
            if st == 5:
                assert a.vm_done > max(i for i, x in enumerate(a.vm) if x in (("clr",), ("boot",)))
                a("s_cmp_eq_u32 s20, 0\ns_cbranch_scc1 L_flag\nL_ret:")
        c.on_P = on_P
        def pre_P(a, st):
            if st == 0 and SP:
                assert a.vm.count(("dma", 1)) == 10
                a.wait(vm=[("xr",)])
                self.weave(stats, [dma(a, 2, i) for i in range(10)])
                a("s_add_u32 s23, s44, s45\ns_add_u32 s44, s44, s43"); stat_store()
            if st == 1:
                a(f"v_lshrrev_b32 v16, 2, v0\nv_lshlrev_b32 v16, 6, v16\nv_and_b32 v17, 3, v0\nv_lshl_add_u32 v16, v17, 3, v16\ns_lshl_b32 s27, s47, 11\ns_add_u32 s27, s27, {L_WPHI}\nv_add_u32 v16, s27, v16")
                for fb in range(2):
                    for rd in range(2): a.lds(f"ds_read_b64_tr_b16 v[{WP+4*fb+2*rd}:{WP+4*fb+2*rd+1}], v16 offset:{1024*rd + 32*fb}", ("wp",))
            if st == o.get("vst", 1): self.visitn("a", (0, 1, 2, 3))
        c.pre_P = pre_P
        def first_P(a):
            self.tr("1pro")
            a("s_lshr_b32 s27, s2, 3\ns_or_b32 s27, s27, s20\ns_cbranch_scc1 L_nl\nv_mov_b32 v16, 1\ns_lshl_b32 s27, s2, 2\ns_mov_b64 exec, 1\nbuffer_store_dword v16, v30, s[12:15], s27 offen sc1\ns_mov_b64 exec, -1\nL_nl:")
            share_check(0)
        c.first_P = first_P
        def pro_work():
            pass
            a(f"s_mov_b32 s41, {SLOT}\ns_mov_b32 s42, {-2*SLOT & 0xffffffff}\ns_mov_b32 s40, {G_FL}")
            a("s_lshl_b32 s27, s25, 1\ns_add_u32 s48, s27, s47")
            a(f"s_lshl_b32 s27, s46, 11\ns_add_u32 s62, s49, s27\ns_lshl_b32 s27, s47, 13\ns_add_u32 s62, s62, s27\ns_lshl_b32 s27, s47, 8\ns_lshl_b32 s35, s46, 3\ns_add_u32 s63, s27, s35\ns_add_u32 s63, s63, s49\ns_add_u32 s63, s63, {XS_Z}")
            a(f"s_add_u32 s49, s49, {XS_T}\nv_and_b32 v28, 28, v31")
            a("v_and_b32 v16, 15, v0\nv_bfe_u32 v17, v0, 1, 3\nv_lshrrev_b32 v18, 4, v0\nv_xor_b32 v17, v17, v18\nv_lshlrev_b32 v17, 4, v17\nv_lshl_add_u32 v12, v16, 7, v17")
            a("s_mul_i32 s27, s46, 20480\nv_add_u32 v12, s27, v12\nv_xor_b32 v13, 64, v12")
            a(f"v_lshlrev_b32 v22, 3, v0\nv_mov_b32 v29, 1.0\nv_mul_u32_u24 v27, {XS}, v18\nv_lshl_add_u32 v27, v16, 4, v27")
            a("v_and_b32 v17, 3, v0\nv_and_b32 v18, 12, v0\nv_lshl_or_b32 v17, v18, 4, v17\ns_and_b32 s27, s2, 0x3c\nv_or_b32 v17, s27, v17")
            a("s_and_b32 s27, s2, 0xc3\nv_lshl_or_b32 v19, v16, 2, s27")
            a("v_and_b32 v18, 16, v0\nv_cmp_eq_u32 vcc, 0, v18\nv_lshrrev_b32 v18, 2, v0\ns_nop 0\nv_cndmask_b32 v19, v19, v17, vcc\nv_lshlrev_b32 v19, 7, v19")
            a("v_lshlrev_b32 v16, 7, v18\nv_bfe_u32 v17, v0, 3, 2\nv_lshlrev_b32 v17, 5, v17\nv_and_b32 v18, 3, v0\nv_lshlrev_b32 v18, 3, v18\nv_add3_u32 v14, v16, v17, v18")
            a("s_lshl_b32 s27, s47, 6\nv_xor_b32 v14, s27, v14\nv_xor_b32 v15, 32, v14")
            a(f"s_lshl_b32 s52, s48, 13\ns_add_u32 s52, s52, {G_CS}\ns_lshl_b32 s27, s46, 12\ns_add_u32 s53, s52, s27")
            a(f"s_lshl_b32 s55, s26, 10\ns_lshl_b32 s27, s46, 9\ns_add_u32 s55, s55, s27\ns_add_u32 s55, s55, {G_ST1}")
            if RG:
                a(f"s_bitcmp1_b32 s20, 0\ns_cselect_b32 s56, s{P_WU}, s{P_WG}\ns_cselect_b32 s57, s{P_WU+1}, s{P_WG+1}\ns_mov_b32 s58, 7340032\ns_mov_b32 s59, 0x20000")
                a(f"s_lshr_b32 s60, s2, 3\ns_lshl_b32 s60, s60, 1\ns_add_u32 s60, s60, s47\ns_mul_i32 s60, s60, {RG*7168}\ns_and_b32 s27, s2, 3\ns_mul_i32 s27, s27, 1792\ns_add_u32 s60, s60, s27\ns_and_b32 s27, s2, 4\ns_mul_i32 s27, s27, 224\ns_add_u32 s60, s60, s27")
                a(f"v_lshrrev_b32 v23, 3, v0\nv_min_u32 v23, {RG-1}, v23\nv_mul_u32_u24 v23, 7168, v23\nv_and_b32 v17, 7, v0\nv_min_u32 v17, 6, v17\nv_lshl_add_u32 v23, v17, 7, v23")
            if sgl:
                a(f"s_lshr_b32 s27, s{P_WQKV}, 7\ns_sub_u32 s27, 3, s27\ns_and_b32 s27, s27, 7\ns_lshl_b32 s27, s27, 7\ns_mul_i32 s94, s51, 6144\ns_add_u32 s94, s94, s27")
                a("v_min_u32 v1, 5, v0\nv_lshlrev_b32 v1, 10, v1")
            if SL2:
                a(f"s_lshr_b32 s27, s{P_WQKV}, 7\ns_sub_u32 s27, 3, s27\ns_and_b32 s27, s27, 7\ns_and_b32 s35, s25, 8\ns_add_u32 s27, s27, s35\ns_xor_b32 s35, s27, s25")
                a(f"s_lshl_b32 s28, s27, 7\ns_sub_u32 s35, s35, 1\ns_lshl_b32 s27, s35, 11\ns_add_u32 s28, s28, s27\ns_and_b32 s27, s26, 7\ns_lshl_b32 s27, s27, 2\ns_add_u32 s27, s27, s20\ns_mul_i32 s27, s27, {2*6144}\ns_add_u32 s28, s28, s27")
                a(f"v_bfe_u32 v17, v0, 1, 2\nv_lshlrev_b32 v17, 2, v17\nv_lshrrev_b32 v18, 3, v0\nv_min_u32 v18, {SL2-1}, v18\nv_sub_u32 v17, v17, v18\nv_add_u32 v17, 3, v17\nv_and_b32 v18, 1, v0\nv_lshl_add_u32 v17, v17, 6, v18\nv_mul_u32_u24 v26, 6144, v17")
                a("s_cmp_lt_u32 s35, 3\ns_cselect_b32 s28, s28, 0\ns_cselect_b32 s27, 0, 0x7ffffff0\nv_or_b32 v26, s27, v26")
            for r in range(136, 140): a(f"v_mov_b32 v{r}, 0x3f803f80")
            a(self.ids24()); a(self.voff24(252, False))
        def tail_addr():
            T = 180; st_ = lambda r, x: a(f"v_accvgpr_write_b32 a{100+STASH.index(r)}, v{x}")
            a(f"v_bfe_u32 v{T}, v0, 1, 2\nv_lshlrev_b32 v{T}, 2, v{T}\nv_and_b32 v{T+1}, 1, v0\nv_bfe_u32 v{T+2}, v0, 3, 1\nv_lshlrev_b32 v{T+2}, 1, v{T+2}\nv_or3_b32 v{T}, v{T}, v{T+1}, v{T+2}")
            a(f"v_lshrrev_b32 v{T+1}, 4, v0\nv_xor_b32 v{T}, v{T}, v{T+1}\nv_lshlrev_b32 v{T}, 3, v{T}\nv_and_b32 v{T+1}, 15, v0\nv_lshl_add_u32 v{T}, v{T+1}, 7, v{T}")
            a(f"s_lshl_b32 s27, s20, 13\nv_add_u32 v{T}, s27, v{T}"); st_(10, T)
            for q in range(1, 4): a(f"v_xor_b32 v{T+1}, {32*q}, v{T}"); st_(10+q, T+1)
            a(f"v_bfe_u32 v{T}, v0, 3, 2\nv_lshlrev_b32 v{T}, 2, v{T}\nv_bfe_u32 v{T+1}, v0, 2, 1\nv_lshrrev_b32 v{T+2}, 5, v0\nv_lshlrev_b32 v{T+2}, 1, v{T+2}\nv_or3_b32 v{T}, v{T}, v{T+1}, v{T+2}")
            a(f"v_and_b32 v{T+1}, 3, v0\nv_xor_b32 v{T}, v{T}, v{T+1}\nv_lshlrev_b32 v{T}, 3, v{T}\nv_lshrrev_b32 v{T+1}, 2, v0\nv_lshl_add_u32 v{T}, v{T+1}, 7, v{T}")
            a(f"s_lshl_b32 s35, s46, 6\ns_or_b32 s27, s27, s35\nv_xor_b32 v{T}, s27, v{T}"); st_(14, T)
            for r, x in ((15, 32), (16, 8192), (17, 8224)): a(f"v_xor_b32 v{T+1}, {x}, v{T}"); st_(r, T+1)
            a(f"s_lshl_b32 s27, s20, 12\ns_add_u32 s27, s27, {L_VB}\nv_add_u32 v{T}, s27, v30\nv_xor_b32 v{T+1}, 4096, v{T}"); st_(24, T); st_(25, T+1)
            a(f"v_lshrrev_b32 v{T}, 4, v0\nv_mul_u32_u24 v{T+1}, {XS}, v{T}\nv_and_b32 v{T+2}, 0x70, v30\nv_lshl_add_u32 v{T}, v{T}, 2, v{T+2}\nv_and_b32 v{T+3}, 8, v0\nv_lshl_or_b32 v{T}, v{T+3}, 10, v{T}"); st_(28, T+1); st_(31, T)
            a(f"v_and_b32 v{T}, 0xf0, v30\nv_and_b32 v{T+1}, 16, v0\nv_lshl_or_b32 v26, v{T+1}, 9, v{T}"); assert not SL2
            a(f"v_lshrrev_b32 v{T}, 3, v0\nv_mul_u32_u24 v{T}, {XS}, v{T}\nv_add_u32 v{T}, v{T}, v{T+2}\nv_lshrrev_b32 v{T+1}, 5, v0\nv_mul_u32_u24 v{T+1}, {XS - 512}, v{T+1}\nv_add_u32 v{T+1}, v{T+1}, v30"); st_(21, T); st_(22, T+1)
            a("\n".join(self.rowmajor24(T, T+2).split("\n")[:7]) + f"\nv_accvgpr_write_b32 a114, v{T}")
            if o.get("wsg", 1):
                R0, R1 = o.get("wsr", (256, 768)); n_ = 2*(R1 - R0)
                a.lines.append(f"s_lshr_b32 s27, s{P_WO}, 7\ns_sub_u32 s27, 3, s27\ns_and_b32 s27, s27, 7\ns_sub_u32 s35, s81, s27\ns_sub_u32 s35, s35, 2\ns_and_b32 s35, s35, 7\ns_lshl_b32 s27, s27, 7\ns_add_u32 s27, s27, {R0*2048}\n"
                               f"s_lshr_b32 s28, s81, 3\ns_bitcmp1_b32 s35, 0\ns_cselect_b32 s35, 64, s35\ns_add_u32 s35, s35, s28\ns_lshl_b32 s35, s35, 2\ns_and_b32 s28, s80, 3\ns_add_u32 s35, s35, s28\ns_lshl_b32 s35, s35, 2\ns_add_u32 s35, s35, s20\n"
                               f"s_cmp_ge_u32 s35, 96\ns_cselect_b32 s35, {n_}, s35\nv_mul_u32_u24 v{T}, 96, v0\nv_add_u32 v{T}, s35, v{T}\nv_cmp_gt_u32 vcc, {n_}, v{T}\nv_lshl_add_u32 v{T}, v{T}, 10, s27\nv_mov_b32 v{T+1}, 0x7ffffff0\nv_cndmask_b32 v{T}, v{T+1}, v{T}, vcc\nv_accvgpr_write_b32 a115, v{T}")
            a("s_lshl_b32 s95, s25, 4\ns_add_u32 s95, s95, s26\ns_lshl_b32 s95, s95, 2\ns_add_u32 s95, s95, s20\ns_lshl_b32 s95, s95, 11")
        def stats():
            U = 196
            for q in range(2):
                for d in range(8): a(f"v_lshlrev_b32 v{U+16*q+2*d}, 16, v{XR+8*q+d}\nv_and_b32 v{U+1+16*q+2*d}, 0xffff0000, v{XR+8*q+d}")
            for q in range(2):
                a(f"v_add_f32 v{140+2*q}, v{U+16*q}, v{U+1+16*q}")
                for e in range(2, 16): a(f"v_add_f32 v{140+2*q}, v{140+2*q}, v{U+16*q+e}")
            allreduce64(a, [140, 142], [144, 145])
            for q in range(2):
                a(f"v_mul_f32 v{140+2*q}, 0x3a800000, v{140+2*q}")
                for e in range(16): a(f"v_sub_f32 v{U+16*q+e}, v{U+16*q+e}, v{140+2*q}")
                a(f"v_mul_f32 v{141+2*q}, v{U+16*q}, v{U+16*q}")
                for e in range(1, 16): a(f"v_fmac_f32 v{141+2*q}, v{U+16*q+e}, v{U+16*q+e}")
            allreduce64(a, [141, 143], [144, 145])
            for q in range(2): a(f"v_mov_b32 v144, 0x3727c5ac\nv_fmac_f32 v144, 0x3a800000, v{141+2*q}\nv_rsq_f32 v{141+2*q}, v144")
        def own1(a, d1):
            T1 = (lambda n: self.tr(n)) if self.o.get("trace1") else (lambda n: None)
            a(f"s_and_b32 s50, s26, {16//NPH - 1}" if HI else f"s_lshr_b32 s50, s26, {4-sh}")
            BP = o.get("badph", 0)
            if BP:
                b = {4: 2, 8: 1}[BP]
                a(f"s_lshr_b32 s27, s{P_WQKV}, 7\ns_add_u32 s27, s27, s25\ns_and_b32 s27, s27, 7\ns_and_b32 s35, s26, {BP-1}\ns_lshl_b32 s35, s35, {b+7}\ns_lshr_b32 s43, s26, {4-b}")
                a("s_cmp_eq_u32 s27, 3\ns_cselect_b32 s21, s35, s21\ns_cselect_b32 s50, s43, s50\ns_mul_i32 s22, s21, 3072"); assert 16//BP <= NSH
            d0 = [dma(a, 0, i) for i in range(10)]; n0 = o.get("n0", 4)
            for g in d0[:n0]: self.group(g)
            T1("iss0")
            a(f"s_lshl_b32 s61, s25, 18\ns_add_u32 s61, s61, {G_XS}\ns_mul_i32 s27, s26, {XS}\ns_add_u32 s49, s61, s27")
            a(f"s_mul_i32 s27, s46, {XS_END//2}\ns_lshl_b32 s35, s47, 13\ns_add_u32 s27, s27, s35\ns_add_u32 s27, s27, s49\ns_add_u32 s36, s16, s27\ns_addc_u32 s37, s17, 0\ns_mov_b32 s38, {XS_END//2}\ns_mov_b32 s39, 0x20000")
            for r in range(96, 100): a(f"v_accvgpr_write_b32 a{r}, -1")
            psrd(a, 12, P_WPHI, 65536)
            a("s_lshl_b32 s92, s20, 10\ns_lshl_b32 s93, s25, 12\ns_add_u32 s93, s93, s92")
            wphi = [X(f"s_add_u32 m0, s92, {L_WPHI}"), V("buffer_load_dwordx4 v30, s[12:15], s93 offen lds", ("wphi",))]
            if SP == 0:
                pro_work(); T1("work"); a.wait(vm=[("xr",)]); T1("xr")
                self.weave(lambda: (stats(), tail_addr()), d0[n0:] + [wphi] + sgl + (sl2 + d1 if SL2 == 3 else d1[:4] + sl2 + d1[4:])); T1("stats")
            else:
                pro_work(); T1("work")
                xr = [[V(f"buffer_load_dwordx4 v[{XR+4*i}:{XR+3+4*i}], v30, s[8:11], s34 offen offset:{1024*i}", ("xr",))] for i in range(4)]
                self.weave(tail_addr, d0[n0:] + sgl + (sl2 + xr if SL2 == 3 else xr + sl2) + [wphi]); T1("stats")
            srd(a, 12, "s30", "s31", 256)
            for fn in ct2[:-1]: fn()
            a(f"s_and_b32 s24, s25, 8\ns_lshl_b32 s24, s24, 10\ns_lshl_b32 s27, s20, 7\ns_add_u32 s24, s24, s27\ns_add_u32 s24, s24, s49\ns_sub_u32 s24, s24, {XS_T}\ns_mov_b32 s28, 0")
        c.own_stage0 = True
        c.own_stage1 = own1
        def stat_store():
            a(f"s_lshl_b32 s27, s51, 4\ns_add_u32 s27, s27, {G_ST1}\ns_mov_b64 exec, 1")
            a.vmem("buffer_store_dwordx4 v[140:143], v30, s[16:19], s27 offen sc1", ("clr",))
            a("s_mov_b64 exec, -1")
        if SP: c.lazy1 = lambda i: o.get("lz", 2)*i; c.skip_dma = (2,)
        def pro_mid(a):
            if not SP: stat_store()
            a("s_branch L_go\n@near\n.p2align 12\nL_go:")
        c.prologue_mid = pro_mid
        marks, stats_ = gemm16.mainloop(a, c)
        self.info.append((roll2(a, marks, "L_loop1", "s24"), stats_))
        self.tr("1main")
        a("L_tail1:")
        t("L_share:")
        t("s_lshl_b32 s27, s46, 5\nv_xor_b32 v16, s27, v14")
        for part in range(3):
            for s in range(2):
                for rd in range(2): t(f"ds_read_b64_tr_b16 v[{P+8*part+4*s+2*rd}:{P+8*part+4*s+2*rd+1}], v16 offset:{woff(2*part, s, rd)}")
        t(f"s_lshl_b32 s27, s46, 12\ns_lshl_b32 s35, s26, 8\ns_add_u32 s27, s27, s35\ns_add_u32 s27, s27, s52\ns_waitcnt lgkmcnt(0)")
        for part in range(3):
            for s in range(2): t(f"v_mfma_f32_16x16x32_bf16 v[{144+4*part}:{147+4*part}], v[{ONES}:{ONES+3}], v[{P+8*part+4*s}:{P+8*part+4*s+3}], {'0' if s == 0 else f'v[{144+4*part}:{147+4*part}]'}")
        t("s_nop 7\nv_mov_b32 v145, v148\nv_mov_b32 v146, v152\ns_mov_b64 exec, 0xffff")
        t("buffer_store_dwordx4 v[144:147], v30, s[16:19], s27 offen sc1\ns_mov_b64 exec, -1\ns_setpc_b64 s[100:101]")
        t(f"L_flag:\ns_mov_b32 s27, {SPIN}\nL_flagb:\nv_cmp_eq_u32 vcc, 0, v20\ns_sub_u32 s27, s27, 1\ns_cbranch_vccz L_flagc\ns_cmp_eq_u32 s27, 0\ns_cbranch_scc1 L_flagc")
        t("buffer_load_dword v20, v28, s[12:15], 0 offen sc1\ns_waitcnt vmcnt(0)\ns_branch L_flagb")
        t("L_flagc:\nv_mov_b32 v16, 1\ns_lshl_b32 s27, s2, 7\ns_add_u32 s27, s27, s40\ns_mov_b64 exec, 1\nbuffer_store_dword v16, v30, s[16:19], s27 offen sc1")
        t("s_cmp_ge_u32 s2, 16\ns_cbranch_scc1 L_flage\ns_sub_u32 s27, 0, s28\ns_bitcmp1_b32 s2, 2\ns_cselect_b32 s28, s27, s28\ns_add_u32 s28, s28, 64\ns_and_b32 s28, s28, 127\ns_max_u32 s28, s28, 1\nv_mov_b32 v17, s28\ns_lshl_b32 s27, s2, 2")
        t("buffer_store_dword v17, v30, s[12:15], s27 offen offset:128 sc1\nL_flage:\ns_mov_b64 exec, -1\ns_branch L_ret")
        k = a.lines.index("@near"); a.lines[k:k+1] = t.lines; t.lines = []
        t(f"L_spin0:\ns_mov_b32 s27, {SPIN}\nL_spin0b:\nbuffer_load_dword v20, v19, s[16:19], s40 offen sc1\nbuffer_load_dword v18, v28, s[12:15], 0 offen offset:128 sc1\ns_waitcnt vmcnt(0)\nv_min_u32 v20, v20, v18\nv_cmp_gt_u32 vcc, 1, v20\ns_sub_u32 s27, s27, 1")
        t("s_cbranch_vccz L_rdy0\ns_cmp_lg_u32 s27, 0\ns_cbranch_scc1 L_spin0b\ns_branch L_rdy0")
        S = lambda sg, tb: (140 if sg == 0 else 228) + 4*tb
        mf = lambda d, A_, B_, C_: a(f"v_mfma_f32_16x16x32_bf16 v[{d}:{d+3}], v[{A_}:{A_+3}], v[{B_}:{B_+3}], {C_ if C_ == '0' else f'v[{C_}:{C_+3}]'}")
        pre2 = lambda sts: [self.pre24(st, i, B2[st], 252, 36) for st in sts for i in range(4)]
        pk = lambda r: f"v[{r}:{r+1}]"
        def feat1(j0, between=None):
            b = 32 + 16*j0
            def partA():
                for tb in range(4):
                    for x in range(2):
                        for h in (0, 2): a(f"v_pk_fma_f32 {pk(b+16*x+4*tb+h)}, {pk(2+2*tb)}, {pk(CS(j0+x)+h)}, {pk(b+16*x+4*tb+h)} op_sel_hi:[0,1,1] neg_lo:[1,0,0] neg_hi:[1,0,0]")
                        if tb > 0: mf(P + 8*(tb-1) + 4*x, WP + 4*x, F + 4*(tb-1), "0")
                    for d in range(4): a(f"v_cvt_pk_bf16_f32 v{F+4*tb+d}, v{b+16*(d//2)+4*tb+2*(d%2)}, v{b+16*(d//2)+4*tb+2*(d%2)+1}")
            def partB():
                for tb in range(4):
                    p = P + 8*tb
                    for dst, op3, op2 in ((MX+tb, "v_max3_f32", "v_max_f32"), (MN+tb, "v_min3_f32", "v_min_f32")):
                        a(f"{op3} v{dst}, v{p}, v{p+1}, v{p+2}\n{op3} v{dst}, v{dst}, v{p+3}, v{p+4}\n{op3} v{dst}, v{dst}, v{p+5}, v{p+6}\n{op2} v{dst}, v{dst}, v{p+7}")
                two = ((MX, "v_max_f32"), (MN, "v_min_f32"))
                a("s_nop 0")
                for r, op in two: a(f"v_permlane16_swap_b32 v{r}, v{r+1}\nv_permlane16_swap_b32 v{r+2}, v{r+3}")
                for r, op in two: a(f"{op} v{r}, v{r}, v{r+1}\n{op} v{r+2}, v{r+2}, v{r+3}")
                a("s_nop 0")
                for r, op in two: a(f"v_permlane32_swap_b32 v{r}, v{r+2}")
                for r, op in two: a(f"{op} v{r+1}, v{r}, v{r+2}\n{op} v{r+2}, v{r}, v{r+2}")
                a("s_nop 0")
                for r, op in two: a(f"v_permlane32_swap_b32 v{r+1}, v{r+2}")
                for r, op in two: a(f"v_mov_b32 v{r}, v{r+1}\nv_mov_b32 v{r+3}, v{r+2}")
                for r, op in two: a(f"v_permlane16_swap_b32 v{r}, v{r+1}\nv_permlane16_swap_b32 v{r+2}, v{r+3}")
            partA()
            a("s_nop 1")
            for fb in range(2): mf(P + 24 + 4*fb, WP + 4*fb, F + 12, "0")
            if between: between()
            partB()
            for tb in range(4): a(f"v_mul_f32 v{MX+tb}, v{MX+tb}, v{3+2*tb}\nv_mul_f32 v{MN+tb}, v{MN+tb}, v{3+2*tb}")
        def feat2(b):
            for tb in range(4):
                sel = tb % 2; mx, mn = pk(MX+tb-sel), pk(MN+tb-sel)
                for e in range(0, 8, 2): a(f"v_pk_fma_f32 {pk(b+8*tb+e)}, {pk(P+8*tb+e)}, {pk(2+2*tb)}, {mx} op_sel:[0,1,{sel}] op_sel_hi:[1,1,{sel}] neg_lo:[0,0,1] neg_hi:[0,0,1]")
                for e in range(0, 8, 2): a(f"v_pk_fma_f32 {pk(P+8*tb+e)}, {pk(P+8*tb+e)}, {pk(2+2*tb)}, {mn} op_sel:[0,1,{sel}] op_sel_hi:[1,1,{sel}] neg_lo:[1,0,0] neg_hi:[1,0,0]")
                for e in range(8):
                    a(f"v_exp_f32 v{b+8*tb+e}, v{b+8*tb+e}")
                    if tb > 0 and e in (0, 2): mf(S(e//2, tb-1), ONES, EF + 8*e + 4*(tb-1), "0")
                for e in range(8): a(f"v_exp_f32 v{P+8*tb+e}, v{P+8*tb+e}")
                for sg, src in ((0, b), (1, P)):
                    for d in range(4): a(f"v_cvt_pk_bf16_f32 v{EF+16*sg+4*tb+d}, v{src+8*tb+2*d}, v{src+8*tb+2*d+1}")
            mf(S(0, 3), ONES, EF + 12, "0"); a("s_nop 0"); mf(S(1, 3), ONES, EF + 28, "0")
        def scale_pack(b, sc, after=None):
            for tb in range(4):
                for sg, src in ((0, b), (1, P)):
                    for e in range(0, 8, 2): a(f"v_pk_mul_f32 {pk(src+8*tb+e)}, {pk(src+8*tb+e)}, {pk(sc(sg, tb))} op_sel_hi:[1,0]")
                    for d in range(4): a(f"v_cvt_pk_bf16_f32 v{EF+16*sg+4*tb+d}, v{src+8*tb+2*d}, v{src+8*tb+2*d+1}")
                    if after: after(tb, sg)
        VF, KV, Z = 96, 112, 244
        def vside():
            for db in range(2):
                for tb in range(4):
                    for h in (0, 2):
                        x = 96 + 16*db + 4*tb + h
                        a(f"v_pk_fma_f32 {pk(x)}, {pk(EF+8*tb+h)}, {pk(CS(4+db))}, {pk(x)} op_sel_hi:[1,0,1] neg_lo:[1,0,0] neg_hi:[1,0,0]\nv_pk_mul_f32 {pk(x)}, {pk(x)}, {pk(EF+8*tb+4+h)}")
                for d in range(8): a(f"v_cvt_pk_bf16_f32 v{VF+8*db+d}, v{96+16*db+2*d}, v{97+16*db+2*d}")
                if db == 0: a("s_barrier")
                for i in range(2): a.lds(f"ds_write_b128 v24, v[{VF+8*db+4*i}:{VF+8*db+4*i+3}] offset:{2048*db + 1024*i}", ("vw",))
        def afr(who, ks):
            for fb in range(2):
                for rd in range(2):
                    r = 16*who + 8*fb + 4*ks + 2*rd
                    a.lds(f"ds_read_b64_tr_b16 a[{r}:{r+1}], v{14+2*who+fb} offset:{(32*ks + 16*rd)*128}", ("af", who, ks))
        def kvm(who, ks, db, fb):
            af = 16*who + 8*fb + 4*ks; A_ = f"a[{af}:{af+3}]"
            d = KV + 8*fb + 4*db if db < 2 else Z + 4*fb
            C_ = "0" if who == 0 and ks == 0 else f"v[{d}:{d+3}]"
            if db == 2: return f"v_mfma_f32_16x16x32_bf16 v[{d}:{d+3}], v[{ONES}:{ONES+3}], {A_}, {C_}"
            B_ = f"v[{VF+8*db+4*ks}:{VF+8*db+4*ks+3}]" if who == 0 else f"a[{32+8*db+4*ks}:{35+8*db+4*ks}]"
            return f"v_mfma_f32_16x16x32_bf16 v[{d}:{d+3}], {A_}, {B_}, {C_}"
        TK = (lambda n: self.tr(n)) if o.get('x_tk') else (lambda n: None)
        marker = [[X("s_nop 0" if k == 0 else f"s_add_u32 s3, s3, {1<<20}" + ("\ns_xor_b32 s3, s3, 8192" if k == 2 else "")), V("buffer_store_dwordx4 a[96:99], v30, s[16:19], s3 offen sc1", ("xclr",))] for k in range(4)]
        MK = self.o.get("k3", {}).get("mk", "p1")
        if MK == "p1": self.weave(lambda: feat1(2, vside), marker)
        else: feat1(2, vside)
        TK("kB")
        HK = o.get("hk", ()); assert 0 not in HK
        if HK: self.weave(lambda: feat2(64), pre2(HK))
        else: feat2(64)
        TK("kf2")
        for tb in range(3):
            for sg in range(2): a(f"v_rcp_f32 v{S(sg, tb)}, v{S(sg, tb)}")
        def wr(tb, sg):
            for fb in range(2): a.lds(f"ds_write_b64 v{10+2*sg+fb}, v[{EF+16*sg+4*tb+2*fb}:{EF+16*sg+4*tb+2*fb+1}] offset:{2048*tb}", ("pw",))
            if (tb, sg) == (0, 0): a(f"v_rcp_f32 v{S(0, 3)}, v{S(0, 3)}\nv_rcp_f32 v{S(1, 3)}, v{S(1, 3)}")
            if (tb, sg) == (1, 1): afr(0, 0)
            if (tb, sg) == (2, 0): a.wait(lg=[("af", 0, 0)])
            if (tb, sg) in ((2, 0), (2, 1), (3, 0)):
                for fb in range(2): a(kvm(0, 0, 2*(tb-2) + sg, fb))
        XW = o.get("xw", "k"); HS = o.get("hs", ()); assert 0 not in HS
        wsg = [[X("v_accvgpr_read_b32 v20, a115"), V("buffer_load_dword a248, v20, s[36:39], 0 offen", ("sg",))]] if o.get("wsg", 1) else []
        if XW == "k":
            a(self.rowmajor24(0, 0).split("v0\ns_lshl_b32 s86")[0] and "v_accvgpr_read_b32 v1, a114\ns_lshl_b32 s86, s82, 15\ns_lshl_b32 s27, s81, 7\ns_add_u32 s86, s86, s27\nv_add_u32 v23, 32768, v1")
            self.weave(lambda: scale_pack(64, S, wr), [[V(f"buffer_load_dwordx4 a[{144+4*i}:{147+4*i}], v{1 if i < 2 else 23}, s[8:11], s86 offen offset:{64*(i%2)}", ("x2",))] for i in range(4)] + wsg + pre2(HS) + [[]]*o.get("xpad", 1))
        else: scale_pack(64, S, wr)
        TK("kscl")
        afr(0, 1)
        a(f"s_add_u32 s61, s61, s31\ns_and_b32 s27, s26, 7\ns_lshl_b32 s27, s27, 9\ns_add_u32 s52, s61, s27\ns_lshl_b32 s27, s47, 8\ns_add_u32 s53, s61, s27\ns_add_u32 s53, s53, {XS_Z}")
        self.tr("1kside", 2)
        a.wait(lg=[("pw",)]); a("s_barrier")
        afr(1, 0)
        for i in (0, 1): a.lds(f"ds_read_b128 a[{32+4*i}:{35+4*i}], v25 offset:{1024*i}", ("vg", 0))
        afr(1, 1)
        for i in (2, 3): a.lds(f"ds_read_b128 a[{32+4*i}:{35+4*i}], v25 offset:{1024*i}", ("vg", 1))
        a.wait(lg=[("af", 0, 1)])
        for db in range(3):
            for fb in range(2): a(kvm(0, 1, db, fb))
        def pub(db):
            for d in range(4): a(f"v_cvt_pk_bf16_f32 v{72+4*db+d}, v{KV+8*(d//2)+4*db+2*(d%2)}, v{KV+8*(d//2)+4*db+2*(d%2)+1}")
            a.vmem(f"buffer_store_dwordx4 v[{72+4*db}:{75+4*db}], v30, s[16:19], s62 offen offset:{1024*db} sc1", ("pub",))
        for db in range(3):
            a.wait(lg=[("af", 1, 1), ("vg", min(db, 1))])
            for fb in range(2):
                for ks in range(2): a(kvm(1, ks, db, fb))
        pub(0); pub(1)
        a(f"v_mov_b32 v{Z+1}, v{Z+4}\ns_mov_b32 exec_hi, 0")
        a.vmem(f"buffer_store_dwordx2 v[{Z}:{Z+1}], v26, s[16:19], s63 offen sc1", ("pub",))
        a("s_mov_b64 exec, -1")
        self.tr("1pub")
        a(f"s_barrier\ns_and_b32 s100, s2, 0x83\ns_lshl_b32 s100, s100, 7\ns_and_b32 s27, s2, 0x78\ns_lshl_b32 s27, s27, 6\ns_add_u32 s100, s100, s27\ns_lshl_b32 s27, s20, 2\ns_add_u32 s100, s100, s27\ns_add_u32 s101, s30, {G_F2 + 16}\ns_add_u32 s100, s100, s101")
        a.wait(vm=[("wo",)])
        a(f"v_mfma_f32_16x16x32_bf16 v[96:99], v[{ONES}:{ONES+3}], a[88:91], 0\nv_mfma_f32_16x16x32_bf16 v[96:99], v[{ONES}:{ONES+3}], a[92:95], v[96:99]")
        a(f"s_lshl_b32 s27, s20, 2\ns_add_u32 s54, s49, s27\ns_sub_u32 s54, s54, {XS_T - XS_W}\ns_lshl_b32 s27, s20, 7\ns_add_u32 s52, s52, s27\ns_add_u32 s49, s49, s27")
        for j in range(2): a(f"v_mfma_f32_16x16x4_f32 v[{CS(j)}:{CS(j)+3}], v{18+j}, v29, 0")
        rowsum16(a, [96])
        a("v_mul_f32 v96, 0x3a800000, v96\ns_mov_b64 exec, 0x10001")
        a.vmem("buffer_store_dword v96, v26, s[16:19], s54 offen sc1", ("wb",))
        a("s_mov_b64 exec, -1")
        def strided(n, first, stride, mk, tag):
            return [[X(f"s_mov_b32 s34, {first}" if i == 0 else f"s_add_u32 s34, s34, {stride}"), V(mk(i), tag)] for i in range(n)]
        kv_ops = lambda: strided(2, "s52", 8*XS, lambda i: f"buffer_load_dwordx4 v[{64+4*i}:{67+4*i}], v21, s[16:19], s34 offen sc1", ("kv",))
        z_ops = lambda: strided(4, "s53", 4*XS, lambda i: f"buffer_load_dwordx4 v[{80+4*i}:{83+4*i}], v27, s[16:19], s34 offen sc1", ("z",))
        KF = (128, 132, 10, 14)
        tot_ops = lambda: strided(4, "s92", 2*XS, lambda i: f"buffer_load_dwordx4 v[{KF[i]}:{KF[i]+3}], v22, s[16:19], s34 offen sc1", ("tot",)) + \
                          strided(2, "s93", 4*XS, lambda i: f"buffer_load_dwordx4 v[{244+4*i}:{247+4*i}], v28, s[16:19], s34 offen sc1", ("tot",))
        def retry(k, regs, ops, leave=0):
            a(f"s_mov_b32 s27, {SPIN}\nL_chk{k}:")
            umax(a, 20, regs)
            a(f"v_cmp_eq_u32 vcc, -1, v20\ns_sub_u32 s27, s27, 1\ns_cbranch_vccz L_ok{k}\ns_cmp_eq_u32 s27, 0\ns_cbranch_scc1 L_ok{k}")
            vm = list(a.vm)
            if self.o.get("rsleep"): a(f"s_sleep {self.o['rsleep']}")
            for g in ops(): self.group(g)
            a.vm = vm
            a(f"s_waitcnt vmcnt({leave})\ns_branch L_chk{k}\nL_ok{k}:")
            if self.o.get("cnt"): a(f"s_mov_b32 exec_lo, 0\ns_mov_b32 exec_hi, {1 << (27 + k)}\nv_accvgpr_write_b32 a253, s27\ns_mov_b64 exec, -1")
        a(f"s_mul_i32 s27, s47, {8*XS}\ns_add_u32 s93, s61, s27\ns_add_u32 s93, s93, {XS_W}")
        a(f"s_lshr_b32 s27, s31, 13\ns_xor_b32 s27, s27, s47\ns_lshr_b32 s35, s26, 3\ns_xor_b32 s27, s27, s35\ns_mul_i32 s27, s27, {8*XS}\ns_add_u32 s92, s61, s27\ns_add_u32 s92, s92, {XS_T}")
        a("s_and_b32 s27, s26, 7\ns_lshl_b32 s27, s27, 3\ns_lshl_b32 s34, s46, 2\ns_add_u32 s27, s27, s34\ns_lshl_b32 s54, s27, 15\ns_lshl_b32 s35, s48, 10\ns_add_u32 s54, s54, s35\n" + place("s54"))
        a(f"s_and_b32 s55, s26, 7\ns_lshl_b32 s55, s55, 1\ns_add_u32 s55, s55, s46\ns_lshl_b32 s55, s55, 6\ns_add_u32 s55, s55, s48\ns_lshl_b32 s55, s55, 8\ns_add_u32 s55, s55, s30\ns_add_u32 s55, s55, {G_MD}")
        C3 = SIDE - 128 if self.o.get("c3", 0) else 0
        a(f"v_lshrrev_b32 v1, 3, v0\nv_cmp_eq_u32 vcc, 3, v1\nv_add_u32 v1, {C3}, v30\ns_nop 0\nv_cndmask_b32 v1, v30, v1, vcc")
        ws_srd(a, 56, WS_O, 4<<20)
        if XW != 'k': a(self.rowmajor24(24, 26))
        a("s_mov_b32 s94, 0x358637bd")
        G = lambda ops, i0, step: [(i0 + step*k, (lambda g=g: self.group(g))) for k, g in enumerate(ops)]
        ZM = o.get('zm', 'before'); POST = o.get('post_scale', 1); X2 = 140 if POST else P
        def reduce_():
            self.tr("1q", 2)
            a.wait(vm=[("kv",)])
            retry(1, range(64, 72), kv_ops)
            self.tr("1hop1")
            if ZM == "before":
                for g in z_ops(): self.group(g)
            for e in range(8): a(f"v_lshlrev_b32 v{96+e}, 16, v{64+e}\nv_and_b32 v{104+e}, 0xffff0000, v{64+e}")
            for b in (96, 104):
                for h in (0, 2): a(f"v_pk_add_f32 {pk(b+h)}, {pk(b+h)}, {pk(b+4+h)}")
            a("s_nop 0")
            for b in (96, 104): a(f"v_permlane16_swap_b32 v{b}, v{b+1}\nv_permlane16_swap_b32 v{b+2}, v{b+3}")
            for b in (96, 104): a(f"v_add_f32 v{b}, v{b}, v{b+1}\nv_add_f32 v{b+2}, v{b+2}, v{b+3}")
            a("s_nop 0\nv_permlane32_swap_b32 v96, v98\nv_permlane32_swap_b32 v104, v106\nv_add_f32 v96, v96, v98\nv_add_f32 v104, v104, v106\ns_nop 0")
            a("v_add_f32_dpp v96, v96, v96 row_ror:8 row_mask:0xf bank_mask:0xf\nv_add_f32_dpp v104, v104, v104 row_ror:8 row_mask:0xf bank_mask:0xf\nv_cvt_pk_bf16_f32 v72, v96, v104")
            a.vmem("buffer_store_dword v72, v31, s[16:19], s49 offen sc1", ("tots",))
            if ZM == "after":
                for g in z_ops(): self.group(g)
        I1, I2, I3 = o.get("i1", 30), o.get("i2", 140), o.get("i3", 10)
        n = self.splice(lambda: (feat1(0), feat2(32)), G(pre2(HQ), 0, 8) + G(kv_ops() + (z_ops() if ZM == 'early' else []), I1, 6) + [(I2, reduce_)])
        a.wait(vm=[("z",)])
        retry(2, range(80, 96), z_ops)
        ZF, ZQ = 120, 64
        def zmath():
            for q in range(0, 8, 2): a(f"v_pk_add_f32 {pk(80+q)}, {pk(80+q)}, {pk(88+q)}")
            for q in range(0, 4, 2): a(f"v_pk_add_f32 {pk(80+q)}, {pk(80+q)}, {pk(84+q)}")
            a("s_nop 0")
            for q in range(4): a(f"v_mfma_f32_16x16x4_f32 v[{100+4*q}:{103+4*q}], v{80+q}, v29, 0")
            a("s_nop 6")
            for d in range(8): a(f"v_cvt_pk_bf16_f32 v{ZF+d}, v{100+2*d}, v{101+2*d}")
            a("s_nop 0")
            for tb in range(4):
                for sg in range(2): mf(ZQ + 16*sg + 4*tb, ZF + 4*sg, EF + 16*sg + 4*tb, "0")
            a("s_nop 1")
            for tb in range(4):
                a(f"v_fma_f32 v{ZQ+4*tb}, v{S(0,tb)}, s94, v{ZQ+4*tb}\nv_mul_f32 v{ZQ+4*tb}, v{ZQ+4*tb}, v{S(1,tb)}\nv_fmac_f32 v{ZQ+4*tb}, v{ZQ+16+4*tb}, v{S(0,tb)}")
                a(f"v_rcp_f32 v{ZQ+4*tb}, v{ZQ+4*tb}")
            for tb in range(4): a(f"v_mul_f32 v{100+2*tb}, v{ZQ+4*tb}, v{S(1,tb)}\nv_mul_f32 v{108+2*tb}, v{ZQ+4*tb}, v{S(0,tb)}")
            if not POST: scale_pack(32, lambda sg, tb: 100 + 8*sg + 2*tb)
        HT = o.get("ht", (0,)); TS = o.get("ts", 3)
        n2 = self.splice(zmath, G(tot_ops(), I3, TS) + (G([[X("s_barrier")]] + pre2(HT), I3 + 6*TS, 4) if HT else []))
        self.info.append((n, n2))
        def x2():
          for tb in range(2):
            for u in range(2): a.vmem(f"buffer_load_dwordx4 v[{X2+8*tb+4*u}:{X2+3+8*tb+4*u}], v{24+tb}, s[8:11], s86 offen offset:{64*u}", ("x2",))
        if XW == "z": x2()
        self.tr("1z", 2)
        a.wait(vm=[("tot",)])
        retry(3, [r + k for r in KF for k in range(4)] + list(range(244, 252)), tot_ops)
        self.tr("1hop2")
        O = 32
        def ostore(tb):
            if POST:
                for e in range(0, 8, 2): a(f"v_pk_mul_f32 {pk(O+8*tb+e)}, {pk(O+8*tb+e)}, {pk(100+2*tb)} op_sel_hi:[1,0]")
                for e in range(0, 8, 2): a(f"v_pk_fma_f32 {pk(O+8*tb+e)}, {pk(P+8*tb+e)}, {pk(108+2*tb)}, {pk(O+8*tb+e)} op_sel_hi:[1,0,1]")
            for d in range(4): a(f"v_cvt_pk_bf16_f32 v{64+4*tb+d}, v{O+8*tb+2*d}, v{O+8*tb+2*d+1}")
            a.vmem(f"buffer_store_dwordx4 v[{64+4*tb}:{67+4*tb}], v1, s[56:59], s54 offen sc1", ("o",))
            if tb < 3: a("s_add_u32 s54, s54, 65536")
        for tb in range(4):
            for db in range(2):
                d = O + 8*tb + 4*db
                mf(d, KF[db], EF + 4*tb, "0")
                if POST: mf(P + 8*tb + 4*db, KF[2+db], EF + 16 + 4*tb, "0")
                else: mf(d, KF[2+db], EF + 16 + 4*tb, d)
            if tb >= 2: ostore(tb - 2)
        ostore(2); ostore(3)
        for tb in range(4):
            a(f"v_pk_mul_f32 {pk(100+2*tb)}, {pk(O+8*tb)}, {pk(244)}")
            for e in range(2, 8, 2): a(f"v_pk_fma_f32 {pk(100+2*tb)}, {pk(O+8*tb+e)}, {pk(244+e)}, {pk(100+2*tb)}")
        for tb in range(4): a(f"v_add_f32 v{96+tb}, v{100+2*tb}, v{101+2*tb}")
        rs4(a, 96, "v_add_f32")
        a("v_lshlrev_b32 v16, 2, v0")
        a.vmem("buffer_store_dword v96, v16, s[16:19], s55 offen sc1", ("md",))
        self.tr("1end")
        if XW == "end": x2()
        else: a.wait(vm=[("x2",)])
        def xinit():
            for tb in range(2):
                for u in range(2):
                    x = X2 + 8*tb + 4*u
                    if XW == "k":
                        for d in (0, 2, 1, 3): a(f"v_accvgpr_read_b32 v{x+d}, a{144+8*tb+4*u+d}")
                        a("s_nop 0")
                    a(f"v_permlane16_swap_b32 v{x}, v{x+2}\nv_permlane16_swap_b32 v{x+1}, v{x+3}")
                    for d in range(4):
                        r = 32 + 4*(2*(2*u + d//2) + tb) + 2*(d % 2)
                        a(f"v_lshlrev_b32 v{r}, 16, v{x+d}\nv_and_b32 v{r+1}, 0xffff0000, v{x+d}")
        HE = o.get("he", (2, 3))
        a("L_ph2:")
        rest = pre2([x for x in range(8) if x not in H14 + HQ + HE + HK + HT + HS])
        if XW == "end":
            S3 = o.get("s3", "before")
            self.weave(lambda: self.setup2(S3 == "before"), pre2(HE) + [[]])
            self.signal(2, ("md",))
            a.wait(vm=[("x2",)])
            self.weave(lambda: (xinit(), self.setup3() if S3 == "after" else None), rest + [[]])
        else:
            S3 = o.get("s3", "before")
            self.weave(lambda: (xinit(), self.setup2(S3 == "before")), pre2(HE) + [[]])
            self.signal(2, ("md",))
            if S3 == "after": self.weave(self.setup3, rest + [[]])
            else:
                for g in rest: self.group(g)

    def setup3(self):
        a = self.a
        a("s_and_b32 s25, s2, 3\ns_lshl_b32 s25, s25, 3\ns_lshr_b32 s27, s2, 5\ns_add_u32 s25, s25, s27\ns_bfe_u32 s26, s2, 0x20003")
        a("s_movk_i32 s27, 6944\nv_lshlrev_b32 v9, 4, v0")
        for i in range(7):
            a(f"v_add_u32 v14, {64*i}, v0\nv_mul_u32_u24 v14, 4682, v14\nv_lshrrev_b32 v14, 16, v14\nv_mad_u32_u24 v{2+i}, v14, s27, v9")
            if i >= 4: a(f"v_add_u32 v{2+i}, 4096, v{2+i}")
        a("s_lshl_b32 s87, s26, 4\ns_lshl_b32 s35, s20, 2\ns_add_u32 s87, s87, s35")
        a("v_add_u32 v10, 65536, v9\nv_add_u32 v11, 131072, v9\nv_add_u32 v12, 196608, v9")
        a("s_mul_i32 s22, s47, 229376\ns_mul_i32 s27, s25, 224\ns_add_u32 s22, s22, s27")
        a("s_mul_i32 s27, s46, 14336\ns_mul_i32 s23, s47, 7168\ns_add_u32 s23, s23, s27")
        a.lines.append(f"s_bitcmp1_b32 s20, 0\ns_cselect_b32 s4, s{P_WU}, s{P_WG}\ns_cselect_b32 s5, s{P_WU+1}, s{P_WG+1}\ns_mov_b32 s6, 7340032")
        a("v_lshrrev_b32 v14, 2, v0\nv_mul_u32_u24 v14, 224, v14\nv_and_b32 v15, 3, v0\nv_lshl_add_u32 v13, v15, 3, v14")
    def dma3(self, a, st, i):
        f = []
        if i == 0 and st >= 2 and st % 2 == 0: f.append(lambda: a("s_xor_b32 s23, s23, 0x10000"))
        if i == 0 and st > 0: f.append(lambda: a(f"s_add_u32 s22, s22, {64*7168}"))
        if i % 4 == 0: f.append(lambda: a(f"s_add_u32 m0, s23, {(st%2)*32768 + i*1024}"))
        f.append(lambda: a.vmem(f"buffer_load_dwordx4 v{2+i}, s[4:7], s22 offen offset:{1024*(i%4)} lds", ("dma", st)))
        return f

    def setup2(self, with3=True):
        a = self.a
        a(self.rdaddr24(16))
        for sg in range(4): a(f"v_add_u32 v{16+sg}, {B2[0]}, v{16+sg}")
        a("v_and_b32 v23, 31, v0\nv_lshlrev_b32 v22, 3, v23\nv_lshlrev_b32 v23, 2, v23\nv_lshrrev_b32 v20, 5, v0\nv_lshl_add_u32 v20, v20, 8, v23")
        a(f"s_bfe_u32 s92, s82, 0x40002\ns_lshl_b32 s92, s92, 14\ns_lshl_b32 s27, s46, 7\ns_add_u32 s92, s92, s27\ns_add_u32 s92, s92, s30\ns_add_u32 s92, s92, {G_MD}\ns_add_u32 s93, s92, 4096")
        a(f"s_lshl_b32 s94, s82, 7\ns_add_u32 s94, s94, {G_ST1}\ns_and_b32 s21, s82, 63\ns_lshl_b32 s21, s21, 15\n" + place("s21"))
        a("v_add_u32 v21, 65536, v1\nv_accvgpr_write_b32 a223, v1")
        a("s_and_b32 s34, s80, 7\ns_lshl_b32 s34, s34, 9\nv_and_b32 v31, 3, v0\nv_lshl_add_u32 v31, v31, 7, s34\nv_and_b32 v29, 4, v0\nv_lshl_or_b32 v31, v29, 10, v31\nv_and_b32 v29, 8, v0\nv_lshl_or_b32 v31, v29, 11, v31")
        if with3: self.setup3()
    def phase2(self):
        a, o = self.a, self.o.get("k2", {})
        TR = o.get("TR", 4); E3 = 0
        ws_srd(a, 8, WS_HC, 4<<20)
        for fn in self.code_touch("b", "L_ph3", "L_code_end", 52, 26, 3): fn()
        VW = self.o.get("vw", 0)
        self.visitn("c", (1, 2, 3))
        self.await_(2)
        self.tr("2start")
        c = gemm16.Cfg()
        c.TB, c.NB, c.SPS, c.NST, c.NDMA = 2, 4, 2, 8, 4
        c.PRE = 8; c.TR = TR; c.BODY = 8; c.LA, c.WR = o.get("LA", 3), 4; c.TOK0 = o.get("tok0", 2)
        c.PBACK = 4*c.LA; c.LDS2 = False
        accr = lambda j, tb: 32 + 4*(2*j+tb)
        c.acc = lambda j, tb: f"v[{accr(j,tb)}:{accr(j,tb)+3}]"
        c.tokreg = lambda sl, tb, s: f"a[{40+16*sl+8*tb+4*s}:{40+16*sl+8*tb+4*s+3}]"
        c.wreg = lambda sl, s: f"a[{8*sl+4*s}:{8*sl+4*s+3}]"
        def tok(a, t, tb, s):
            f = []
            if t % 2 == 0 and tb == 0 and s == 0 and t > 0: f.append(lambda: a(f"s_add_u32 s21, s21, {4096 if t % 4 else 12288}"))
            f.append(lambda: a.vmem(f"buffer_load_dwordx4 {c.tokreg(t % c.TR, tb, s)}, v{1 if tb == 0 else 21}, s[56:59], s21 offen offset:{1024*((2*t+s)%4)} {self.o.get('tokfl', 'sc1')}", ("tok", t, tb, s)))
            return f
        c.tok = tok; c.tokpos = lambda i: 4*i
        def wread(a, st, sis, j, s, rd, sl, tag):
            lo = 8*sl + 4*s + 2*rd
            a.lds(f"ds_read_b64_tr_b16 a[{lo}:{lo+1}], v{16+j} offset:{(st%2)*16384 + (64*sis + 32*s + 16*rd)*128}", tag)
        c.wread = wread
        PB = 4
        c.barrier_at = lambda st: st == PB
        def on_P(a, st):
            if st % 2 == 1:
                for sg in range(4): a(f"v_add_u32 v{16+sg}, {B2[st+1] - B2[st-1]}, v{16+sg}")
            if self.o.get("trace2"): self.tr(f"2P{st}")
        c.on_P = on_P
        if self.o.get("trace2"): c.first_tok = lambda a: self.tr("2tok")
        if VW: c.prologue_mid = lambda a: self.visit("L_got2", "L_loop3", (0, 1, 2, 3))
        V = lambda s, tag: (lambda: a.vmem(s, tag))
        X = lambda s: (lambda: a(s))
        self.pre3 = o.get("pre3", 1 + E3)
        def extra(st):
            ex = []
            if st >= 1 and st < 5:
                ex += [(2 + 8*k, V(f"buffer_load_dword v{64+i}, v20, s[16:19], s{92+i//8} offen offset:{512*(i%8)} sc1", ("md",))) for k, i in enumerate(range(4*st-4, 4*st))]
            if st == 5: ex += [(2, V("buffer_load_dword v24, v22, s[16:19], s94 offen sc1", ("md",)))]
            if st == 6:
                k = 0
                for s3 in range(E3, self.pre3):
                    for i in range(7):
                        for fn in self.dma3(a, s3, i): ex.append((o.get("p0", 18) + o.get("pstep", 5)*k, fn))
                        k += 1
            return ex
        def fixed(st):
            if st != 7: return []
            L = [lambda: a.wait(vm=[("md",)])] + [X(f"v_add_f32 v{64+i}, v{64+i}, v{64+i+n}") for n in (8, 4, 2, 1) for i in range(n)]
            L += [X("v_mov_b32 v65, v64\ns_nop 0"), X("v_permlane32_swap_b32 v64, v65"), X("v_add_f32 v64, v64, v65"), X("v_add_f32 v24, v24, v64"), X("v_mov_b32 v25, v24\ns_nop 0"), X("v_permlane16_swap_b32 v24, v25")]
            return [(8 + k, f) for k, f in enumerate(L)]
        c.fixed = fixed
        adr = ("s_and_b32 s34, s82, 63\ns_lshl_b32 s34, s34, 15\ns_lshl_b32 s27, s81, 11\ns_add_u32 s34, s34, s27\n" + place("s34") +
               "s_bfe_u32 s35, s82, 0x40002\ns_lshl_b32 s35, s35, 4\ns_add_u32 s35, s35, s81\ns_lshl_b32 s35, s35, 1\ns_add_u32 s35, s35, s46\ns_lshl_b32 s35, s35, 7\n" + place("s35"))
        c.slots = lambda st: [(0, X(l), 1, 0) for l in adr.split()and adr.strip().split("\n")] if st == 2 else []
        c.extra = extra
        gemm16.mainloop(a, c)
        self.tr("2main")
        pk = lambda r: f"v[{r}:{r+1}]"
        a("s_nop 3")
        for tb in range(2):
            for u in range(2):
                x = 72 + 8*tb + 4*u
                for d in range(4):
                    r = accr(2*u + d//2, tb) + 2*(d % 2)
                    a(f"v_pk_add_f32 {pk(r+64)}, {pk(r)}, v[24:25] op_sel:[0,{tb}] op_sel_hi:[1,{tb}] neg_lo:[0,1] neg_hi:[0,1]")
                for d in range(4):
                    r = accr(2*u + d//2, tb) + 2*(d % 2) + 64
                    a(f"v_cvt_pk_bf16_f32 v{x+d}, v{r}, v{r+1}")
                a.vmem(f"buffer_store_dwordx4 v[{x}:{x+3}], v{9+tb}, s[8:11], s34 offen offset:{1024*u} sc1", ("hc",))
        for tb in range(2):
            rs = [accr(nb, tb) + h + 64 for nb in range(4) for h in (0, 2)]
            a(f"v_pk_mul_f32 {pk(26+2*tb)}, {pk(rs[0])}, {pk(rs[0])}")
            for r in rs[1:]: a(f"v_pk_fma_f32 {pk(26+2*tb)}, {pk(r)}, {pk(r)}, {pk(26+2*tb)}")
        a("v_add_f32 v26, v26, v27\nv_add_f32 v28, v28, v29\ns_nop 1\nv_permlane16_swap_b32 v26, v28\ns_nop 0\nv_add_f32 v26, v26, v28\nv_mov_b32 v28, v26\ns_nop 1\nv_permlane32_swap_b32 v26, v28\ns_nop 0\nv_add_f32 v26, v26, v28")
        a.vmem("buffer_store_dword v26, v23, s[16:19], s35 offen sc1", ("ss",))
        self.tr("2end")

    def phase3(self):
        a, o = self.a, self.o.get("k3", {})
        PKF, D, G0, PRE = o.get("pkf", 5), o.get("pfd", 4), o.get("g0", 0), o.get("pre", 2)
        a("L_ph3:")
        def hsave():
            for r in range(32): a(f"v_accvgpr_write_b32 a{HSAVE+r}, v{32+r}")
        rest3 = [self.dma3(a, s3, i) for s3 in range(self.pre3, PRE) for i in range(7)]
        if o.get("r3", "after") == "before": self.weave(hsave, rest3 + [[]]); rest3 = []
        else: hsave()
        a("s_lshl_b32 s21, s87, 15\n" + place("s21") + "s_mov_b32 s51, 4096")
        blk = {}
        def cut(name, m): blk[name] = a.lines[m:]; del a.lines[m:]
        m0 = a.mark()
        ws_srd(a, 12, WS_HH, 16<<20); psrd(a, 40, P_WD, 7340032)
        a("s_lshl_b32 s38, s87, 10\n" + place("s38") + "v_lshlrev_b32 v14, 2, v0")
        a(f"s_lshr_b32 s36, s2, 3\ns_lshl_b32 s36, s36, 1\ns_add_u32 s36, s36, s47\ns_add_u32 s36, s36, {64*D}\ns_mul_i32 s36, s36, 7168\ns_and_b32 s37, s2, 3\ns_mul_i32 s37, s37, 1792\ns_add_u32 s36, s36, s37\ns_and_b32 s37, s2, 4\ns_mul_i32 s37, s37, 224\ns_add_u32 s36, s36, s37")
        a(f"s_lshr_b32 s37, s2, 3\ns_mul_i32 s37, s37, {112*2048}\ns_and_b32 s27, s2, 7\ns_lshl_b32 s27, s27, 2\ns_add_u32 s27, s27, s20\ns_lshl_b32 s27, s27, 10\ns_add_u32 s37, s37, s27")
        W0 = o.get("w0", 5)
        a(f"s_add_u32 s48, s36, {(15-D)*64*7168}\ns_mov_b32 s49, s37\ns_add_u32 s50, s37, {6*32768}\ns_sub_u32 s37, s37, {W0*32768}")
        a("v_min_u32 v1, 6, v0\nv_lshlrev_b32 v1, 7, v1\nv_min_u32 v15, 7, v0\nv_lshlrev_b32 v15, 7, v15"); assert W0 <= 5
        cut("B", m0)
        hhb = ("s_lshl_b32 s99, s87, 17\ns_lshr_b32 s27, s25, 4\ns_mul_i32 s27, s27, 57344\ns_add_u32 s99, s99, s27\ns_and_b32 s27, s25, 15\ns_lshl_b32 s27, s27, 9\ns_add_u32 s99, s99, s27\n"
               "s_add_u32 s96, s99, s27\ns_add_u32 s99, s99, 49152\n" + place("s96") + place("s99") + "s_add_u32 s97, s96, 32768\ns_add_u32 s98, s96, 65536")
        a(f"s_and_b32 s35, s2, 1\ns_mul_i32 s92, s35, {1792*2048}\ns_lshl_b32 s27, s81, 7\ns_add_u32 s92, s92, s27\ns_mul_i32 s27, s20, {112*2048}\ns_add_u32 s92, s92, s27\ns_add_u32 s93, s92, s27")
        a("s_lshl_b32 s95, s20, 13\ns_and_b32 s28, s82, 63\ns_lshl_b32 s28, s28, 17\ns_mul_i32 s27, s35, 57344\ns_add_u32 s28, s28, s27\n" + place("s28"))
        a(f"s_and_b32 s34, s80, 6\ns_add_u32 s34, s34, s35\ns_lshl_b32 s34, s34, 8\ns_bfe_u32 s27, s82, 0x20002\ns_lshl_b32 s27, s27, 2\ns_add_u32 s34, s34, s27")
        a(f"v_and_b32 v20, 1, v0\nv_lshl_add_u32 v20, v20, 7, s34\nv_and_b32 v21, 6, v0\nv_lshl_or_b32 v20, v21, 10, v20\nv_and_b32 v21, 8, v0\nv_lshl_or_b32 v20, v21, 11, v20\ns_xor_b32 s27, s100, 128\ns_sub_u32 s27, s27, s101")
        a("v_mov_b32 v21, s27\nv_cmp_gt_u32 vcc, 16, v0\ns_nop 1\nv_cndmask_b32 v20, v21, v20, vcc\nv_accvgpr_write_b32 a222, v20")
        a(f"s_mov_b32 s63, s3\ns_sub_u32 s62, s3, {1<<20}\ns_xor_b32 s61, s3, {(2<<20) + 8192}\ns_xor_b32 s60, s62, {(2<<20) + 8192}")
        cut("C", m0)
        if True:
            sg = a
            sg(f"s_lshr_b32 s27, s{P_WD}, 7\ns_sub_u32 s27, 3, s27\ns_and_b32 s27, s27, 7\ns_lshl_b32 s55, s27, 7\ns_and_b32 s35, s2, 1\ns_mul_i32 s35, s35, {1792*2048}\ns_add_u32 s55, s55, s35")
            sg("s_lshr_b32 s27, s27, 1\ns_lshr_b32 s35, s81, 1\ns_sub_u32 s27, s35, s27\ns_sub_u32 s27, s27, 1\ns_and_b32 s27, s27, 3\ns_lshl_b32 s27, s27, 1\ns_lshr_b32 s35, s35, 2\ns_add_u32 s27, s27, s35")
            sg("s_lshl_b32 s27, s27, 2\ns_and_b32 s35, s80, 3\ns_add_u32 s27, s27, s35\ns_lshl_b32 s27, s27, 2\ns_add_u32 s27, s27, s20")
            sg("s_cmp_ge_u32 s27, 96\ns_cselect_b32 s27, 256, s27\nv_mul_u32_u24 v28, 96, v0\nv_add_u32 v28, s27, v28\nv_cmp_gt_u32 vcc, 256, v28")
            sg("v_bfe_u32 v29, v28, 5, 2\nv_mul_u32_u24 v29, 112, v29\nv_and_b32 v30, 31, v28\nv_add_u32 v29, v29, v30\nv_lshlrev_b32 v29, 11, v29")
            sg("v_bfe_u32 v30, v28, 4, 3\nv_mul_u32_u24 v30, 112, v30\nv_and_b32 v31, 15, v28\nv_add_u32 v30, v30, v31\nv_lshlrev_b32 v30, 11, v30")
            sg("v_bfe_u32 v28, v28, 7, 1\nv_lshl_add_u32 v29, v28, 10, v29\nv_lshl_add_u32 v30, v28, 10, v30\nv_mov_b32 v31, 0x7ffffff0\nv_cndmask_b32 v28, v31, v29, vcc\nv_cndmask_b32 v29, v31, v30, vcc")
            a(self.rdaddr24(16))
            for k, r in enumerate((16, 17, 18, 19, 28, 29)): a(f"v_accvgpr_write_b32 a{216+k}, v{r}")
        cut("D", m0); a(hhb); cut("E", m0)
        WH = {"B": "pre", "C": "pre", "D": "post", "E": "tok", **o.get("wh", {})}
        def put(w):
            for k in "BCDE":
                if WH[k] == w: a.lines += blk[k]
        put("pre"); self.visitn("d", (0, 1, 2, 3))
        self.signal(3, ("ss",))
        for g in rest3: self.group(g)
        self.visitn("e", (1, 2, 3)); put("post"); assert WH["E"] != "pre"
        a("s_lshr_b32 s34, s26, 1\ns_lshl_b32 s34, s34, 8\ns_and_b32 s35, s26, 1\ns_lshl_b32 s35, s35, 10\ns_or_b32 s34, s34, s35")
        a("v_and_b32 v31, 1, v0\nv_lshl_add_u32 v31, v31, 7, s34\nv_and_b32 v29, 2, v0\nv_lshl_or_b32 v31, v29, 8, v31\nv_and_b32 v29, 12, v0\nv_lshl_or_b32 v31, v29, 9, v31\nv_and_b32 v29, 16, v0\nv_lshl_or_b32 v31, v29, 10, v31")
        self.await_(3)
        if self.o.get("x_idle"): a(f"s_sleep {self.o['x_idle']}")
        self.tr("3start")
        c = gemm16.Cfg()
        c.TB, c.NB, c.SPS, c.NST, c.NDMA = 4, 14, 1, 16, 7
        c.TR = 2; c.BODY = 2; c.LA, c.WR = 2, 4; c.PRE = PRE
        c.PBACK = 16; c.LDS2 = False; c.first_zero = True
        accr = lambda j, tb: 32 + 4*(4*j+tb)
        c.acc = lambda j, tb: f"v[{accr(j,tb)}:{accr(j,tb)+3}]"
        c.tokreg = lambda sl, tb, s: f"a[{32+32*sl+8*tb+4*s}:{32+32*sl+8*tb+4*s+3}]"
        c.wreg = lambda sl, s: f"a[{8*sl+4*s}:{8*sl+4*s+3}]"
        c.dma = self.dma3
        def tok(a, t, tb, s, sl=None):
            f = []
            if t % 2 == 0 and tb == 0 and s == 0 and t > 0: f.append(lambda: a("s_add_u32 s21, s21, s51\ns_xor_b32 s51, s51, 8192"))
            f.append(lambda: a.vmem(f"buffer_load_dwordx4 {c.tokreg(t % 2 if sl is None else sl, tb, s)}, v{9+tb}, s[8:11], s21 offen offset:{1024*((2*t+s)%4)} {self.o.get('tokfl', 'sc1')}", ("tok", t, tb, s)))
            return f
        c.tok = tok
        woff = lambda st, j, s, rd: (st%2)*32768 + (j%2)*14336 + (32*s + 16*rd)*224 + (j//2)*32
        def wread(a, st, sis, j, s, rd, sl, tag):
            lo = 8*sl + 4*s + 2*rd
            a.lds(f"ds_read_b64_tr_b16 a[{lo}:{lo+1}], v13 offset:{woff(st, j, s, rd)}", tag)
        c.wread = wread
        def on_P(a, st):
            if st % 2 == 1: a("v_xor_b32 v13, 0x10000, v13")
            self.tr(f"3P{st}", 3)
        c.on_P = on_P
        c.first_tok = lambda a: self.tr("3tok")
        c.fine0 = o.get("fine0", 1); c.unchain0 = self.o.get("unch", 0)
        def marker(a):
            for k in range(4): a.vmem(f"buffer_store_dwordx4 a[224:227], v9, s[16:19], s{60+k} offen sc1", ("xclr",))
        MK = o.get('mk', 'p1')
        c.prologue_mid = lambda a: put('tok')
        c.pos_by_stage = True
        lz = PRE == 1
        if lz: c.lazy1 = lambda i: 4*i
        c.tokpos = lambda i, st: o.get('t13', (30, 3))[0] + o.get('t13', (30, 3))[1]*i if st == 13 else o.get('t0', 4) + 4*i if st == 0 and not lz else 30 + 4*i if st == 0 and lz else 4 + 4*i
        c.dmapos = lambda i, st: 4*i if st == 13 else 62 + 4*i if st == 0 and lz else 36 + 8*i
        c.drain_at = lambda st: st == 13
        V = lambda s, tag: (lambda: a.vmem(s, tag))
        X = lambda s: (lambda: a(s))
        def extra(st):
            ex = []; g = o.get("pfgap", 90)
            if D < 16 and G0 <= st < 12:
                ex += [(g, V("buffer_load_dword a250, v1, s[4:7], s36 offen", ("pf",))), (g+2, X(f"s_add_u32 s36, s36, {64*7168}")), (g+2, X("s_min_u32 s36, s36, s48"))]
            if 1 <= st < 12:
                ex += [(g-4, X("s_add_u32 s37, s37, 32768")), (g-4, X("s_max_i32 s39, s37, s49")), (g-4, X("s_min_u32 s39, s39, s50")), (g, V("buffer_load_dword a251, v15, s[40:43], s39 offen", ("pf",)))]
            if MK == 'p3m' and st in (1, 12):
                ex += [(g_, V(f"buffer_store_dwordx4 a[224:227], v9, s[16:19], s{60 + k + (2 if st == 12 else 0)} offen sc1", ("xclr",))) for k, g_ in enumerate((33, 41))]
            if st == o.get("ssst", 0):
                for i in range(16): ex.append((o.get("ss0", 38) + o.get("ssd", 4)*i, V(f"buffer_load_dword v{16+i}, v14, s[16:19], s38 offen offset:{256*i} sc1", ("ss",))))
            if st == 12: ex += [(90, f) for f in self.code_touch("c", "L_ph4", "L_code_end", 56, 14, 2)]
            if st == 13:
                for i in range(8):
                    for fn in tok(a, 15, i//2, i%2, 2): ex.append((o.get('t15', (56, 3))[0] + o.get('t15', (56, 3))[1]*i, fn))
            return ex
        c.extra = extra
        pre = Asm()
        for st_ in (8, 4, 2, 1):
            for i in range(st_): pre(f"v_add_f32 v{16+i}, v{16+i}, v{16+i+st_}")
        pre("v_mov_b32 v17, 0x3727c5ac\nv_fmac_f32 v17, 0x3a800000, v16\nv_sqrt_f32 v24, v17\nv_rsq_f32 v16, v17\nv_mul_f32 v16, 0xbfb8aa3b, v16")
        for b in (16, 24):
            pre(f"v_mov_b32 v{b+4}, v{b}\nv_permlane32_swap_b32 v{b}, v{b+4}\nv_mov_b32 v{b+2}, v{b}\nv_mov_b32 v{b+6}, v{b+4}")
            pre(f"v_permlane16_swap_b32 v{b}, v{b+2}\nv_permlane16_swap_b32 v{b+4}, v{b+6}")
        late = Asm()
        late("v_and_b32 v2, 15, v0\nv_lshlrev_b32 v2, 4, v2\nv_bfe_u32 v3, v0, 4, 1\nv_lshlrev_b32 v3, 18, v3\nv_lshrrev_b32 v4, 5, v0\nv_lshlrev_b32 v4, 8, v4\nv_add3_u32 v2, v2, v3, v4")
        late("v_add_u32 v3, 524288, v2\nv_accvgpr_read_b32 v8, a222\nv_accvgpr_read_b32 v1, a223\nv_add_u32 v15, 262144, v1")
        late(self.voff24(4, not self.o.get('perm', 0)))
        def idle(st):
            if st == 13: return [(40, X("\n".join(late.lines[k:k+2]))) for k in range(0, len(late.lines), 2)]
            if st != o.get("prest", 12): return []
            L = [X("\n".join(pre.lines[k:k+2])) for k in range(0, 14, 2)] + [X(l + ("\ns_nop 0" if l.startswith("v_mov") else "")) for l in pre.lines[14:]]
            return [(o.get("preg", 0), lambda: a.wait(vm=[("ss",)]))] + [(0, f) for f in L]
        c.idle = idle
        def gate_ops(fb, tb):
            g = accr(2*fb, tb); L = []
            if fb >= PKF:
                L += [(f"v_pk_mul_f32 v[{g+2*h}:{g+2*h+1}], v[{g+2*h}:{g+2*h+1}], v[{16+2*tb}:{17+2*tb}] op_sel_hi:[1,0]", 4) for h in range(2)]
                L += [(f"v_exp_f32 v{g+r}, v{g+r}", 8) for r in range(4)]
                L += [(f"v_pk_fma_f32 v[{g+2*h}:{g+2*h+1}], v[{g+2*h}:{g+2*h+1}], v[{24+2*tb}:{25+2*tb}], v[{24+2*tb}:{25+2*tb}] op_sel_hi:[1,0,0]", 4) for h in range(2)]
            else:
                L += [(f"v_mul_f32 v{g+r}, v{16+2*tb}, v{g+r}", 4) for r in range(4)]
                L += [(f"v_exp_f32 v{g+r}, v{g+r}", 8) for r in range(4)]
                L += [(f"v_fma_f32 v{g+r}, v{g+r}, v{24+2*tb}, v{24+2*tb}", 4) for r in range(4)]
            return L + [(f"v_rcp_f32 v{g+r}, v{g+r}", 8) for r in range(4)]
        PERM = self.o.get("perm", 0)
        def fin_ops(fb, tp):
            if PERM and fb < 6:
                L = []
                for tb in (2*tp, 2*tp+1):
                    g, u, d = accr(2*fb, tb), accr(2*fb+1, tb), accr(2*(fb & 6)+1, tb)
                    if fb >= PKF: L += [(f"v_pk_mul_f32 v[{g+2*h}:{g+2*h+1}], v[{g+2*h}:{g+2*h+1}], v[{u+2*h}:{u+2*h+1}]", 4) for h in range(2)]
                    else: L += [(f"v_mul_f32 v{g+r}, v{g+r}, v{u+r}", 4) for r in range(4)]
                    L += [(f"v_cvt_pk_bf16_f32 v{d+2*(fb%2)+h}, v{g+2*h}, v{g+2*h+1}", 4) for h in range(2)]
                    if fb % 2: L += [(f"buffer_store_dwordx4 v[{d}:{d+3}], v{(1, 15, 17, 19)[tb]}, s[12:15], s{96 + fb//2} offen sc1", 4)]
                return L
            gs = [accr(2*fb, 2*tp+x) for x in range(2)]; us = [accr(2*fb+1, 2*tp+x) for x in range(2)]; d = us[0]; L = []
            for x in range(2):
                if fb >= PKF: L += [(f"v_pk_mul_f32 v[{gs[x]+2*h}:{gs[x]+2*h+1}], v[{gs[x]+2*h}:{gs[x]+2*h+1}], v[{us[x]+2*h}:{us[x]+2*h+1}]", 4) for h in range(2)]
                else: L += [(f"v_mul_f32 v{gs[x]+r}, v{gs[x]+r}, v{us[x]+r}", 4) for r in range(4)]
            return L + [(f"v_cvt_pk_bf16_f32 v{d}, v{gs[0]}, v{gs[0]+1}", 4), (f"v_cvt_pk_bf16_f32 v{d+2}, v{gs[1]}, v{gs[1]+1}", 4),
                  (f"v_cvt_pk_bf16_f32 v{d+1}, v{gs[0]+2}, v{gs[0]+3}", 4), (f"v_cvt_pk_bf16_f32 v{d+3}, v{gs[1]+2}, v{gs[1]+3}", 4), ("s_nop 0", 4),
                  (f"v_permlane16_swap_b32 v{d}, v{d+2}", 8), (f"v_permlane16_swap_b32 v{d+1}, v{d+3}", 8),
                  (f"buffer_store_dwordx4 v[{d}:{d+3}], v{2+tp}, s[12:15], s{96 + fb//2} offen offset:{512*(fb%2)} sc1", 4)]
        c.NRUN = 14
        twreg = lambda sl, s: 132 + 16*sl + 4*s
        def tread(j, s, rd):
            lo = twreg(j % 3, s) + 2*rd
            return lambda: a.lds(f"ds_read_b64_tr_b16 a[{lo}:{lo+1}], v13 offset:{woff(s//2, j, s%2, rd)}", ("tw", j))
        treads = lambda j: [tread(j, s, rd) for s in range(4) for rd in range(2)]
        c.tail_reads = treads(0)
        c.P_wait = lambda st: [("dma", 15)] if st == 13 else []
        marks, _ = gemm16.mainloop(a, c)
        self.info.append(roll(a, marks, "L_loop3", "s24"))
        q = []
        for fb in range(7):
            for tp in range(2):
                if fb > 0: q += [([(2*fb-1, 2*tp), (2*fb-1, 2*tp+1)], l, cst) for l, cst in fin_ops(fb-1, tp)]
            for tb in range(4): q += [([(2*fb, tb)], l, cst) for l, cst in gate_ops(fb, tb)]
        for tp in range(2): q += [([(13, 2*tp), (13, 2*tp+1)], l, cst) for l, cst in fin_ops(6, tp)]
        self.nstg = self.o.get("k4", {}).get("stg", 0)
        dq = [fn for st in range(3 + self.nstg) for i in range(8) for fn in self.dma4(a, st, i, "p4")]
        def emit(l):
            if l.startswith("buffer_store"): a.vmem(l, ("hh", self.nhh//2)); self.nhh += 1
            else: a(l)
        self.nhh = 0; P4, C4 = o.get("p4", 220), o.get("c4", 999); assert not self.nstg
        self.tok0 = self.o.get("k4", {}).get("tok0", 4)
        tq = [self.tok4(a, t, i//2, i%2, "p4") for t in range(self.tok0) for i in range(4)]
        done = {}; rq = []
        for j in range(14):
            if j + 1 < 14: rq += treads(j + 1)
            for m in range(16):
                tb, s = divmod(m, 4); s = s if tb % 2 == 0 else 3 - s
                if m == 0: a.wait(vm=[("tok", t, x, y) for t in (14, 15) for x in range(4) for y in range(2)] if j == 0 else [], lg=[("tw", j)])
                a(f"v_mfma_f32_16x16x32_bf16 {c.acc(j, tb)}, a[{twreg(j%3, s)}:{twreg(j%3, s)+3}], {c.tokreg(2*(s//2), tb, s%2)}, {c.acc(j, tb)}")
                if m % 4 == 3: done[(j, tb)] = a.mark()
                credit = o.get("strict", 16) - (4 if m == 15 else 0)
                if rq and m < 12 and (m % 3 != 2): rq.pop(0)(); credit -= 4
                if dq and m in o.get("dslots", (2, 5, 8, 13)): dq.pop(0)(); credit -= 4
                if (j, m) == (o.get("f4", 9), 12): self.progress(4, ("hh", 1)); credit = 0
                if 16*j + m == P4: a.vmem("buffer_load_dword v12, v8, s[16:19], s101 offen sc1", ("poll",)); credit -= 4
                if 16*j + m == C4: self.check(4, ("poll",)); credit = 0
                if 16*j + m > C4 and m % 4 == 2 and len(tq) > 4*self.tok0 - 16: self.group(tq.pop(0)); credit -= 4
                while q and credit >= q[0][2] and all(n in done and a.mark() - done[n] >= 8 for n in q[0][0]):
                    _, l, cst = q.pop(0); emit(l); credit -= cst
            assert not rq
        assert not dq
        self.tr("3main")
        k0 = int(len(q)*o.get("chk", 0.2)) if C4 > 223 else 0; nq = len(q); nt_ = len(tq)
        for k, (need, l, cst) in enumerate(q):
            gap = min(a.mark() - done[n] for n in need)
            if gap < 8: a(f"s_nop {7 - gap}"); done = {k_: -99 for k_ in done}
            if k == P4 - 224: a.vmem("buffer_load_dword v12, v8, s[16:19], s101 offen sc1", ("poll",))
            if k == k0 and C4 > 223: self.check(4, ("poll",))
            while tq and k >= k0 and (nt_ - len(tq)) * (nq - k0 - 12) <= (k - k0) * nt_: self.group(tq.pop(0))
            emit(l)
        assert not tq
        self.progress(5, ("hh", 3))
        self.tr("3end")
        a.vm = [x[1:] if x[0] == "p4" else ("old", x) for x in a.vm]; a.lg = [("old", x) for x in a.lg]

    def progress(self, val, tag):
        a = self.a; assert a.vm.count(tag) == 2
        a.wait(vm=[tag] + [x for x in (("prog",), ("old", ("prog",))) if x in a.vm]); a(f"v_mov_b32 v14, {val}")
        a.vmem("buffer_store_dword v14, off, s[16:19], s100 sc1", ("prog",))
    def check(self, val, tag):
        a, t = self.a, self.tail
        a.wait(vm=[tag])
        a(f"v_cmp_gt_u32 vcc, {val}, v12\ns_nop 0\ns_cbranch_vccnz L_spin{val}\nL_rdy{val}:")
        t(f"L_spin{val}:\ns_mov_b32 s27, {SPIN}\nL_spin{val}b:\n" + (f"s_sleep {self.o['psleep']}\n" if self.o.get("psleep") else "") + f"buffer_load_dword v12, v8, s[16:19], s101 offen sc1\ns_waitcnt vmcnt(0)\nv_cmp_gt_u32 vcc, {val}, v12\ns_sub_u32 s27, s27, 1")
        t(f"s_cbranch_vccz L_rdy{val}\ns_cmp_lg_u32 s27, 0\ns_cbranch_scc1 L_spin{val}b\ns_branch L_rdy{val}")
    R4 = [0, 32768, 131072, 65536, 98304]
    T4 = [64, 80, 0, 16, 32]
    def dma4(self, a, st, i, pfx=None):
        f = []; tag = (pfx, "dma", st) if pfx else ("dma", st)
        if i == 0:
            if st == 12 and self.o.get("perm", 0):
                f += [(lambda l=l: a(l)) for l in ("v_lshrrev_b32 v5, 5, v0", "v_lshl_add_u32 v4, v5, 13, v4", f"v_add_u32 v5, {112*2048 - 1024}, v4", f"v_add_u32 v6, {4*2048 - 2048}, v4", f"v_add_u32 v7, {116*2048 - 3072}, v4")]
            elif st == 12: f += [lambda: a(f"v_add_u32 v5, {96*2048}, v5"), lambda: a(f"v_add_u32 v7, {96*2048}, v7")]
            f += [lambda: a(f"s_add_u32 s94, s92, {((st%4)*448 + (st//4)*32)*2048}" if st < 12 else f"s_add_u32 s94, s93, {((st-12)*896 + 96)*2048}"), lambda: a("s_xor_b32 s85, s94, 128")]
        if pfx and st >= 3:
            r = 64*(st - 3) + 4*i
            return f + [lambda: a.vmem(f"buffer_load_dwordx4 a[{r}:{r+3}], v{4+i%4}, s[40:43], {'s85' if i < 4 else 's94'} offen offset:{1024*(i%4)}", tag)]
        if i % 4 == 0: f.append(lambda: a(f"s_add_u32 m0, s95, {self.R4[st%5] + 1024*i}"))
        f.append(lambda: a.vmem(f"buffer_load_dwordx4 v{4+i%4}, s[40:43], {'s85' if i < 4 else 's94'} offen offset:{1024*(i%4)} lds", tag))
        return f
    def tok4(self, a, t, tb, s, pfx=None):
        f = []; tag = (pfx, "tok", t, tb, s) if pfx else ("tok", t, tb, s); r = self.T4[t % 5] + 8*tb + 4*s
        if t % 2 == 0 and tb == 0 and s == 0 and t > 0: f.append(lambda: a(f"s_add_u32 s28, s28, {4096 if t % 4 else 12288}"))
        f.append(lambda: a.vmem(f"buffer_load_dwordx4 a[{r}:{r+3}], v{1 if tb == 0 else 15}, s[12:15], s28 offen offset:{1024*((2*t+s)%4)} sc1", tag))
        return f

    def phase4(self):
        a, t, o = self.a, self.tail, self.o.get("k4", {})
        a("L_ph4:")
        for k, r in enumerate((16, 17, 18, 19, 28, 29)): a(f"v_accvgpr_read_b32 v{r}, a{216+k}")
        a("s_add_u32 s27, s95, 65536\nv_add_u32 v20, s27, v9")
        a.wait(vm=[("dma", 2 + self.nstg)]); a("s_barrier")
        c = gemm16.Cfg()
        c.TB, c.NB, c.SPS, c.NST, c.NDMA = 2, 8, 2, 14, 8
        c.PRE = 3 + self.nstg; c.LEAD = 3; c.TR = 5; c.TLEAD = o.get("tlead", 3); c.TOKPRE = self.tok0; c.BODY = 14
        c.LA = o.get("LA", 3); c.WR = 4; c.WPAIR = o.get("wpair", 0); c.PBACK = 4*c.LA; c.LDS2 = False; c.first_zero = True; c.unchain0 = self.o.get("unch", 0)
        assert c.TLEAD <= c.TOKPRE <= c.TR
        accr = lambda j, tb: 32 + 4*(2*j+tb)
        c.acc = lambda j, tb: f"v[{accr(j,tb)}:{accr(j,tb)+3}]"
        c.tokreg = lambda sl, tb, s: f"a[{self.T4[sl]+8*tb+4*s}:{self.T4[sl]+8*tb+4*s+3}]"
        c.wreg = lambda sl, s: f"a[{132+8*sl+4*s}:{135+8*sl+4*s}]"
        c.dma, c.tok = self.dma4, self.tok4
        def wread(a, st, sis, j, s, rd, sl, tag):
            lo = 132 + 8*sl + 4*s + 2*rd
            a.lds(f"ds_read_b64_tr_b16 a[{lo}:{lo+1}], v{16+j%4} offset:{(self.R4[st%5] & 32768) + (2*sis + s)*8192 + (j//4)*4096 + rd*2048}", tag)
        c.wread = wread
        def on_P(a, st):
            d = (self.R4[(st+1)%5] & ~32768) - (self.R4[st%5] & ~32768)
            if d:
                for sg in range(4): a(f"v_add_u32 v{16+sg}, {d & 0xffffffff}, v{16+sg}")
            self.tr(f"4P{st}", 4)
        c.on_P = on_P
        def pre_P(a, st):
            if 3 <= st + 1 < c.PRE:
                assert a.lg.count(("stg", st + 1)) == 8
                a.wait(lg=[("stg", st + 1)])
        c.pre_P = pre_P
        c.first_tok = lambda a: self.tr("4start")
        c.tokpos = lambda i: 1 + 8*i
        c.pos_by_stage = True
        c.tokpos = lambda i, st: 1 + 8*i
        c.dmapos = lambda i, st: 6*i if st == 0 else o.get('dp', (-8, 7))[0] + o.get('dp', (-8, 7))[1]*i
        RATE = o.get("rate", 8.9)
        if RATE: c.dma_at = lambda s, i: max(0, 64*(c.PRE - 3) - c.PBACK) + int((8*(s - c.PRE) + i)*RATE)
        V = lambda s, tag: (lambda: a.vmem(s, tag))
        X = lambda s: (lambda: a(s))
        SG = o.get("sgl", 1)
        setup = Asm(); setup(self.rowmajor24(24, 26)); psrd(setup, 8, P_OUT, 4<<20)
        FULL = o.get("full", 0)
        if FULL: setup(f"v_bfe_u32 v26, v0, 3, 1\nv_mul_u32_u24 v26, {16384 - 64}, v26\nv_sub_u32 v24, v24, v26\nv_sub_u32 v25, v25, v26\ns_add_u32 s87, s86, 16384")
        setup("s_xor_b32 s48, s60, 4096\ns_xor_b32 s49, s61, 4096\ns_xor_b32 s50, s62, 4096\ns_xor_b32 s51, s63, 4096")
        def extra(st):
            ex = []; u = st + 3 + SG
            if SG and c.PRE <= u < 14:
                off = ((u%4)*448 + (u//4)*32)*2048 if u < 12 else ((u-12)*896 + 96)*2048
                ex += [(46, X(f"s_add_u32 s53, s55, {off}")), (46, V(f"buffer_load_dword a250, v{28 if u < 12 else 29}, s[40:43], s53 offen", ("sg",)))]
            if st == 0:
                ex += [(o.get("w0", 4) + o.get("wstep", 8)*k, (lambda k=k: a.lds(f"ds_write_b128 v20, a[{64*(k//8) + 4*(k%8)}:{64*(k//8) + 4*(k%8) + 3}] offset:{32768*(k//8) + 1024*(k%8)}", ("stg", 3 + k//8)))) for k in range(8*self.nstg)]
            if st == o.get("f6", 2): ex += [(40, lambda: self.progress(6, ("old", ("hh", 6))))]
            for val, t1 in ((5, 8), (6, 16)):
                g = (t1 - c.TLEAD)*32
                pl = o.get("pl", (60, 90))[val - 5]
                if st == (g - pl)//64: ex += [((g - pl) % 64, V("buffer_load_dword v12, v8, s[16:19], s101 offen sc1", ("poll", val)))]
                if st == g//64: ex += [(g % 64, lambda val=val: self.check(val, ("poll", val)))]
            pass
            return ex
        c.extra = extra
        c.slots = lambda st: [(0, X(l), 1, 0) for l in setup.lines] if st == 11 else []
        c.NRUN = 13
        order = [(sis, j) for h in range(2) for j in range(4*h, 4*h+4) for sis in range(2)]
        nb0 = 13*16
        treads = lambda k: [(lambda s=s, rd=rd: wread(a, 13, order[k][0], order[k][1], s, rd, (nb0 + k) % 4, ("tw", k))) for s in range(2) for rd in range(2)]
        c.tail_reads = [f for k in range(c.LA) for f in treads(k)]
        gemm16.mainloop(a, c)
        SX, RX = 96, 112
        sq = []
        for j in range(4):
            for d in range(4): sq.append((j, f"v_cvt_pk_bf16_f32 v{SX+4*j+d}, v{32+8*j+2*d}, v{33+8*j+2*d}"))
            sq.append((j, f"buffer_store_dwordx4 v[{SX+4*j}:{SX+4*j+3}], v9, s[16:19], s{60+j} offen sc1"))
        done = {}
        for k, (sis, j) in enumerate(order):
            rq = treads(k + c.LA) if k + c.LA < 16 else []
            for m in range(4):
                tb = m // 2; s = (m % 2) ^ tb
                if m == 0: a.wait(vm=[("tok", 26 + sis, x, y) for x in range(2) for y in range(2)], lg=[("tw", k)])
                a(f"v_mfma_f32_16x16x32_bf16 {c.acc(j, tb)}, {c.wreg((nb0 + k) % 4, s)}, {c.tokreg((26 + sis) % 5, tb, s)}, {c.acc(j, tb)}")
                if sis == 1 and m == 3: done[j] = a.mark()
                if rq: rq.pop(0)()
                if sq and sq[0][0] in done and a.mark() - done[sq[0][0]] >= 8: a(sq.pop(0)[1])
        assert not sq
        self.tr("4main")
        recv = lambda: [a(f"buffer_load_dwordx4 v[{RX+4*j}:{RX+4*j+3}], v9, s[16:19], s{48+j} offen sc1") for j in range(4)]
        pk = lambda r: f"v[{r}:{r+1}]"
        R0 = o.get("r0", 8)
        for r in range(0, 32, 2):
            if r == R0: recv()
            a(f"v_accvgpr_read_b32 v20, a{HSAVE+r}\nv_accvgpr_read_b32 v21, a{HSAVE+r+1}\nv_pk_add_f32 {pk(64+r)}, {pk(64+r)}, v[20:21]")
        if R0 >= 32: recv()
        a(f"s_waitcnt vmcnt(0)\ns_mov_b32 s27, {SPIN}\nL_chk4:")
        umax(a, 20, range(RX, RX + 16))
        a("v_cmp_eq_u32 vcc, -1, v20\ns_sub_u32 s27, s27, 1\ns_cbranch_vccz L_ok4\ns_cmp_eq_u32 s27, 0\ns_cbranch_scc1 L_ok4")
        recv(); a("s_waitcnt vmcnt(0)\ns_branch L_chk4\nL_ok4:")
        self.tr("4got")
        for tb in range(2):
            for u in range(2):
                x = SX + 8*tb + 4*u
                for d in range(4):
                    r = accr(4 + 2*u + d//2, tb) + 2*(d % 2); p = RX + (r - 64)//2
                    a(f"v_lshlrev_b32 v20, 16, v{p}\nv_and_b32 v21, 0xffff0000, v{p}\nv_pk_add_f32 {pk(r)}, {pk(r)}, v[20:21]\nv_cvt_pk_bf16_f32 v{x+d}, v{r}, v{r+1}")
                a(f"s_nop 1\nv_permlane16_swap_b32 v{x}, v{x+2}\nv_permlane16_swap_b32 v{x+1}, v{x+3}")
                if not FULL: a(f"buffer_store_dwordx4 v[{x}:{x+3}], v{24+tb}, s[8:11], s86 offen offset:{64*u} {o.get('stfl', 'sc1 nt')}")
            if FULL:
                x = SX + 8*tb; y = 32 + 8*tb
                for d in range(4): a(f"v_mov_b32 v{y+d}, v{x+d}")
                for d in range(4): a(f"v_mov_b32_dpp v{y+d}, v{x+4+d} row_ror:8 row_mask:0xf bank_mask:0xc")
                a(f"buffer_store_dwordx4 v[{y}:{y+3}], v{24+tb}, s[8:11], s86 offen {o.get('stfl', 'sc1 nt')}")
                for d in range(4): a(f"v_mov_b32_dpp v{x+4+d}, v{x+d} row_ror:8 row_mask:0xf bank_mask:0x3")
                a(f"buffer_store_dwordx4 v[{x+4}:{x+7}], v{24+tb}, s[8:11], s87 offen {o.get('stfl', 'sc1 nt')}")
        self.tr("4end")
        if self.o.get("trace"): a("s_waitcnt vmcnt(0)"); self.tr("4ack")

def roll2(a, marks, label, sreg):
    blocks = [a.lines[marks[i]:marks[i+1]] for i in range(len(marks)-1)]
    out = a.lines[:marks[0]]; i = 0; info = []
    while i < len(blocks):
        j = i
        while j + 1 < len(blocks) and blocks[j+1] == blocks[i]: j += 1
        n = j - i + 1
        if n > 1: out += [f"s_mov_b32 {sreg}, {n}", f"{label}_{i}:"] + blocks[i] + [f"s_sub_u32 {sreg}, {sreg}, 1", f"s_cmp_lg_u32 {sreg}, 0", f"s_cbranch_scc1 {label}_{i}"]
        else: out += blocks[i]
        info.append(n); i = j + 1
    a.lines = out + a.lines[marks[-1]:]
    return info

def sizes(lines):
    import subprocess, re, tempfile, os
    stub = sorted({m for l in lines for m in re.findall(r"L_visit\d+", l)})
    d = tempfile.mkdtemp()
    open(d + "/x.s", "w").write('.amdgcn_target "amdgcn-amd-amdhsa--gfx950"\n.text\n' + "\n".join(l for l in lines if not l.startswith(".p2align")) + "\n" + "".join(x + ":\n" for x in stub) + "L_code_end:\n")
    subprocess.run(["clang", "-x", "assembler", "-target", "amdgcn-amd-amdhsa", "-mcpu=gfx950", "-c", d + "/x.s", "-o", d + "/x.o"], check=True)
    dis = subprocess.run(["llvm-objdump", "-d", "-z", "--mcpu=gfx950", d + "/x.o"], capture_output=True, text=True).stdout
    sz = [4*len(m.group(1).split()) for m in re.finditer(r"// [0-9A-F]{12}: ([0-9A-F ]+)", dis)]
    out = []; k = 0
    for l in lines:
        if l.endswith(":") or l.startswith("."): out.append(0)
        else: out.append(sz[k]); k += 1
    assert k == len(sz)
    return out
def page_stubs(g):
    a, t = g.a, g.tail
    sz = sizes(a.lines + t.lines)
    out = []; off = None; page = 0; pos = {}; stubs = []
    for i, l in enumerate(a.lines):
        if l == "L_go:": off = 0
        if l.endswith(":"): pos[l[:-1]] = len(out)
        if off is not None and off >= 4096*page and sz[i] and l != "s_endpgm" and not a.lines[i-1].startswith("L_pc"):
            assert off < 4096*page + 56
            stubs.append(len(out)); out += [f"L_pg{page}:", "s_cbranch_execz L_vret"]; off += 4; page += 1
        out.append(l)
        if off is not None: off += sz[i]
    a.lines = out
    nxt = 1
    near = Asm(); near("L_vret:\ns_setpc_b64 s[98:99]")
    for k, (first, last, waves) in enumerate(g.visits):
        w = near
        pgs = list(range(nxt, min(nxt + first, len(stubs)))); nxt += first
        site = a.lines.index(f's_call_b64 s[96:97], L_visit{k}'); pgs = [p for p in pgs if stubs[p] > site]
        w(f"L_visit{k}:\ns_mov_b64 exec, 0")
        for n, wv in enumerate(waves):
            w(f"s_cmp_lg_u32 s20, {wv}\ns_cbranch_scc1 L_visit{k}_{n}")
            for p in pgs[n::len(waves)]: w(f"s_call_b64 s[98:99], L_pg{p}")
            w(f"L_visit{k}_{n}:")
        w("s_mov_b64 exec, -1\ns_setpc_b64 s[96:97]")
        g.info.append(pgs)
    k = a.lines.index(".p2align 12"); a.lines[k:k] = near.lines

def gen(o={}, name=NAME + "_kernel", aslist=False):
    g = Gen(o); a = g.a
    a("s_cmp_ge_u32 s2, 256\ns_cbranch_scc1 L_done")
    if o.get("trace"): a("s_mov_b32 s29, 0\nv_accvgpr_write_b32 a252, 0\nv_accvgpr_write_b32 a253, 0"); g.tr("start")
    g.phase1(); g.phase2(); g.phase3(); g.phase4()
    if o.get("trace"):
        ws_srd(a, 56, WS_TRACE, 1<<20)
        a("s_lshl_b32 s60, s2, 11\ns_lshl_b32 s61, s20, 9\ns_add_u32 s60, s60, s61\nv_lshlrev_b32 v16, 3, v0\nbuffer_store_dwordx2 a[252:253], v16, s[56:59], s60 offen")
    if o.get("spin"):
        A_, B_, mult, W = o["spin"]
        a(f"s_cmp_lg_u32 s2, {W}\ns_cbranch_scc1 L_done\nv_accvgpr_read_b32 v20, a{252 if mult > 0 else 253}\ns_memrealtime s[8:9]\ns_nop 1\nv_readlane_b32 s10, v20, {g.names.index(A_)}\nv_readlane_b32 s11, v20, {g.names.index(B_)}\ns_waitcnt lgkmcnt(0)\ns_nop 3")
        a(f"s_sub_u32 s11, s11, s10\ns_min_u32 s11, s11, 20000\ns_mul_i32 s11, s11, {mult}" if mult > 0 else f"s_sub_u32 s11, s11, s10\ns_min_u32 s11, s11, 100000\ns_lshr_b32 s11, s11, {-mult}")
        a("L_z_spin:\ns_memrealtime s[12:13]\ns_waitcnt lgkmcnt(0)\ns_sub_u32 s12, s12, s8\ns_cmp_lt_u32 s12, s11\ns_cbranch_scc1 L_z_spin")
    a("L_done:\ns_endpgm")
    a.lines = [x for l in a.lines for x in l.split("\n")]
    if o.get("st"):
        for L in (a.lines, g.tail.lines):
            for k, l in enumerate(L):
                if l.startswith("buffer_store") and l.rstrip().endswith(" sc1"): L[k] = l.rstrip()[:-3] + o["st"]
    if o.get("ld"):
        for L in (a.lines, g.tail.lines):
            for k, l in enumerate(L):
                if l.startswith("buffer_load") and l.rstrip().endswith(" sc1"): L[k] = l.rstrip()[:-3] + o["ld"]
    if g.visits: page_stubs(g)
    ll = f"; @launch {'kernel=' + name + ' ' if aslist else ''}grid=(256,1,1) block=(256,1,1) lds=163840\n"
    txt = ll + '.amdgcn_target "amdgcn-amd-amdhsa--gfx950"\n.text\n' + kernel_head(name) + a.text() + g.tail.text() + 'L_code_end:\n.section .rodata,"a"\n' + kernel_desc(name, 512, 256)
    return txt, g
def header():
    ref = open(f"cdna_kernels/{NAME}.s.ref").read().split("\n")
    return "\n".join(l for l in ref if l.startswith(";") and "@launch" not in l and "Override" not in l and "grid=ceil" not in l) + "\n"
if __name__ == "__main__":
    import sys
    txt, g = gen({"trace": int(sys.argv[2]) if len(sys.argv) > 2 else 0})
    open(sys.argv[1] if len(sys.argv) > 1 else "mega.s", "w").write(header() + txt)
    print(g.info, g.names)
```

```python
import sys, json; sys.path.insert(0, 'dev')
import mega
def tup(o): return {k: tup(v) if isinstance(v, dict) else tuple(v) if isinstance(v, list) else v for k, v in o.items()}
for k, o in enumerate(json.loads(sys.argv[1])):
    t, g = mega.gen(tup(o)); print(k, o, g.info[0], g.info[2]); open(f"v{k}.s", "w").write(mega.header() + t)
```
